```python
import torch

def _softmax(x, axis=-1):
    return torch.softmax(x, dim=axis)

def _gelu(x):
    return torch.nn.functional.gelu(x, approximate='tanh')

def _silu(x):
    return torch.nn.functional.silu(x)

def _sigmoid(x):
    return torch.sigmoid(x)

def _layernorm(x, axis=-1, eps=1e-05):
    m = x.mean(dim=axis, keepdim=True)
    v = x.var(dim=axis, keepdim=True, unbiased=False)
    return (x - m) / torch.sqrt(v + eps)

def _scatter_add(tgt, idx, src, axis=0):
    return tgt.clone().index_add_(axis, idx, src)

def _segment_sum(src, seg, n):
    out = torch.zeros((n,) + src.shape[1:], dtype=src.dtype)
    return out.index_add_(0, seg, src)

def _pad(x, pw):
    flat = tuple((v for pair in reversed(pw) for v in pair))
    return torch.nn.functional.pad(x, flat)
kernel_name = 'adaLN_cond__sliding_local_dilated__dense_activation_relu__prompt'

def setup_inputs():

    _w = lambda a: (lambda t: t.to(torch.bfloat16) if t.is_floating_point() else t)(torch.as_tensor(a))

    def _A_setup():
        B, S, D = (1, 2048, 512)
        return {'x': _w((lambda *s: torch.randn(*s, dtype=torch.bfloat16) * 0.05)(B, S, D)), 'wqkv': _w((lambda *s: torch.randn(*s, dtype=torch.bfloat16) * 0.05)(D, 3 * D)), 'wo': _w((lambda *s: torch.randn(*s, dtype=torch.bfloat16) * 0.05)(D, D))}
    _A_in = _A_setup()

    def _B_setup():
        B, S, D, Dff = (1, 2048, 512, 1376)
        return {'x': _w((lambda *s: torch.randn(*s, dtype=torch.bfloat16) * 0.05)(B, S, D)), 'w1': _w((lambda *s: torch.randn(*s, dtype=torch.bfloat16) * 0.05)(D, Dff)), 'w2': _w((lambda *s: torch.randn(*s, dtype=torch.bfloat16) * 0.05)(Dff, D))}
    _B_in = _B_setup()
    return {'A_x': _A_in['x'], 'A_wqkv': _A_in['wqkv'], 'A_wo': _A_in['wo'], 'B_x': _B_in['x'], 'B_w1': _B_in['w1'], 'B_w2': _B_in['w2'], 'c': _w((lambda *s: torch.randn(*s, dtype=torch.bfloat16) * 0.1)(1, 512) * 8.0), 'w_mod': _w((lambda *s: torch.randn(*s, dtype=torch.bfloat16) * 0.1)(512, 6 * 512) * 512 ** (-0.5) * 8.0)}

def reference(A_x, A_wqkv, A_wo, B_x, B_w1, B_w2, c, w_mod):

    def _A_ref(x, wqkv, wo):
        B, S, D = x.shape
        H = 32
        Dh = D // H
        W, dil = (8, 2)
        qkv = (lambda x, *d: x.permute(*d))((x @ wqkv).reshape(B, S, 3, H, Dh), 2, 0, 3, 1, 4)
        q, k, v = (qkv[0], qkv[1], qkv[2])
        scale = Dh ** (-0.5)
        pos = torch.arange(S)
        off = torch.arange(W) * dil
        idx = pos[:, None] - off[None, :]
        mask = idx >= 0
        idx_c = torch.where(mask, idx, 0).reshape(-1)
        kg = k[:, :, idx_c, :].reshape(B, H, S, W, Dh)
        vg = v[:, :, idx_c, :].reshape(B, H, S, W, Dh)
        logits = torch.einsum('bhsd,bhswd->bhsw', q, kg) * scale
        logits = torch.where(mask[None, None, :, :], logits, -1000000000.0)
        attn = _softmax(logits, axis=-1)
        o = torch.einsum('bhsw,bhswd->bhsd', attn, vg)
        return (lambda x, *d: x.permute(*d))(o, 0, 2, 1, 3).reshape(B, S, D) @ wo

    def _B_ref(x, w1, w2):
        h = torch.einsum('bsd,df->bsf', x, w1)
        zero = torch.zeros_like(h)
        h = torch.maximum(h, zero)
        return torch.einsum('bsf,fd->bsd', h, w2)
    x = A_x
    mod = (_silu(c) @ w_mod).reshape(c.shape[0], 6, 1, -1)
    sa, ca, ga, sb, cb, gb = (mod[:, 0].clone(), mod[:, 1].clone(), mod[:, 2].clone(), mod[:, 3].clone(), mod[:, 4].clone(), mod[:, 5].clone())
    h = _layernorm(x, axis=-1) * (1 + ca) + sa
    x = x + ga * _A_ref(h, A_wqkv, A_wo)
    h = _layernorm(x, axis=-1) * (1 + cb) + sb
    x = x + gb * _B_ref(h, B_w1, B_w2)
    return x
```

```python
import re

REG_RE = re.compile(r'^(-|\|)?([vas])(?:(\d+)|\[(\d+):(\d+)\])\|?$')
TRANS = ('v_exp_f32', 'v_log_f32', 'v_rcp_f32', 'v_rsq_f32', 'v_sqrt_f32', 'v_sin_f32', 'v_cos_f32')


def regs_of(op):
    op = op.strip()
    if op == 'vcc':
        return {('s', 106), ('s', 107)}
    if op == 'vcc_lo':
        return {('s', 106)}
    if op == 'vcc_hi':
        return {('s', 107)}
    if op == 'exec':
        return {('s', 126), ('s', 127)}
    if op == 'exec_lo':
        return {('s', 126)}
    if op == 'exec_hi':
        return {('s', 127)}
    if op == 'm0':
        return {('s', 124)}
    m = REG_RE.match(op)
    if not m:
        return set()
    k = m.group(2)
    if m.group(3) is not None:
        return {(k, int(m.group(3)))}
    return {(k, i) for i in range(int(m.group(4)), int(m.group(5)) + 1)}


VCC = {('s', 106), ('s', 107)}
EXEC = {('s', 126), ('s', 127)}
M0 = {('s', 124)}


class Ins:
    __slots__ = ('text', 'mn', 'cls', 'w', 'r', 'states', 'A', 'B', 'C', 'passes', 'sgemm', 'dpp', 'wide', 'data', 'dma', 'dot')

    def __init__(self, text):
        self.text = text
        t = text.split(';')[0].strip()
        parts = t.split(None, 1)
        mn = parts[0]
        rest = parts[1] if len(parts) > 1 else ''
        ops, depth, cur = [], 0, ''
        for ch in rest:
            if ch == '[':
                depth += 1
            if ch == ']':
                depth -= 1
            if ch == ',' and depth == 0:
                ops.append(cur.strip()); cur = ''
            else:
                cur += ch
        if cur.strip():
            ops.append(cur.strip())
        mods = ''
        if ops:
            last = ops[-1].split(None, 1)
            ops[-1] = last[0]
            mods = last[1] if len(last) > 1 else ''
        self.mn = mn
        self.states = 1
        self.A = self.B = self.C = set()
        self.passes = 0
        self.sgemm = False
        self.dpp = False
        self.wide = False
        self.data = set()
        self.dma = False
        self.dot = False
        R = [regs_of(o) for o in ops]
        U = lambda l: set().union(*l) if l else set()
        base = re.sub(r'_(e32|e64|dpp|sdwa)$', '', mn)
        if mn.startswith('v_mfma'):
            self.cls = 'mfma'
            self.w = R[0]; self.A, self.B, self.C = R[1], R[2], R[3]
            self.r = R[1] | R[2] | R[3]
            if '32x32x16' in mn: self.passes = 8
            elif '16x16x32' in mn or '16x16x16' in mn: self.passes = 4
            elif '32x32x2_f32' in mn: self.passes = 16; self.sgemm = True
            elif '16x16x4_f32' in mn: self.passes = 8; self.sgemm = True
            else: raise ValueError(mn)
        elif mn.startswith('v_'):
            self.cls = 'valu'
            self.dpp = ('dpp' in mn) or any(k in mods for k in ('row_', 'quad_perm', 'wave_'))
            if base.startswith('v_permlane') and 'swap' in base:
                self.w = R[0] | R[1]; self.r = R[0] | R[1]
            elif base.startswith('v_cmpx'):
                self.w = set(EXEC) | R[0]; self.r = U(R[1:])
            elif base in ('v_add_co_u32', 'v_sub_co_u32', 'v_addc_co_u32', 'v_subb_co_u32', 'v_mad_u64_u32'):
                self.w = R[0] | R[1]; self.r = U(R[2:])
            elif base == 'v_nop':
                self.w = set(); self.r = set()
            else:
                self.w = R[0]; self.r = U(R[1:])
                if base in ('v_fmac_f32', 'v_dot2c_f32_bf16', 'v_writelane_b32', 'v_pk_fmac_f16') or self.dpp:
                    self.r = self.r | R[0]
                if base == 'v_cndmask_b32' and len(ops) == 3:
                    self.r = self.r | VCC
            self.dot = base.startswith('v_dot')
        elif mn.startswith('ds_'):
            self.cls = 'ds'
            if mn.startswith('ds_read') or mn.startswith('ds_bpermute') or mn.startswith('ds_permute') or mn.startswith('ds_swizzle'):
                self.w = R[0]; self.r = U(R[1:])
            else:
                self.w = set(); self.r = U(R)
        elif mn.startswith('buffer_') or mn.startswith('global_'):
            self.cls = 'vmem'
            allm = ' ' + mods + ' '
            if mn in ('buffer_wbl2', 'buffer_inv'):
                self.w = set(); self.r = set()
            elif ' lds ' in allm:
                self.dma = True
                self.w = set(); self.r = U(R) | M0
            elif 'load' in mn:
                self.w = R[0]; self.r = U(R[1:])
            elif mn.startswith('buffer_store'):
                self.w = set(); self.r = U(R); self.data = R[0]
                self.wide = mn.endswith('x4') or mn.endswith('x3')
            elif mn.startswith('global_store'):
                self.w = set(); self.r = U(R); self.data = R[1]
                self.wide = mn.endswith('x4') or mn.endswith('x3')
            else:
                raise ValueError(mn)
        elif mn.startswith('s_'):
            if mn.startswith('s_load') or mn.startswith('s_memtime') or mn.startswith('s_memrealtime'):
                self.cls = 'smem'; self.w = R[0]; self.r = U(R[1:])
            else:
                self.cls = 'salu'
                if mn == 's_nop':
                    self.states = int(ops[0]) + 1; self.w = set(); self.r = set()
                elif mn.startswith('s_cmp') or mn.startswith('s_cbranch') or mn.startswith('s_bitcmp') or mn in ('s_branch', 's_waitcnt', 's_barrier', 's_endpgm', 's_sleep', 's_setprio'):
                    self.w = set(); self.r = U(R)
                elif 'saveexec' in mn:
                    self.w = R[0] | EXEC; self.r = U(R[1:]) | EXEC
                else:
                    self.w = R[0]; self.r = U(R[1:])
        else:
            raise ValueError('unknown instr ' + text)


def isv(s):
    return {x for x in s if x[0] in 'va'}


def iss(s):
    return {x for x in s if x[0] == 's'}


def need(p, c):
    n = 0
    if p.cls == 'valu':
        wv = isv(p.w); ws = iss(p.w)
        if c.cls == 'mfma':
            if wv & c.r: n = max(n, 3 if p.dot else 2)
            if ws & EXEC: n = max(n, 4)
        if c.cls == 'valu':
            if c.dpp and (wv & c.r): n = max(n, 2)
            if c.dpp and (ws & EXEC): n = max(n, 5)
            if c.mn.startswith('v_permlane') and (wv & c.r): n = max(n, 2)
            if c.mn.startswith('v_permlane') and (ws & EXEC): n = max(n, 4)
            if (c.mn.startswith('v_readlane') or c.mn.startswith('v_readfirstlane')) and (wv & c.r): n = max(n, 1)
            if (c.mn.startswith('v_readlane') or c.mn.startswith('v_readfirstlane') or c.mn.startswith('v_writelane')):
                if ws & EXEC: n = max(n, 4)
                if ws & c.r: n = max(n, 4)
            if ws & c.r: n = max(n, 2)
            if any(p.mn.startswith(t) for t in TRANS) and (wv & c.r): n = max(n, 1)
            if ('op_sel' in p.text and not p.mn.startswith('v_pk')) or 'sdwa' in p.mn:
                if wv & (c.r | c.w): n = max(n, 1)
            if p.dot and (wv & (c.r | c.w)):
                same = re.sub(r'_(e32|e64|dpp)$', '', p.mn) == re.sub(r'_(e32|e64|dpp)$', '', c.mn)
                if not (same and c.w == p.w):
                    n = max(n, 3)
        if c.cls == 'vmem' and (ws & c.r): n = max(n, 5)
        if p.dot and c.cls in ('vmem', 'ds') and (wv & c.r): n = max(n, 3)
    elif p.cls == 'mfma':
        D = p.w
        idx = {4: 0, 8: 1, 16: 2}[p.passes]
        if c.cls == 'mfma':
            if D & (c.A | c.B):
                n = max(n, ([6, 10, 18] if p.sgemm else [8, 12, 20])[idx])
            if D & c.C:
                if p.sgemm:
                    if c.sgemm and not (c.C == D and c.passes == p.passes): n = max(n, [4, 8, 16][idx])
                else:
                    if c.sgemm or not (c.C == D and c.passes == p.passes): n = max(n, [6, 10, 18][idx])
            elif D & c.w:
                n = max(n, [8, 12, 20][idx])
        elif c.cls in ('valu', 'ds', 'vmem'):
            if D & (c.r | c.w):
                n = max(n, ([6, 10, 18] if p.sgemm else [8, 12, 20])[idx])
            if c.cls == 'valu' and not p.sgemm and (p.C & c.w):
                n = max(n, [3, 7, 15][idx])
    elif p.cls == 'vmem':
        if p.wide and (p.data & c.w):
            n = max(n, 2 if c.cls in ('valu', 'mfma') else 1)
    elif p.cls == 'salu':
        if (p.w & M0) and c.cls == 'vmem' and c.dma: n = max(n, 1)
    return n


class Asm:
    def __init__(self):
        self.lines = []
        self.hist = []
        self.vm = []
        self.lg = []
        self.sm = set()
        self.cond = None
        self.nuniq = 0
        self.stats = {}
        self.nnop = 0
        self.nwait = 0

    def uniq(self, p):
        self.nuniq += 1
        return f'L_{p}_{self.nuniq}'

    def raw(self, s):
        self.lines.append(s)

    def comment(self, s):
        self.lines.append('    ; ' + s)

    def _emit(self, ins):
        self.lines.append('    ' + ins.text)
        self.hist.append(ins)
        if len(self.hist) > 40:
            self.hist.pop(0)
        self.stats[ins.cls] = self.stats.get(ins.cls, 0) + 1

    def _after(self, q, i):
        return sum(1 for e in q[i + 1:] if e[2] is None or e[2] == self.cond)

    def _wait(self, vm=None, lg=None):
        s = []
        if vm is not None: s.append(f'vmcnt({min(vm, 63)})')
        if lg is not None: s.append(f'lgkmcnt({min(lg, 15)})')
        self._emit(Ins('s_waitcnt ' + ' '.join(s)))
        self.nwait += 1

    def _retire(self, q, i):
        if self.cond is None:
            del q[:i + 1]
        else:
            keep = [e for k, e in enumerate(q) if k > i or (e[2] != self.cond)]
            for k, e in enumerate(q):
                if k <= i and e[2] != self.cond:
                    e[3].add(self.cond)
            q[:] = keep

    def _find(self, q, regs):
        last = -1
        for i, e in enumerate(q):
            if (e[0] & regs) and self.cond not in e[3]:
                last = i
        return last

    def I(self, text, tok=None):
        ins = Ins(text)
        touch = ins.r | ins.w
        vm = lg = None
        i = self._find(self.vm, touch)
        if i >= 0:
            vm = self._after(self.vm, i); self._retire(self.vm, i)
        if self.sm & touch:
            lg = 0; self.sm = set()
            if self.lg: self._retire(self.lg, len(self.lg) - 1)
        else:
            j = self._find(self.lg, touch)
            if j >= 0:
                lg = self._after(self.lg, j); self._retire(self.lg, j)
        if vm is not None or lg is not None:
            self._wait(vm, lg)
        dist = 0
        req = 0
        for p in reversed(self.hist):
            n = need(p, ins)
            if n - dist > req: req = n - dist
            dist += p.states
            if dist >= 20: break
        while req > 0:
            k = min(req, 16)
            self._emit(Ins(f's_nop {k - 1}')); self.nnop += 1
            req -= k
        self._emit(ins)
        if ins.cls == 'vmem':
            self.vm.append((ins.w, tok, self.cond, set()))
        elif ins.cls == 'ds':
            self.lg.append((ins.w, tok, self.cond, set()))
        elif ins.cls == 'smem':
            self.sm |= ins.w
        return ins

    def waitvm(self, tok):
        last = -1
        for i, e in enumerate(self.vm):
            if e[1] == tok and self.cond not in e[3]: last = i
        if last >= 0:
            n = self._after(self.vm, last); self._retire(self.vm, last)
            self._wait(vm=n)

    def waitlg(self, tok):
        last = -1
        for i, e in enumerate(self.lg):
            if e[1] == tok and self.cond not in e[3]: last = i
        if last >= 0:
            n = self._after(self.lg, last); self._retire(self.lg, last)
            self._wait(lg=n)

    def vm0(self):
        self._wait(vm=0)
        if self.vm: self._retire(self.vm, len(self.vm) - 1)

    def lg0(self, force=False):
        if self.lg or self.sm or force:
            self._wait(lg=0)
            if self.lg: self._retire(self.lg, len(self.lg) - 1)
            self.sm = set()

    def barrier(self):
        self.lg0()
        self.I('s_barrier')

    def settle(self):
        dist = 0; req = 0
        for p in reversed(self.hist):
            n = 0
            if p.cls == 'mfma': n = {4: 8, 8: 12, 16: 20}[p.passes]
            elif p.cls == 'valu': n = 5 if iss(p.w) else (3 if p.dot else 2)
            elif p.cls == 'vmem' and p.wide: n = 2
            elif p.cls == 'salu' and (p.w & M0): n = 1
            req = max(req, n - dist)
            dist += p.states
            if dist >= 20: break
        req -= 1
        while req > 0:
            k = min(req, 16)
            self._emit(Ins(f's_nop {k - 1}')); self.nnop += 1
            req -= k

    def label(self, l):
        self.lines.append(l + ':')

    def run(self, ops):
        for o in ops:
            if callable(o): o()
            elif isinstance(o, tuple): self.I(o[0], tok=o[1])
            else: self.I(o)

    def text(self):
        return '\n'.join(self.lines) + '\n'


def weave(main, fill, per=2, start=0):
    out = []; k = 0
    for i, m in enumerate(main):
        out.append(m)
        if i >= start:
            for _ in range(per):
                if k < len(fill):
                    out.append(fill[k]); k += 1
    out.extend(fill[k:])
    return out
```

```python
import sys
from asm import Asm, weave

NAME = 'adaLN_cond__sliding_local_dilated__dense_activation_relu__prompt'
DEBUG = '--ts' in sys.argv
STOP = None
for a in sys.argv:
    if a.startswith('--stop='): STOP = a[7:]

GRAN, HELLO, GEN, FLAGS, STATS = 0x0, 0x3000, 0x4000, 0x10000, 0x20000
OB, YB, HB, TSB = 0x100000, 0x300000, 0x500000, 0xB00000
WS_SIZE = 0x1000000
K = 1024
RA, RB = 0, 64 * K
SLOT = [96 * K, 120 * K, 0, 24 * K, 48 * K, 72 * K, 96 * K, 120 * K]
HF = 64 * K
GS = 144 * K
MV = 148 * K
MR = 152 * K
UT = 60 * K
sX, sWQ, sWO, sW1, sW2, sC, sWM, sOUT, sWS = [f's[{i}:{i+3}]' for i in range(8, 44, 4)]
TAG = 's[44:45]'
sW, sXG, sRK, sRB64, sHQ, sGRP, sR, sXCC, sFAST = [f's{i}' for i in range(46, 55)]
sT0, sT1, sT2, sT3, sT4 = [f's{i}' for i in range(55, 60)]
mP, mC0, mC1 = 's[60:61]', 's[62:63]', 's[64:65]'
sCNT, sSO, sM0B = 's66', 's67', 's68'
SPIN = 20000
LOG2E = 1.4426950408889634

import struct
def f2u(x): return struct.unpack('<I', struct.pack('<f', x))[0]
def v(i, n=1): return f'v{i}' if n == 1 else f'v[{i}:{i+n-1}]'
def a_(i, n=1): return f'a{i}' if n == 1 else f'a[{i}:{i+n-1}]'

A = Asm()
I = A.I
nts = [0]
tsnames = []
def ts(name):
    if not DEBUG: return
    i = nts[0]; nts[0] += 1
    assert i < 15
    tsnames.append(name)
    A._emit(__import__('asm').Ins(f's_memtime s[{70+2*i}:{71+2*i}]'))

def smov(d, x):
    I(f's_mov_b32 {d}, {x:#x}' if isinstance(x, int) else f's_mov_b32 {d}, {x}')

vL, vL16 = 1, 2
vFO = 3

def prologue():
    I('s_cmp_ge_u32 s2, 256')
    I('s_cbranch_scc1 L_end')
    if DEBUG:
        A._emit(__import__('asm').Ins('s_memrealtime s[100:101]'))
    ts('start')
    order = [(28, 48), (32, 56), (40, 80), (8, 0), (12, 8), (16, 16), (20, 32), (24, 40), (36, 64)]
    for s, off in order:
        I(f's_load_dwordx2 s[{s}:{s+1}], s[0:1], {off}')
    I(f'v_lshrrev_b32 v4, 6, v0')
    I(f'v_and_b32 v{vL}, 63, v0')
    I(f'v_readfirstlane_b32 {sW}, v4')
    sizes = {8: 2097152, 12: 1572864, 16: 524288, 20: 1409024, 24: 1409024, 28: 1024, 32: 3145728, 36: 2097152, 40: WS_SIZE}
    for s, off in order:
        smov(f's{s+2}', sizes[s]); smov(f's{s+3}', 0x20000)
    I(f's_and_b32 {sXG}, s2, 7')
    I(f's_lshr_b32 {sRK}, s2, 3')
    I(f's_lshr_b32 {sT0}, {sRK}, 3')
    I(f's_lshl_b32 {sRB64}, {sXG}, 2')
    I(f's_add_u32 {sRB64}, {sRB64}, {sT0}')
    I(f's_and_b32 {sHQ}, {sRK}, 7')
    I(f's_lshr_b32 {sGRP}, {sRB64}, 1')
    I(f's_and_b32 {sR}, {sRK}, 15')
    I(f's_getreg_b32 {sXCC}, hwreg(HW_REG_XCC_ID)')
    I(f's_and_b32 {sXCC}, {sXCC}, 15')
    I(f'v_lshlrev_b32 v{vL16}, 4, v{vL}')

WM0, WMC, WMA = 16, 48, 56
def mod_issue():
    I(f's_lshr_b32 {sT0}, {sRK}, 2')
    I(f's_lshl_b32 {sT0}, {sT0}, 5')
    I(f's_lshl_b32 {sT1}, {sXG}, 2')
    I(f's_add_u32 {sT0}, {sT0}, {sT1}')
    I(f's_and_b32 {sT1}, {sRK}, 3')
    I(f's_add_u32 {sT4}, {sT0}, {sT1}')
    I(f'v_lshrrev_b32 v4, 2, v{vL}')
    I(f'v_mul_u32_u24 v4, {8*6144}, v4')
    I(f'v_and_b32 v5, 3, v{vL}')
    I(f'v_lshl_add_u32 v4, v5, 4, v4')
    I(f'v_lshlrev_b32 v5, 2, v0')
    I(f's_mul_i32 {sT0}, {sW}, {128*6144}')
    I(f's_lshl_b32 {sT1}, {sT4}, 6')
    I(f's_add_u32 {sT0}, {sT0}, {sT1}')
    I(f'buffer_load_dword v{WMC}, v5, {sC}, 0 offen')
    for j in range(8):
        I(f'buffer_load_dwordx4 {v(WM0+4*j,4)}, v4, {sWM}, {sT0} offen')
        if j < 7: I(f's_add_u32 {sT0}, {sT0}, 6144')

def mod_compute():
    c = WMC
    I(f'v_lshlrev_b32 v{c+4}, 16, v{c}')
    I(f'v_and_b32 v{c+5}, 0xffff0000, v{c}')
    for k in (4, 5): I(f'v_mul_f32 v{c+k+2}, {-LOG2E!r}, v{c+k}')
    for k in (4, 5): I(f'v_exp_f32 v{c+k+2}, v{c+k+2}')
    for k in (4, 5): I(f'v_add_f32 v{c+k+2}, 1.0, v{c+k+2}')
    for k in (4, 5): I(f'v_rcp_f32 v{c+k+2}, v{c+k+2}')
    for k in (4, 5): I(f'v_mul_f32 v{c+k}, v{c+k}, v{c+k+2}')
    I(f'v_cvt_pk_bf16_f32 v{c+4}, v{c+4}, v{c+5}')
    smov(sT0, 0x05040100); smov(sT1, 0x07060302)
    for j in range(4):
        I(f'v_mov_b32_dpp v{c+j}, v{c+4} quad_perm:[{j},{j},{j},{j}] row_mask:0xf bank_mask:0xf')
    for i in range(8): I(f'v_mov_b32 v{WMA+i}, 0')
    for j in range(4):
        r0, r1 = WM0 + 8*j, WM0 + 8*j + 4
        for d in range(4):
            I(f'v_perm_b32 v{c+4+(d&1)*2}, v{r1+d}, v{r0+d}, {sT0}')
            I(f'v_perm_b32 v{c+5+(d&1)*2}, v{r1+d}, v{r0+d}, {sT1}')
            I(f'v_dot2c_f32_bf16 v{WMA+2*d}, v{c+4+(d&1)*2}, v{c+j}')
            I(f'v_dot2c_f32_bf16 v{WMA+2*d+1}, v{c+5+(d&1)*2}, v{c+j}')
    m = WMA
    for i in range(4): I(f'v_permlane32_swap_b32 v{m+i}, v{m+i+4}')
    for i in range(4): I(f'v_add_f32 v{m+i}, v{m+i}, v{m+i+4}')
    for i in range(2): I(f'v_permlane16_swap_b32 v{m+i}, v{m+i+2}')
    for i in range(2): I(f'v_add_f32 v{m+i}, v{m+i}, v{m+i+2}')
    I(f'v_and_b32 v4, 3, v{vL}')
    I(f'v_lshlrev_b32 v4, 5, v4')
    for rot in (8, 4):
        for i in range(2): I(f'v_add_f32_dpp v{m+i}, v{m+i}, v{m+i} row_ror:{rot} row_mask:0xf bank_mask:0xf')
    I(f'v_lshrrev_b32 v5, 4, v{vL}')
    I(f'v_lshl_add_u32 v4, v5, 3, v4')
    I(f's_lshl_b32 {sT0}, {sW}, 7')
    I(f's_add_u32 {sT0}, {sT0}, {MR}')
    I(f'v_add_u32 v4, {sT0}, v4')
    I(f'ds_write_b64 v4, {v(m,2)}')
    A.barrier()
    I(f'v_and_b32 v4, 7, v{vL}')
    I(f'v_lshlrev_b32 v4, 4, v4')
    I(f'v_add_u32 v5, {MR}, v4')
    for w in range(4): I(f'ds_read_b128 {v(WM0+4*w,4)}, v5 offset:{128*w}')
    I(f's_lshr_b32 {sT0}, {sT4}, 4')
    I(f's_lshr_b32 {sT1}, 0x12, {sT0}')
    I(f's_and_b32 {sT1}, {sT1}, 1')
    I(f's_mul_i32 {sT1}, {sT1}, {f2u(1.0):#x}')
    I(f's_lshl_b32 {sT0}, {sT4}, 7')
    for i in (0, 2): I(f'v_pk_add_f32 {v(WM0+i,2)}, {v(WM0+i,2)}, {v(WM0+4+i,2)}')
    for i in (0, 2): I(f'v_pk_add_f32 {v(WM0+8+i,2)}, {v(WM0+8+i,2)}, {v(WM0+12+i,2)}')
    for i in (0, 2): I(f'v_pk_add_f32 {v(WM0+i,2)}, {v(WM0+i,2)}, {v(WM0+8+i,2)}')
    I(f'v_cvt_pk_bf16_f32 v{WM0+4}, v{WM0}, v{WM0+1}')
    I(f'v_cvt_pk_bf16_f32 v{WM0+5}, v{WM0+2}, v{WM0+3}')
    for i in range(2):
        I(f'v_lshlrev_b32 v{WM0+2*i}, 16, v{WM0+4+i}')
        I(f'v_and_b32 v{WM0+2*i+1}, 0xffff0000, v{WM0+4+i}')
    for i in range(4): I(f'v_add_f32 v{WM0+i}, {sT1}, v{WM0+i}')
    I(f'v_cvt_pk_bf16_f32 v{WM0+4}, v{WM0}, v{WM0+1}')
    I(f'v_cvt_pk_bf16_f32 v{WM0+5}, v{WM0+2}, v{WM0+3}')
    I(f'v_mov_b32 v{WM0+6}, s44')
    I(f'v_mov_b32 v{WM0+7}, s45')
    I(f'v_cmp_gt_u32 vcc, 8, v0')
    I(f'v_mov_b32 v5, {WS_SIZE:#x}')
    I(f'v_cndmask_b32 v4, v5, v4, vcc')
    I(f'buffer_store_dwordx4 {v(WM0+4,4)}, v4, {sWS}, {sT0} offen sc1')

XB = 96
def xr(rg, c): return XB + c * 40 + rg * 8
vXO = 6
def x_issue():
    I(f's_lshl_b32 {sT0}, {sRB64}, 6')
    I(f's_mul_i32 {sT1}, {sW}, 20')
    I(f's_add_u32 {sT0}, {sT0}, {sT1}')
    I(f's_sub_u32 {sT0}, {sT0}, 16')
    I(f'v_lshrrev_b32 v4, 4, v{vL}')
    I(f'v_add_u32 v4, {sT0}, v4')
    I(f'v_and_b32 v5, 0xf0, v{vL16}')
    for rg in range(5):
        I(f'v_add_u32 v{vXO+rg}, {4*rg}, v4')
        I(f'v_max_i32 v{vXO+rg}, 0, v{vXO+rg}')
        I(f'v_lshl_add_u32 v{vXO+rg}, v{vXO+rg}, 10, v5')
        for c in range(4):
            I(f'buffer_load_dwordx4 {v(xr(rg,c)+4,4)}, v{vXO+rg}, {sX}, 0 offen offset:{256*c}')

XS = 64
def x_ops():
    st = []
    for rg in range(5):
        o = []
        s = XS + 2 * rg
        for c in range(4):
            b = xr(rg, c)
            for d in range(4):
                o.append(f'v_lshlrev_b32 v{b+2*d}, 16, v{b+4+d}')
                o.append(f'v_and_b32 v{b+2*d+1}, 0xffff0000, v{b+4+d}')
            for d in range(4):
                if c == 0 and d == 0: continue
                src = v(b, 2) if (c == 0 and d == 1) else v(s, 2)
                o.append(f'v_pk_add_f32 {v(s,2)}, {src}, {v(b+2*d,2)}')
        o.append(f'v_add_f32 v{s}, v{s}, v{s+1}')
        st.append(o)
    def red():
        o = []
        for rot in (8, 4, 2, 1):
            for rg in range(5):
                s = XS + 2 * rg
                o.append(f'v_add_f32_dpp v{s}, v{s}, v{s} row_ror:{rot} row_mask:0xf bank_mask:0xf')
        return o
    o = red()
    for rg in range(5): o.append(f'v_mul_f32 v{XS+2*rg}, {-1.0/512!r}, v{XS+2*rg}')
    st.append(o)
    for rg in range(5):
        o = []
        s = XS + 2 * rg
        for c in range(4):
            b = xr(rg, c)
            for d in range(4):
                o.append(f'v_pk_add_f32 {v(b+2*d,2)}, {v(b+2*d,2)}, {v(s,2)} op_sel_hi:[1,0]')
        for c in range(4):
            b = xr(rg, c)
            for d in range(4):
                if c == 0 and d == 0: o.append(f'v_pk_mul_f32 {v(s,2)}, {v(b,2)}, {v(b,2)}')
                else: o.append(f'v_pk_fma_f32 {v(s,2)}, {v(b+2*d,2)}, {v(b+2*d,2)}, {v(s,2)}')
        o.append(f'v_add_f32 v{s}, v{s}, v{s+1}')
        st.append(o)
    o = red()
    o.append(f'v_mov_b32 v4, {f2u(1e-5):#x}')
    for rg in range(5): o.append(f'v_fmamk_f32 v{XS+2*rg}, v{XS+2*rg}, {f2u(1.0/512):#x}, v4')
    for rg in range(5): o.append(f'v_rsq_f32 v{XS+2*rg}, v{XS+2*rg}')
    st.append(o)
    o = []
    for rg in range(5):
        s = XS + 2 * rg
        for c in range(4):
            b = xr(rg, c)
            for d in range(4):
                o.append(f'v_pk_mul_f32 {v(b+2*d,2)}, {v(b+2*d,2)}, {v(s,2)} op_sel_hi:[1,0]')
    st.append(o)
    return st

vWE, vWOd, vTR = 11, 12, 13
def swz_voff(dst, tmp, stride, colbase_sgpr, odd):
    I(f'v_lshrrev_b32 v{tmp}, 3, v{vL}')
    I(f'v_mul_u32_u24 v{dst}, {stride}, v{tmp}')
    I(f'v_and_b32 v{tmp}, 16, v{vL}')
    I(f'v_lshlrev_b32 v{tmp}, 1, v{tmp}')
    I(f'v_xor_b32 v{tmp}, v{tmp}, v{vL16}')
    I(f'v_and_b32 v{tmp}, 0x70, v{tmp}')
    I(f'v_add3_u32 v{dst}, v{dst}, v{tmp}, {colbase_sgpr}')

def wq_setup():
    I(f's_lshl_b32 {sT0}, {sHQ}, 7')
    swz_voff(vWE, 4, 3072, sT0, 0)
    I(f'v_xor_b32 v{vWOd}, 64, v{vWE}')
    I(f'v_add_u32 v{vWOd}, {8*3072}, v{vWOd}')
    I(f's_mul_i32 {sSO}, {sW}, {16*3072}')
    I(f's_mul_i32 {sM0B}, {sW}, {2*3072}')

def wq_issue(slab):
    o = []
    for b in range(2):
        o.append(f's_add_u32 m0, {sM0B}, {SLOT[slab] + b*3072}')
        if b == 0: o.append(f's_add_u32 {sT2}, {sSO}, {slab*64*3072}')
        for p in range(3):
            o.append((f'buffer_load_dwordx4 v{vWOd if b else vWE}, {sWQ}, {sT2} offen offset:{1024*p} lds', f'slab{slab}'))
    return o

def tr_base(dst, piece_sgpr_or_int, gstride):
    I(f'v_lshrrev_b32 v4, 4, v{vL}')
    I(f'v_mul_u32_u24 v{dst}, {gstride}, v4')
    I(f'v_bfe_u32 v4, v{vL}, 2, 2')
    I(f'v_lshl_add_u32 v{dst}, v4, 7, v{dst}')
    I(f'v_bfe_u32 v4, v{vL}, 3, 2')
    I(f'v_xor_b32 v4, {piece_sgpr_or_int}, v4')
    I(f'v_lshl_add_u32 v{dst}, v4, 5, v{dst}')
    I(f'v_and_b32 v4, 3, v{vL}')
    I(f'v_lshl_add_u32 v{dst}, v4, 3, v{dst}')

def wq_trsetup():
    tr_base(vTR, sW, 3072)
    I(f'v_add_u32 v{vTR+1}, {48*K}, v{vTR}')
    I(f'v_add_u32 v{vTR+2}, {96*K}, v{vTR}')

def wq_read(slab):
    o = []
    bi, rem = divmod(SLOT[slab], 48 * K)
    for ksl in range(2):
        ks = 2 * slab + ksl
        for p in range(3):
            for hr in range(2):
                o.append(f'ds_read_b64_tr_b16 {a_(12*ks+4*p+2*hr,2)}, v{vTR+bi} offset:{rem + ksl*12288 + p*1024 + hr*512}')
    return o

vWoE, vWoO = 11, 12
def wo_setup():
    I(f's_lshl_b32 {sT0}, {sHQ}, 7')
    swz_voff(vWoE, 4, 1024, sT0, 0)
    I(f'v_xor_b32 v{vWoO}, 64, v{vWoE}')
    I(f's_lshl_b32 {sSO}, {sW}, 14')
    I(f's_lshl_b32 {sM0B}, {sW}, 11')

def wo_issue(grp):
    o = []
    for b in range(2):
        o.append(f's_add_u32 m0, {sM0B}, {RA + grp*8192 + b*1024}')
        o.append(f's_add_u32 {sT2}, {sSO}, {grp*65536 + b*8192}')
        o.append((f'buffer_load_dwordx4 v{vWoO if b else vWoE}, {sWO}, {sT2} offen lds', 'wo'))
    return o

def poll(phase, mask):
    L, D = A.uniq('poll'), A.uniq('pd')
    smov(sCNT, SPIN)
    A.settle()
    A.label(L)
    I(f'buffer_load_dwordx2 v[4:5], v{vFO}, {sWS}, 0 offen offset:{phase*512} sc1')
    A.vm0()
    I(f'v_cmp_ne_u64 vcc, {TAG}, v[4:5]')
    I(f's_and_b64 vcc, vcc, {mask}')
    I(f's_cbranch_scc0 {D}')
    I(f's_sub_u32 {sCNT}, {sCNT}, 1')
    I(f's_cbranch_scc0 {L}')
    A.label(D)

def publish(stores, phase):
    S, J = A.uniq('slow'), A.uniq('join')
    I(f's_lshl_b32 {sT0}, {sR}, 2')
    I(f's_add_u32 {sT0}, {sT0}, {sW}')
    I(f'v_cmp_eq_u32 vcc, {sT0}, v{vL}')
    I(f'v_mov_b32 v4, {WS_SIZE:#x}')
    I(f'v_cndmask_b32 v4, v4, v{vFO}, vcc')
    I(f'v_mov_b32 v14, s44')
    I(f'v_mov_b32 v15, s45')
    I(f's_cmp_eq_u32 {sFAST}, 0')
    A.settle()
    I(f's_cbranch_scc1 {S}')
    for bits in ('', ' sc1'):
        for s in stores:
            if callable(s): s(bits)
            else: I(s + bits)
        A.vm0()
        I(f'buffer_store_dwordx2 v[14:15], v4, {sWS}, 0 offen offset:{phase*512}{bits}')
        if bits == '':
            I(f's_branch {J}')
            A.label(S)
            A.vm.pop()
    A.label(J)

def gather():
    L, D = A.uniq('gat'), A.uniq('gd')
    g = 16
    I(f'v_lshlrev_b32 v4, 4, v0')
    I(f'v_and_b32 v5, 0xf0, v{vL16}')
    I(f's_lshl_b32 {sT0}, {sGRP}, 8')
    I(f's_add_u32 {sT0}, {sT0}, {HELLO}')
    smov(sT1, 4096); smov(sT2, 8192)
    smov(sCNT, SPIN)
    A.settle()
    A.label(L)
    I(f'buffer_load_dwordx4 {v(g,4)}, v4, {sWS}, 0 offen sc1')
    I(f'buffer_load_dwordx4 {v(g+4,4)}, v4, {sWS}, {sT1} offen sc1')
    I(f'buffer_load_dwordx4 {v(g+8,4)}, v4, {sWS}, {sT2} offen sc1')
    I(f'buffer_load_dwordx4 {v(g+12,4)}, v5, {sWS}, {sT0} offen sc1')
    A.vm0()
    I(f'v_cmp_ne_u64 vcc, {TAG}, {v(g+2,2)}')
    I(f'v_cmp_ne_u64 {mP}, {TAG}, {v(g+6,2)}')
    I(f'v_cmp_ne_u64 {mC0}, {TAG}, {v(g+10,2)}')
    I(f'v_cmp_ne_u64 {mC1}, {TAG}, {v(g+14,2)}')
    I(f's_or_b64 vcc, vcc, {mP}')
    I(f's_or_b64 {mC0}, {mC0}, {mC1}')
    I(f's_or_b64 vcc, vcc, {mC0}')
    I(f's_cbranch_scc0 {D}')
    I(f's_sub_u32 {sCNT}, {sCNT}, 1')
    I(f's_cbranch_scc0 {L}')
    A.label(D)
    I(f'v_cmp_ne_u32 vcc, {sXCC}, v{g+12}')
    I(f'v_lshrrev_b32 v4, 5, v0')
    I(f'v_lshlrev_b32 v4, 9, v4')
    I(f's_cmp_eq_u64 vcc, 0')
    I(f's_cselect_b32 {sFAST}, 1, 0')
    I(f'v_and_b32 v5, 1, v0')
    I(f'v_lshl_add_u32 v4, v5, 8, v4')
    I(f'v_bfe_u32 v5, v0, 1, 4')
    I(f'v_lshl_add_u32 v4, v5, 4, v4')
    I(f'v_add_u32 v4, {GS}, v4')
    I(f'v_and_b32 v{g+3}, 0xffff0000, v{g+1}')
    I(f'v_lshlrev_b32 v{g+2}, 16, v{g+1}')
    I(f'v_and_b32 v{g+1}, 0xffff0000, v{g}')
    I(f'v_lshlrev_b32 v{g}, 16, v{g}')
    I(f'ds_write_b128 v4, {v(g,4)}')
    I(f'v_lshlrev_b32 v5, 3, v0')
    I(f'v_add_u32 v5, {MV}, v5')
    I(f'ds_write_b64 v5, {v(g+4,2)}')
    I(f'ds_write_b64 v5, {v(g+8,2)} offset:2048')

vGSA = 11
GSR = 76
def h_setup():
    I(f'v_bfe_u32 v4, v{vL}, 2, 2')
    I(f'v_mul_u32_u24 v5, {5*1024}, v4')
    I(f'v_and_b32 v4, 1, v4')
    I(f'v_mul_u32_u24 v4, 12, v4')
    I(f'v_and_b32 v12, 3, v{vL}')
    I(f'v_xor_b32 v4, v4, v12')
    I(f'v_lshl_add_u32 v5, v12, 8, v5')
    I(f'v_add_u32 v5, {HF}, v5')
    I(f's_mul_i32 {sT0}, {sW}, 20')
    I(f'v_lshrrev_b32 v12, 4, v{vL}')
    I(f'v_add_u32 v12, {sT0}, v12')
    for rg in range(5):
        d = vXO + rg
        I(f'v_add_u32 v{d}, {4*rg}, v12')
        I(f'v_lshrrev_b32 v13, 4, v{d}')
        I(f'v_and_b32 v{d}, 15, v{d}')
        I(f'v_xor_b32 v{d}, v{d}, v4')
        I(f'v_lshl_add_u32 v{d}, v{d}, 4, v5')
        I(f'v_lshl_add_u32 v{d}, v13, 10, v{d}')
    I(f'v_and_b32 v{vGSA}, 0xf0, v{vL16}')
    I(f'v_add_u32 v{vGSA}, {GS}, v{vGSA}')

def h_gsread(c):
    return [f'ds_read_b128 {v(GSR+8*sec+4*half,4)}, v{vGSA} offset:{sec*2048+c*512+half*256}' for sec in range(2) for half in range(2)]

def h_conv(c, pk=True):
    o = []
    for rg in range(5):
        b = xr(rg, c)
        for d in range(4):
            if pk:
                o.append(f'v_pk_fma_f32 {v(b+2*d,2)}, {v(b+2*d,2)}, {v(GSR+8+2*d,2)}, {v(GSR+2*d,2)}')
            else:
                for e in range(2): o.append(f'v_fma_f32 v{b+2*d+e}, v{b+2*d+e}, v{GSR+8+2*d+e}, v{GSR+2*d+e}')
        for d in range(4):
            o.append(f'v_cvt_pk_bf16_f32 v{b+d}, v{b+2*d}, v{b+2*d+1}')
        o.append(f'ds_write_b128 v{vXO+rg}, {v(b,4)} offset:{c*20480}')
    return o

ACC = 16
def accQ(T): return ACC + 4 * (T - 1)
def accK(T): return ACC + 16 + 4 * T
def accV(T): return ACC + 36 + 4 * T
HFR = 96
vHR = 12
def qkv_setup():
    I(f'v_lshrrev_b32 v4, 4, v{vL}')
    I(f'v_xor_b32 v5, v4, v{vL}')
    I(f'v_and_b32 v5, 15, v5')
    I(f'v_lshlrev_b32 v5, 4, v5')
    I(f'v_lshl_add_u32 v5, v4, 8, v5')
    I(f'v_add_u32 v{vHR}, {HF}, v5')
    I(f'v_xor_b32 v{vHR+1}, {12*16}, v{vHR}')
    I(f'v_add_u32 v{vHR+2}, {40*K}, v{vHR}')
    I(f'v_add_u32 v{vHR+3}, {40*K}, v{vHR+1}')

def h_read(ks):
    return [f'ds_read_b128 {v(HFR+20*(ks&1)+4*T,4)}, v{vHR+2*(ks>>3)+(ks&1)} offset:{((ks&7)*5+T)*1024}' for T in range(5)]

def qkv_mfma(ks):
    o = []
    for T in range(5):
        h = v(HFR + 20 * (ks & 1) + 4 * T, 4)
        def m(d, x, y): o.append(f'v_mfma_f32_16x16x32_bf16 {v(d,4)}, {x}, {y}, ' + ('0' if ks == 0 else v(d, 4)))
        m(accK(T), a_(12*ks+4, 4), h)
        m(accV(T), h, a_(12*ks+8, 4))
        if T: m(accQ(T), a_(12*ks, 4), h)
    return o

AUA, AGA, AG2, AGB = 192, 224, 232, 248
def modvec_read():
    o = []
    o.append(f's_lshl_b32 {sT0}, {sHQ}, 7')
    o.append(f's_add_u32 {sT0}, {sT0}, {MV}')
    o.append(f'v_lshrrev_b32 v4, 4, v{vL}')
    o.append(f'v_lshl_add_u32 v4, v4, 3, {sT0}')
    for j in range(4):
        o.append(f'ds_read_b64 {a_(AGA+2*j,2)}, v4 offset:{32*j}')
        o.append(f'ds_read_b64 {a_(AG2+2*j,2)}, v4 offset:{2048+32*j}')
    o.append(f's_and_b32 {sT1}, {sW}, 1')
    o.append(f's_lshl_b32 {sT1}, {sT1}, 6')
    o.append(f's_add_u32 {sT0}, {sT0}, {sT1}')
    o.append(f'v_lshrrev_b32 v5, 5, v{vL}')
    o.append(f'v_lshl_add_u32 v4, v5, 3, {sT0}')
    for q in range(4):
        o.append(f'ds_read_b64 {a_(AGB+2*q,2)}, v4 offset:{3072+16*q}')
    o.append(f's_lshl_b32 {sT0}, {sW}, 8')
    o.append(f's_add_u32 {sT0}, {sT0}, {MV+1024}')
    o.append(f'v_lshl_add_u32 v5, v5, 3, {sT0}')
    o.append(f'v_and_b32 v4, 4, v{vL}')
    o.append(f'v_lshl_add_u32 v4, v4, 8, v5')
    for i in range(8):
        for hr in range(2):
            o.append(f'ds_read_b64 {a_(AUA+4*i+2*hr,2)}, v4 offset:{(i>>1)*64+(i&1)*16+hr*32}')
    return o

def attention():
    QB, KB, VB = 96, 104, 114
    SC, SP = 124, 140
    LG, MX = 156, 164
    PB, OA, SM = 168, 184, 200
    MK, ONE, BIAS = 216, 220, 224
    OS = 228
    I(f'v_and_b32 v4, 1, v{vL}')
    I(f'v_cmp_eq_u32 {mP}, 1, v4')
    I(f'v_lshrrev_b32 v5, 4, v{vL}')
    I(f'v_lshl_add_u32 v5, v5, 2, v4')
    I(f'v_and_b32 v6, 15, v{vL}')
    I(f'v_cmp_le_u32 {mC0}, v5, v6')
    I(f'v_add_u32 v5, 2, v5')
    I(f'v_cmp_le_u32 {mC1}, v5, v6')
    I(f'v_mov_b32 v4, 0xffff')
    I(f'v_mov_b32 v5, 0xffff0000')
    I(f'v_cndmask_b32 v4, v4, v5, {mP}')
    I(f'v_cndmask_b32 v{MK+0}, v4, 0, {mC0}')
    I(f'v_cndmask_b32 v{MK+1}, v4, 0, {mC1}')
    I(f'v_cndmask_b32 v{MK+2}, 0, v4, {mC0}')
    I(f'v_cndmask_b32 v{MK+3}, 0, v4, {mC1}')
    for i in range(4): I(f'v_mov_b32 v{ONE+i}, 0x3f803f80')
    I(f's_cmp_eq_u32 {sRB64}, 0')
    I(f's_cselect_b32 {sT0}, {f2u(-4e9):#x}, 0')
    for i in range(4): I(f'v_mov_b32 v{BIAS+i}, {sT0}')
    def cvt(d, s):
        I(f'v_cvt_pk_bf16_f32 v{d}, v{s}, v{s+1}')
        I(f'v_cvt_pk_bf16_f32 v{d+1}, v{s+2}, v{s+3}')
    cvt(KB, accK(0))
    for T in range(1, 5):
        cvt(KB + 2*T, accK(T)); cvt(QB + 2*(T-1), accQ(T))
    for T in range(1, 5):
        t = T - 1
        I(f'v_mfma_f32_16x16x16_bf16 {v(SC+4*t,4)}, {v(KB+2*T,2)}, {v(QB+2*t,2)}, 0')
        if T == 1: cvt(VB, accV(0))
        I(f'v_mfma_f32_16x16x16_bf16 {v(SP+4*t,4)}, {v(KB+2*t,2)}, {v(QB+2*t,2)}, ' + (v(BIAS, 4) if T == 1 else '0'))
        cvt(VB + 2*T, accV(T))
    for t in range(4):
        for e in range(2):
            I(f'v_cndmask_b32 v{SC+4*t+2*e}, v{SC+4*t+2*e}, v{SC+4*t+2*e+1}, {mP}')
            I(f'v_cndmask_b32 v{SP+4*t+2*e}, v{SP+4*t+2*e}, v{SP+4*t+2*e+1}, {mP}')
            I(f'v_cndmask_b32 v{LG+2*t+e}, v{SP+4*t+2*e}, v{SC+4*t+2*e}, {mC1 if e else mC0}')
        I(f'v_max_f32 v{MX+t}, v{LG+2*t}, v{LG+2*t+1}')
    I(f'v_permlane16_swap_b32 v{MX}, v{MX+1}')
    I(f'v_permlane16_swap_b32 v{MX+2}, v{MX+3}')
    I(f'v_max_f32 v{MX}, v{MX}, v{MX+1}')
    I(f'v_max_f32 v{MX+2}, v{MX+2}, v{MX+3}')
    I(f'v_permlane32_swap_b32 v{MX}, v{MX+2}')
    I(f'v_max_f32 v{MX}, v{MX}, v{MX+2}')
    cs = 0.25 * LOG2E
    smov(sT0, f2u(cs))
    I(f'v_mul_f32 v{MX}, {f2u(-cs):#x}, v{MX}')
    I(f'v_mov_b32 v{MX+2}, v{MX}')
    I(f'v_permlane32_swap_b32 v{MX}, v{MX+2}')
    I(f'v_mov_b32 v{MX+1}, v{MX}')
    I(f'v_mov_b32 v{MX+3}, v{MX+2}')
    I(f'v_permlane16_swap_b32 v{MX}, v{MX+1}')
    I(f'v_permlane16_swap_b32 v{MX+2}, v{MX+3}')
    for t in range(4):
        for e in range(2): I(f'v_fma_f32 v{LG+2*t+e}, v{LG+2*t+e}, {sT0}, v{MX+t}')
    for t in range(4):
        for e in range(2): I(f'v_exp_f32 v{LG+2*t+e}, v{LG+2*t+e}')
    for t in range(4):
        for e in range(2): I(f'v_cvt_pk_bf16_f32 v{LG+2*t+e}, v{LG+2*t+e}, v{LG+2*t+e}')
        for i in range(4): I(f'v_and_b32 v{PB+4*t+i}, v{MK+i}, v{LG+2*t+(i&1)}')
        if t:
            u = t - 1
            I(f'v_mfma_f32_16x16x32_bf16 {v(SM+4*u,4)}, {v(ONE,4)}, {v(PB+4*u,4)}, 0')
            I(f'v_mfma_f32_16x16x32_bf16 {v(OA+4*u,4)}, {v(VB+2*u,4)}, {v(PB+4*u,4)}, 0')
    u = 3
    I(f'v_mfma_f32_16x16x32_bf16 {v(SM+4*u,4)}, {v(ONE,4)}, {v(PB+4*u,4)}, 0')
    I(f'v_mfma_f32_16x16x32_bf16 {v(OA+4*u,4)}, {v(VB+2*u,4)}, {v(PB+4*u,4)}, 0')
    I(f's_lshl_b32 {sT0}, {sRB64}, 16')
    I(f's_lshl_b32 {sT1}, {sHQ}, 11')
    I(f's_add_u32 {sT0}, {sT0}, {sT1}')
    I(f's_lshl_b32 {sT1}, {sW}, 9')
    I(f's_add_u32 {sT0}, {sT0}, {sT1}')
    I(f's_add_u32 {sT3}, {sT0}, {OB}')
    I(f's_add_u32 {sT4}, {sT3}, {2*16384}')
    I(f'v_bfe_u32 v5, v{vL}, 4, 1')
    I(f'v_lshlrev_b32 v5, 14, v5')
    I(f'v_lshrrev_b32 v6, 5, v{vL}')
    I(f'v_lshl_add_u32 v5, v6, 8, v5')
    I(f'v_and_b32 v6, 0xf0, v{vL16}')
    I(f'v_add_u32 v6, v5, v6')
    for t in range(4): I(f'v_rcp_f32 v{SM+4*t}, v{SM+4*t}')
    for t in range(4):
        for i in range(4): I(f'v_mul_f32 v{OA+4*t+i}, v{OA+4*t+i}, v{SM+4*t}')
        cvt(OS + 2*t, OA + 4*t)
    for pr in range(2):
        for i in range(2): I(f'v_permlane16_swap_b32 v{OS+4*pr+i}, v{OS+4*pr+2+i}')
    return [f'buffer_store_dwordx4 {v(OS,4)}, v6, {sWS}, {sT3} offen',
            f'buffer_store_dwordx4 {v(OS+4,4)}, v6, {sWS}, {sT4} offen']

vW1 = 11
def w1_setup():
    I(f'v_lshrrev_b32 v4, 2, v{vL}')
    I(f'v_mul_u32_u24 v{vW1}, 2752, v4')
    I(f'v_and_b32 v4, 0x30, v{vL16}')
    I(f's_mul_i32 {sT0}, {sR}, 192')
    I(f'v_add3_u32 v{vW1}, v{vW1}, v4, {sT0}')
    I(f's_mul_i32 {sSO}, {sW}, {16*2752}')
    I(f's_lshl_b32 {sM0B}, {sW}, 10')

def w1_issue(i):
    o = [f's_add_u32 {sT2}, {sSO}, {i*64*2752}']
    for t in range(3):
        o.append(f's_add_u32 m0, {sM0B}, {RB + t*32768 + i*4096 - 64*t}')
        o.append((f'buffer_load_dwordx4 v{vW1}, {sW1}, {sT2} offen offset:{64*t} lds', 'w1'))
    return o

X1 = 16
CG = 32
CAC = 64
CO = 96
CW = 160
def c_pre():
    I(f's_lshl_b32 {sT0}, {sRB64}, 16')
    I(f's_lshl_b32 {sT1}, {sW}, 14')
    I(f's_add_u32 {sT0}, {sT0}, {sT1}')
    I(f's_lshl_b32 {sT1}, {sHQ}, 7')
    I(f's_add_u32 {sT0}, {sT0}, {sT1}')
    I(f'v_and_b32 v4, 15, v{vL}')
    I(f'v_lshlrev_b32 v4, 10, v4')
    I(f'v_lshrrev_b32 v5, 4, v{vL}')
    I(f'v_lshl_add_u32 v4, v5, 3, v4')
    for j in range(4):
        I(f'buffer_load_dwordx2 {v(X1+4*j+2,2)}, v4, {sX}, {sT0} offen offset:{32*j}')
    for k in range(16):
        I(f'v_accvgpr_read_b32 v4, a{AGA+k}')
        I(f'v_lshlrev_b32 v{CG+2*k}, 16, v4')
        I(f'v_and_b32 v{CG+2*k+1}, 0xffff0000, v4')
    for j in range(4): tr_base(6 + j, j, 1024)
    for j in range(4):
        b = X1 + 4*j
        I(f'v_lshlrev_b32 v{b}, 16, v{b+2}')
        I(f'v_and_b32 v{b+1}, 0xffff0000, v{b+2}')
        I(f'v_lshlrev_b32 v{b+2}, 16, v{b+3}')
        I(f'v_and_b32 v{b+3}, 0xffff0000, v{b+3}')

def c_main():
    I(f's_lshl_b32 {sT0}, {sRB64}, 16')
    I(f's_lshl_b32 {sT1}, {sW}, 14')
    I(f's_add_u32 {sT0}, {sT0}, {sT1}')
    I(f's_add_u32 {sT0}, {sT0}, {OB}')
    for ks in range(16):
        if ks and ks % 4 == 0: I(f's_add_u32 {sT0}, {sT0}, 4096')
        I(f'buffer_load_dwordx4 {v(CO+4*ks,4)}, v{vL16}, {sWS}, {sT0} offen offset:{(ks&3)*1024} sc1')
    def rd(ks):
        return [f'ds_read_b64_tr_b16 {v(CW+16*(ks&1)+4*j+2*hr,2)}, v{6+j} offset:{RA+ks*4096+hr*512}' for j in range(4) for hr in range(2)]
    A.run(rd(0))
    for ks in range(16):
        mm = [f'v_mfma_f32_16x16x32_bf16 {v(CAC+4*j,4)}, {v(CW+16*(ks&1)+4*j,4)}, {v(CO+4*ks,4)}, ' + ('0' if ks == 0 else v(CAC+4*j,4)) for j in range(4)]
        A.run(weave(mm, rd(ks+1) if ks < 15 else []))

def c_epi():
    YT, YP = 96, 112
    I(f's_lshl_b32 {sT0}, {sRB64}, 16')
    I(f's_lshr_b32 {sT1}, {sW}, 1')
    I(f's_lshl_b32 {sT1}, {sT1}, 15')
    I(f's_add_u32 {sT0}, {sT0}, {sT1}')
    I(f's_lshl_b32 {sT1}, {sHQ}, 12')
    I(f's_add_u32 {sT0}, {sT0}, {sT1}')
    I(f's_and_b32 {sT1}, {sW}, 1')
    I(f's_lshl_b32 {sT1}, {sT1}, 8')
    I(f's_add_u32 {sT0}, {sT0}, {sT1}')
    I(f's_add_u32 {sT3}, {sT0}, {YB}')
    I(f'v_lshrrev_b32 v5, 4, v{vL}')
    I(f'v_and_b32 v6, 0xf0, v{vL16}')
    I(f'v_lshl_add_u32 v6, v5, 9, v6')
    I(f's_lshl_b32 {sT0}, {sRB64}, 12')
    I(f's_lshl_b32 {sT1}, {sW}, 10')
    I(f's_add_u32 {sT0}, {sT0}, {sT1}')
    I(f's_lshl_b32 {sT1}, {sHQ}, 3')
    I(f's_add_u32 {sT0}, {sT0}, {sT1}')
    I(f's_add_u32 {sT4}, {sT0}, {STATS}')
    I(f'v_and_b32 v7, 15, v{vL}')
    I(f'v_lshlrev_b32 v7, 6, v7')
    I(f'v_and_b32 v5, 1, v5')
    I(f'v_lshl_add_u32 v7, v5, 2, v7')
    for k in range(8): I(f'v_pk_fma_f32 {v(X1+2*k,2)}, {v(CAC+2*k,2)}, {v(CG+2*k,2)}, {v(X1+2*k,2)}')
    for k in range(8): I(f'v_pk_mul_f32 {v(YT+2*k,2)}, {v(X1+2*k,2)}, {v(CG+16+2*k,2)}')
    for k in range(8): I(f'v_cvt_pk_bf16_f32 v{YP+k}, v{YT+2*k}, v{YT+2*k+1}')
    I(f'v_pk_add_f32 v[8:9], {v(X1,2)}, {v(X1+2,2)}')
    I(f'v_pk_mul_f32 v[10:11], {v(X1,2)}, {v(X1,2)}')
    for k in range(1, 8):
        if k > 1: I(f'v_pk_add_f32 v[8:9], v[8:9], {v(X1+2*k,2)}')
        I(f'v_pk_fma_f32 v[10:11], {v(X1+2*k,2)}, {v(X1+2*k,2)}, v[10:11]')
    I(f'v_add_f32 v8, v8, v9')
    I(f'v_add_f32 v10, v10, v11')
    I(f'v_permlane16_swap_b32 v8, v10')
    I(f'v_add_f32 v8, v8, v10')
    I(f'v_mov_b32 v10, v8')
    I(f'v_permlane32_swap_b32 v8, v10')
    I(f'v_add_f32 v8, v8, v10')
    return [f'buffer_store_dwordx4 {v(YP,4)}, v6, {sWS}, {sT3} offen',
            f'buffer_store_dwordx4 {v(YP+4,4)}, v6, {sWS}, {sT3} offen offset:2048',
            f'buffer_store_dword v8, v7, {sWS}, {sT4} offen']

vW2, vW2R = 12, 13
W2R = [(0, 15), (15, 15), (30, 14)]
def w2_setup():
    I(f'v_lshrrev_b32 v4, 3, v{vL}')
    I(f'v_lshlrev_b32 v{vW2}, 10, v4')
    I(f'v_and_b32 v4, 16, v{vL}')
    I(f'v_lshlrev_b32 v4, 2, v4')
    I(f'v_xor_b32 v4, v4, v{vL16}')
    I(f'v_and_b32 v4, 0x70, v4')
    I(f's_lshl_b32 {sT0}, {sHQ}, 7')
    I(f'v_add3_u32 v{vW2}, v{vW2}, v4, {sT0}')
    I(f's_mul_i32 s3, {sW}, {352*1024}')
    I(f's_mul_i32 s4, {sW}, {15*K}')
    I(f'v_lshrrev_b32 v4, 5, v{vL}')
    I(f'v_lshlrev_b32 v{vW2R}, 9, v4')
    I(f'v_bfe_u32 v4, v{vL}, 2, 2')
    I(f'v_lshl_add_u32 v{vW2R}, v4, 7, v{vW2R}')
    I(f'v_bfe_u32 v4, v{vL}, 3, 1')
    I(f's_and_b32 {sT0}, {sW}, 1')
    I(f'v_xor_b32 v4, {sT0}, v4')
    I(f'v_lshl_add_u32 v{vW2R}, v4, 6, v{vW2R}')
    I(f'v_bfe_u32 v4, v{vL}, 4, 1')
    I(f'v_lshl_add_u32 v{vW2R}, v4, 5, v{vW2R}')
    I(f'v_and_b32 v4, 3, v{vL}')
    I(f'v_lshl_add_u32 v{vW2R}, v4, 3, v{vW2R}')
    I(f'v_add_u32 v{vW2R}, s4, v{vW2R}')
    I(f'v_xor_b32 v{vW2R+1}, 64, v{vW2R}')

def w2_issue(rnd):
    o = []
    b0, n = W2R[rnd]
    for i in range(n):
        o.append(f's_add_u32 m0, s4, {RA + i*1024}')
        o.append(f's_add_u32 {sT2}, s3, {(b0+i)*8192}')
        o.append((f'buffer_load_dwordx4 v{vW2}, {sW2}, {sT2} offen lds', f'w2_{rnd}'))
    return o

def w2_read(rnd):
    o = []
    b0, n = W2R[rnd]
    for i in range(n):
        s, hr = divmod(b0 + i, 2)
        for slot in range(2):
            o.append(f'ds_read_b64_tr_b16 {a_(8*s+4*slot+2*hr,2)}, v{vW2R+slot} offset:{RA+i*1024}')
    return o

DAC = 32
DW = 80
DST = 104
DY = 128
vD = 6
vUT = 120
vSB, vRS = 123, 124
def d_setup():
    I(f'v_lshrrev_b32 v4, 5, v{vL}')
    I(f'v_lshlrev_b32 v{vD}, 8, v4')
    I(f'v_bfe_u32 v4, v{vL}, 2, 2')
    I(f'v_lshl_add_u32 v{vD}, v4, 6, v{vD}')
    I(f'v_bfe_u32 v4, v{vL}, 4, 1')
    I(f'v_lshl_add_u32 v{vD}, v4, 5, v{vD}')
    I(f'v_and_b32 v4, 3, v{vL}')
    I(f'v_lshl_add_u32 v{vD}, v4, 3, v{vD}')
    I(f'v_add_u32 v{vD}, {RB}, v{vD}')
    I(f'v_add_u32 v{vD+1}, 32768, v{vD}')
    I(f'v_add_u32 v{vD+2}, 65536, v{vD}')

def w1_rd(k16, buf, base=vD):
    return [f'ds_read_b64_tr_b16 {v(DW+12*buf+4*t+2*hr,2)}, v{base+t} offset:{(k16>>1)*2048+hr*1024+(k16&1)*512}' for t in range(3) for hr in range(2)]

def d_ut():
    I(f's_lshl_b32 {sT0}, {sW}, 13')
    for t in range(3): I(f'v_add_u32 v{9+t}, {sT0}, v{vD+t}')
    A.run(w1_rd(0, 0, 9))
    for i in range(8):
        mm = [f'v_mfma_f32_32x32x16_bf16 {v(DAC+16*t,16)}, {a_(AUA+4*i,4)}, {v(DW+12*(i&1)+4*t,4)}, ' + ('0' if i == 0 else v(DAC+16*t,16)) for t in range(3)]
        A.run(weave(mm, w1_rd(i+1, (i+1)&1, 9) if i < 7 else []))
    I(f's_mul_i32 {sT0}, {sW}, 768')
    I(f's_add_u32 {sT0}, {sT0}, {UT}')
    I(f'v_lshl_add_u32 v4, v{vL}, 2, {sT0}')
    for t in range(3): I(f'ds_write_b32 v4, v{DAC+16*t} offset:{256*t}')
    A.barrier()
    I(f'v_lshlrev_b32 v4, 2, v{vL}')
    I(f'v_add_u32 v4, {UT}, v4')
    for w in range(4):
        for t in range(3): I(f'ds_read_b32 v{DAC+3*w+t}, v4 offset:{768*w+256*t}')
    for t in range(3):
        I(f'v_add_f32 v{DAC+t}, v{DAC+t}, v{DAC+3+t}')
        I(f'v_add_f32 v{DAC+6+t}, v{DAC+6+t}, v{DAC+9+t}')
        I(f'v_add_f32 v{vUT+t}, v{DAC+t}, v{DAC+6+t}')

def stats_load(dst, row_sgpr):
    I(f'v_and_b32 v4, 31, v{vL}')
    I(f'v_lshlrev_b32 v4, 6, v4')
    I(f'v_and_b32 v5, 32, v{vL}')
    I(f'v_add_u32 v4, v4, v5')
    I(f's_lshl_b32 {sT1}, {row_sgpr}, 6')
    I(f's_add_u32 {sT1}, {sT1}, {STATS}')
    I(f'buffer_load_dwordx4 {v(dst,4)}, v4, {sWS}, {sT1} offen sc1')
    I(f'buffer_load_dwordx4 {v(dst+4,4)}, v4, {sWS}, {sT1} offen offset:16 sc1')

def stats_ops(d):
    o = []
    for e in range(2):
        o.append(f'v_add_f32 v{d+e}, v{d+e}, v{d+2+e}')
        o.append(f'v_add_f32 v{d+4+e}, v{d+4+e}, v{d+6+e}')
    for e in range(2): o.append(f'v_add_f32 v{d+e}, v{d+e}, v{d+4+e}')
    for e in range(2): o.append(f'v_mov_b32 v{d+2+e}, v{d+e}')
    for e in range(2): o.append(f'v_permlane32_swap_b32 v{d+e}, v{d+2+e}')
    for e in range(2): o.append(f'v_add_f32 v{d+e}, v{d+e}, v{d+2+e}')
    o.append(f'v_mul_f32 v{d}, {f2u(1/512):#x}, v{d}')
    o.append(f'v_mov_b32 v{d+2}, {f2u(1e-5):#x}')
    o.append(f'v_fmac_f32 v{d+2}, {f2u(1/512):#x}, v{d+1}')
    o.append(f'v_fma_f32 v{d+1}, -v{d}, v{d}, v{d+2}')
    o.append(f'v_max_f32 v{d+1}, {f2u(1e-5):#x}, v{d+1}')
    return o

def d_main():
    I(f's_lshl_b32 {sT0}, {sGRP}, 2')
    I(f's_add_u32 {sT0}, {sT0}, {sW}')
    I(f's_lshl_b32 {sT3}, {sT0}, 5')
    stats_load(DST, sT3)
    I(f's_lshl_b32 {sT0}, {sT0}, 15')
    I(f's_add_u32 {sT0}, {sT0}, {YB}')
    for k in range(32):
        if k and k % 4 == 0: I(f's_add_u32 {sT0}, {sT0}, 4096')
        I(f'buffer_load_dwordx4 {v(DY+4*k,4)}, v{vL16}, {sWS}, {sT0} offen offset:{(k&3)*1024} sc1')
    A.run(w1_rd(0, 0))
    A.run(stats_ops(DST))
    I(f'v_sqrt_f32 v{DST+1}, v{DST+1}')
    I(f'v_cmp_gt_u32 vcc, 32, v{vL}')
    I(f'v_sub_f32 v{DST}, 0, v{DST}')
    I(f'v_cndmask_b32 v{vSB}, v{DST}, v{DST+1}, vcc')
    for t in range(3):
        I(f'v_mfma_f32_32x32x2_f32 {v(DAC+16*t,16)}, v{vUT+t}, v{vSB}, 0')
    for k in range(32):
        mm = [f'v_mfma_f32_32x32x16_bf16 {v(DAC+16*t,16)}, {v(DW+12*(k&1)+4*t,4)}, {v(DY+4*k,4)}, {v(DAC+16*t,16)}' for t in range(3)]
        A.run(weave(mm, w1_rd(k+1, (k+1)&1) if k < 31 else []))

def d_epi():
    HP = 128
    I(f's_lshl_b32 {sT0}, {sGRP}, 2')
    I(f's_add_u32 {sT0}, {sT0}, {sW}')
    I(f's_mul_i32 {sT0}, {sT0}, {86*1024}')
    I(f's_mul_i32 {sT1}, {sR}, {6*1024}')
    I(f's_add_u32 {sT0}, {sT0}, {sT1}')
    I(f's_add_u32 {sT2}, {sT0}, {HB}')
    I(f's_add_u32 {sT3}, {sT2}, 2048')
    I(f's_add_u32 {sT4}, {sT2}, 4096')
    I(f's_cmp_ge_u32 {sR}, 14')
    I(f's_cselect_b32 {sT3}, {WS_SIZE:#x}, {sT3}')
    I(f's_cselect_b32 {sT4}, {WS_SIZE:#x}, {sT4}')
    st = []
    for t in range(3):
        for k in range(8): I(f'v_cvt_pk_bf16_f32 v{HP+8*t+k}, v{DAC+16*t+2*k}, v{DAC+16*t+2*k+1}')
        for k in range(8): I(f'v_pk_max_i16 v{HP+8*t+k}, v{HP+8*t+k}, 0')
        for s in range(2):
            st.append(f'buffer_store_dwordx4 {v(HP+8*t+4*s,4)}, v{vL16}, {sWS}, {[sT2,sT3,sT4][t]} offen offset:{1024*s}')
    return st

EH = 80
EAC = 176
XE = 32
EX = RB
XT = RB + 48 * K
def e_pre():
    I(f's_lshl_b32 {sT0}, {sW}, 4')
    I(f'v_and_b32 v4, 15, v{vL}')
    I(f'v_add_u32 v4, {sT0}, v4')
    I(f'v_mul_u32_u24 v4, 272, v4')
    I(f'v_and_b32 v5, 0x30, v{vL}')
    I(f'v_add_u32 v4, v4, v5')
    I(f'v_add_u32 v4, {XT}, v4')
    for j in range(4): I(f'ds_write_b128 v4, {v(X1+4*j,4)} offset:{64*j}')
    I(f's_lshl_b32 {sT0}, {sRB64}, 1')
    I(f's_lshr_b32 {sT1}, {sW}, 1')
    I(f's_add_u32 {sT0}, {sT0}, {sT1}')
    I(f's_lshl_b32 {sT3}, {sT0}, 5')
    stats_load(48, sT3)
    A.barrier()
    I(f's_lshr_b32 {sT0}, {sW}, 1')
    I(f's_mul_i32 {sT0}, {sT0}, {32*272}')
    I(f's_and_b32 {sT1}, {sW}, 1')
    I(f's_lshl_b32 {sT1}, {sT1}, 7')
    I(f's_add_u32 {sT0}, {sT0}, {sT1}')
    I(f's_add_u32 {sT0}, {sT0}, {XT}')
    I(f'v_and_b32 v4, 31, v{vL}')
    I(f'v_mul_u32_u24 v4, 272, v4')
    I(f'v_lshrrev_b32 v5, 5, v{vL}')
    I(f'v_lshlrev_b32 v5, 4, v5')
    I(f'v_add3_u32 v4, v4, v5, {sT0}')
    for q in range(4): I(f'ds_read_b128 {v(XE+4*q,4)}, v4 offset:{32*q}')
    A.run(stats_ops(48))
    I(f'v_rsq_f32 v48, v49')
    for k in range(8):
        I(f'v_accvgpr_read_b32 v4, a{AGB+k}')
        I(f'v_lshlrev_b32 v{56+2*k}, 16, v4')
        I(f'v_and_b32 v{57+2*k}, 0xffff0000, v4')
    for k in range(16): I(f'v_mul_f32 v{56+k}, v48, v{56+k}')

def e_mask():
    I(f's_mul_i32 {sT0}, {sW}, 11')
    I(f'v_lshrrev_b32 v4, 2, v{vL}')
    I(f'v_mul_u32_u24 v4, 3, v4')
    I(f'v_add_u32 v5, 2, v4')
    I(f'v_cmp_le_u32 {mC0}, {sT0}, v5')
    I(f's_add_u32 {sT0}, {sT0}, 10')
    I(f's_min_u32 {sT0}, {sT0}, 42')
    I(f'v_cmp_ge_u32 {mC1}, {sT0}, v4')
    I(f'v_bfe_u32 v4, v{vL}, 1, 1')
    I(f's_and_b32 {sT0}, {sRB64}, 1')
    I(f'v_cmp_eq_u32 {mP}, {sT0}, v4')
    I(f's_and_b64 {mC0}, {mC0}, {mC1}')
    I(f's_and_b64 {mC0}, {mC0}, {mP}')

def e_main():
    I(f's_lshr_b32 {sT0}, {sW}, 1')
    I(f's_lshl_b32 {sT1}, {sRB64}, 1')
    I(f's_add_u32 {sT1}, {sT1}, {sT0}')
    I(f's_xor_b32 {sT0}, {sT1}, 1')
    I(f's_mul_i32 {sT0}, {sT0}, {86*1024}')
    I(f's_mul_i32 {sT1}, {sT1}, {86*1024}')
    I(f's_mul_i32 {sT2}, {sW}, {22*1024}')
    I(f's_add_u32 {sT2}, {sT2}, {HB}')
    I(f's_add_u32 {sT0}, {sT0}, {sT2}')
    I(f's_add_u32 {sT1}, {sT1}, {sT2}')
    smov(sT2, 4096)
    I(f's_cmp_eq_u32 {sW}, 3')
    I(f's_cselect_b32 {sT2}, {WS_SIZE:#x}, {sT2}')
    for rel, sg in ((0, sT0), (1, sT1)):
        for i in range(22):
            if i and i % 4 == 0: I(f's_add_u32 {sg}, {sg}, ' + (sT2 if i == 20 else '4096'))
            I(f'buffer_load_dwordx4 {v(EH+88*rel+4*i,4)}, v{vL16}, {sWS}, {sg} offen offset:{(i&3)*1024} sc1')
    for rel in (1, 2, 3):
        I(f's_xor_b32 {sT0}, {sW}, {rel}')
        I(f's_mul_i32 {sT0}, {sT0}, 12288')
        I(f's_add_u32 {sT0}, {sT0}, {EX + (rel-1)*4096}')
        I(f'v_add_u32 v{5+rel}, {sT0}, v{vL16}')
    def mm(tile, slot, rel, i):
        d = a_(EAC + 16*tile, 16)
        return f'v_mfma_f32_32x32x16_bf16 {d}, {a_(8*i+4*slot,4)}, {v(EH+88*rel+4*i,4)}, ' + ('0' if i == 0 else d)
    def wr(tile): return [f'ds_write_b128 v{5+tile}, {a_(EAC+16*tile+4*q,4)} offset:{1024*q}' for q in range(4)]
    for i in range(22):
        I(mm(2, 0, 0, i)); I(mm(3, 1, 0, i))
    m2 = []
    for i in range(22):
        m2 += [mm(1, 1, 1, i), mm(0, 0, 1, i)]
    A.run(weave(m2, wr(2) + wr(3), per=1, start=12))
    A.run(wr(1))
    I(f's_mul_i32 {sT0}, {sW}, 12288')
    I(f's_add_u32 {sT0}, {sT0}, {EX}')
    I(f'v_add_u32 v4, {sT0}, v{vL16}')
    for k in range(16): I(f'v_accvgpr_read_b32 v{EH+k}, a{EAC+k}')
    A.barrier()
    for rel in range(3):
        for q in range(4): I(f'ds_read_b128 {v(EH+16+16*rel+4*q,4)}, v4 offset:{4096*rel+1024*q}')
    I(f's_lshl_b32 {sT0}, {sRB64}, 16')
    I(f's_lshr_b32 {sT1}, {sW}, 1')
    I(f's_lshl_b32 {sT1}, {sT1}, 15')
    I(f's_add_u32 {sT0}, {sT0}, {sT1}')
    I(f's_lshl_b32 {sT1}, {sHQ}, 7')
    I(f's_add_u32 {sT0}, {sT0}, {sT1}')
    I(f's_and_b32 {sT1}, {sW}, 1')
    I(f's_lshl_b32 {sT1}, {sT1}, 6')
    I(f's_add_u32 {sT0}, {sT0}, {sT1}')
    I(f'v_and_b32 v5, 31, v{vL}')
    I(f'v_lshlrev_b32 v5, 10, v5')
    I(f'v_lshrrev_b32 v6, 5, v{vL}')
    I(f'v_lshl_add_u32 v5, v6, 4, v5')
    for rel in range(3):
        for k in range(8): I(f'v_pk_add_f32 {v(EH+2*k,2)}, {v(EH+2*k,2)}, {v(EH+16+16*rel+2*k,2)}')
    for k in range(8): I(f'v_pk_fma_f32 {v(EH+2*k,2)}, {v(EH+2*k,2)}, {v(56+2*k,2)}, {v(XE+2*k,2)}')
    for k in range(8): I(f'v_cvt_pk_bf16_f32 v{EH+16+k}, v{EH+2*k}, v{EH+2*k+1}')
    for pr in range(2):
        for i in range(2): I(f'v_permlane32_swap_b32 v{EH+16+4*pr+i}, v{EH+16+4*pr+2+i}')
    for pr in range(2):
        I(f'buffer_store_dwordx4 {v(EH+16+4*pr,4)}, v5, {sOUT}, {sT0} offen offset:{32*pr}')

def preread():
    d = 74
    I(f'v_lshlrev_b32 v4, 7, v{vL}')
    I(f's_lshl_b32 {sT0}, {sGRP}, 2')
    I(f's_add_u32 {sT0}, {sT0}, {sW}')
    I(f's_mul_i32 {sT0}, {sT0}, {86*1024}')
    I(f's_mul_i32 {sT1}, {sR}, {6*1024}')
    I(f's_add_u32 {sT0}, {sT0}, {sT1}')
    I(f's_add_u32 {sT0}, {sT0}, {HB}')
    I(f'buffer_load_dword v{d}, v4, {sWS}, {sT0} offen')
    I(f's_lshl_b32 {sT0}, {sRB64}, 16')
    I(f's_lshl_b32 {sT1}, {sHQ}, 13')
    I(f's_add_u32 {sT0}, {sT0}, {sT1}')
    I(f's_add_u32 {sT1}, {sT0}, {YB}')
    I(f's_add_u32 {sT0}, {sT0}, {OB}')
    I(f's_cmp_eq_u32 {sW}, 1')
    I(f's_cselect_b32 {sT0}, {sT1}, {sT0}')
    I(f's_lshl_b32 {sT1}, {sGRP}, 13')
    I(f's_add_u32 {sT1}, {sT1}, {STATS}')
    I(f's_cmp_eq_u32 {sW}, 2')
    I(f's_cselect_b32 {sT0}, {sT1}, {sT0}')
    I(f's_lshl_b32 {sT1}, {sGRP}, 11')
    I(f's_add_u32 {sT1}, {sT1}, {FLAGS}')
    I(f's_cmp_eq_u32 {sW}, 3')
    I(f's_cselect_b32 {sT0}, {sT1}, {sT0}')
    I(f'buffer_load_dword v{d+1}, v4, {sWS}, {sT0} offen')

def finish():
    if DEBUG:
        A.vm0()
        ts('end')
        A._emit(__import__('asm').Ins('s_memrealtime s[6:7]'))
        A.lg0(force=True)
        for i in range(32):
            I(f'v_writelane_b32 v4, s{70+i}, {i}')
        I('v_writelane_b32 v4, s6, 32'); I('v_writelane_b32 v4, s7, 33'); I(f'v_writelane_b32 v4, {sFAST}, 34'); I(f'v_writelane_b32 v4, {sXCC}, 35')
        I(f's_lshl_b32 {sT0}, s2, 2')
        I(f's_add_u32 {sT0}, {sT0}, {sW}')
        I(f's_lshl_b32 {sT0}, {sT0}, 8')
        I(f's_add_u32 {sT0}, {sT0}, {TSB}')
        I(f'v_lshlrev_b32 v5, 2, v{vL}')
        I(f'buffer_store_dword v4, v5, {sWS}, {sT0} offen')
    A.label('L_end')
    I('s_endpgm')

def main():
    prologue()
    I(f's_load_dwordx2 {TAG}, s[40:41], {GEN}')
    I(f's_cmp_ge_u32 {sRK}, 12')
    A.settle()
    I('s_cbranch_scc1 L_nomod1')
    A.cond = 'mod'; mod_issue(); A.cond = None
    A.label('L_nomod1')
    x_issue()
    wq_setup()
    for s in range(6): A.run(wq_issue(s))
    I(f's_add_u32 s44, s44, 0x7f4a7c15')
    I(f's_addc_u32 s45, s45, 0x9e3779b9')
    I(f's_lshl_b32 {sT0}, {sGRP}, 4')
    I(f's_add_u32 {sT0}, {sT0}, {sR}')
    I(f's_lshl_b32 {sT0}, {sT0}, 4')
    I(f's_add_u32 {sT0}, {sT0}, {HELLO}')
    I(f'v_mov_b32 v76, {sXCC}')
    I(f'v_mov_b32 v77, 0')
    I(f'v_mov_b32 v78, s44')
    I(f'v_mov_b32 v79, s45')
    I(f'v_lshlrev_b32 v4, 24, v0')
    I(f'buffer_store_dwordx4 v[76:79], v4, {sWS}, {sT0} offen sc1')
    I(f's_lshl_b32 {sT0}, {sGRP}, 11')
    I(f's_add_u32 {sT0}, {sT0}, {FLAGS}')
    I(f'v_lshl_add_u32 v{vFO}, v{vL}, 3, {sT0}')
    ts('issued')
    I(f's_cmp_ge_u32 {sRK}, 12')
    A.settle()
    I('s_cbranch_scc1 L_nomod2')
    A.cond = 'mod'; mod_compute(); A.settle(); A.cond = None
    A.label('L_nomod2')
    ts('modpub')
    wq_trsetup()
    xs = x_ops()
    for o in xs[:6]: A.run(o)
    A.waitvm('slab1'); A.barrier()
    A.run(weave(xs[6] + xs[7], wq_read(0) + wq_read(1), per=1))
    A.waitvm('slab3'); A.barrier()
    A.run(wq_issue(6) + wq_issue(7))
    A.run(weave(xs[8] + xs[9], wq_read(2) + wq_read(3), per=1))
    wo_setup()
    A.waitvm('slab5'); A.barrier()
    for g in range(6): A.run(wo_issue(g))
    A.run(weave(xs[10] + xs[11], wq_read(4) + wq_read(5), per=1))
    A.waitvm('slab7'); A.barrier()
    for g in range(6, 8): A.run(wo_issue(g))
    preread()
    A.run(weave(xs[12], wq_read(6) + wq_read(7), per=1))
    A.lg0()
    h_setup()
    ts('wdone')
    gather()
    ts('gath')
    A.barrier()
    for c in range(4):
        A.run(h_gsread(c)); A.run(h_conv(c))
    qkv_setup()
    A.run(modvec_read())
    A.barrier()
    ts('hdone')
    A.run(h_read(0))
    for ks in range(16):
        A.run(weave(qkv_mfma(ks), h_read(ks+1) if ks < 15 else [], per=1, start=3))
    A.barrier()
    ts('qkv')
    st = attention()
    publish(st, 0)
    ts('opub')
    if STOP == 'B': return finish()
    w1_setup()
    for i in range(8): A.run(w1_issue(i))
    c_pre()
    I(f's_bitcmp1_b32 {sRB64}, 0')
    I(f's_cselect_b32 s62, 0, -1')
    I(f's_cselect_b32 s63, -1, 0')
    poll(0, mC0)
    ts('opoll')
    A.barrier()
    c_main()
    st = c_epi()
    publish(st, 1)
    ts('ypub')
    if STOP == 'C': return finish()
    A.barrier()
    w2_setup()
    A.run(w2_issue(0))
    d_setup()
    d_ut()
    for r in range(3):
        A.waitvm(f'w2_{r}')
        A.run(w2_read(r))
        A.lg0()
        if r < 2: A.run(w2_issue(r + 1))
    ts('w2')
    I(f's_cmp_eq_u32 {sR}, 15')
    A.settle()
    I('s_cbranch_scc1 L_noD')
    I(f's_bitcmp1_b32 {sW}, 0')
    smov(sT1, 0xcccccccc)
    I(f's_cselect_b32 {sT0}, {sT1}, 0x33333333')
    I(f's_bitcmp1_b32 {sW}, 1')
    I(f's_cselect_b32 s62, 0, {sT0}')
    I(f's_cselect_b32 s63, {sT0}, 0')
    poll(1, mC0)
    ts('ypoll')
    d_main()
    st = d_epi()
    publish(st, 2)
    A.settle()
    I('s_branch L_doneD')
    A.label('L_noD')
    I(f's_bitcmp1_b32 {sRB64}, 0')
    I(f's_cselect_b32 s62, 0, -1')
    I(f's_cselect_b32 s63, -1, 0')
    poll(1, mC0)
    I(f's_lshl_b32 {sT0}, {sGRP}, 2')
    I(f's_add_u32 {sT0}, {sT0}, {sW}')
    I(f's_cmp_lg_u32 {sT0}, 0')
    I('s_cbranch_scc1 L_doneD')
    smov(sCNT, SPIN)
    smov(sT0, HELLO)
    A.label('L_gen')
    for i in range(4): I(f'buffer_load_dwordx4 {v(32+4*i,4)}, v{vL16}, {sWS}, {sT0} offen offset:{1024*i} sc1')
    A.vm0()
    I(f'v_cmp_ne_u64 vcc, {TAG}, v[34:35]')
    I(f'v_cmp_ne_u64 {mP}, {TAG}, v[38:39]')
    I(f'v_cmp_ne_u64 {mC0}, {TAG}, v[42:43]')
    I(f'v_cmp_ne_u64 {mC1}, {TAG}, v[46:47]')
    I(f's_or_b64 vcc, vcc, {mP}')
    I(f's_or_b64 {mC0}, {mC0}, {mC1}')
    I(f's_or_b64 vcc, vcc, {mC0}')
    I(f's_cbranch_scc0 L_gend')
    I(f's_sub_u32 {sCNT}, {sCNT}, 1')
    I(f's_cbranch_scc0 L_gen')
    A.label('L_gend')
    I(f'v_mov_b32 v14, s44')
    I(f'v_mov_b32 v15, s45')
    I(f'v_lshlrev_b32 v4, 24, v{vL}')
    smov(sT0, GEN)
    I(f'buffer_store_dwordx2 v[14:15], v4, {sWS}, {sT0} offen sc1')
    A.settle()
    A.label('L_doneD')
    ts('hpub')
    if STOP == 'D': return finish()
    A.barrier()
    e_pre()
    e_mask()
    poll(2, mC0)
    ts('hpoll')
    e_main()
    finish()

main()
hdr = open(f'cdna_kernels/{NAME}.s.ref').read().split('\n')
head = [l for l in hdr if l.startswith(';') and '@launch' not in l]
out = '\n'.join(head) + '\n; @launch grid=(256,1,1) block=(256,1,1) lds=163840\n'
out += f'''.amdgcn_target "amdgcn-amd-amdhsa--gfx950"
.text
.globl {NAME}_kernel
.p2align 8
.type {NAME}_kernel,@function
{NAME}_kernel:
'''
out += A.text()
out += f'''.section .rodata,"a"
.p2align 6
.amdhsa_kernel {NAME}_kernel
  .amdhsa_next_free_vgpr 512
  .amdhsa_next_free_sgpr 102
  .amdhsa_accum_offset 256
  .amdhsa_group_segment_fixed_size 0
  .amdhsa_kernarg_size 88
  .amdhsa_user_sgpr_count 2
  .amdhsa_user_sgpr_kernarg_segment_ptr 1
  .amdhsa_system_sgpr_workgroup_id_x 1
.end_amdhsa_kernel
'''
dst = sys.argv[1]
open(dst, 'w').write(out)
if DEBUG: open(dst + '.ts', 'w').write(','.join(tsnames))
print(A.stats, 'nops', A.nnop, 'waits', A.nwait, file=sys.stderr)
```

```python
import sys
from asm import Asm, weave

NAME = 'adaLN_cond__sliding_local_dilated__dense_activation_relu__prompt'
DEBUG = any(a.startswith('--ts') for a in sys.argv)
TSSEL = None
OPT = set()
for a in sys.argv:
    if a.startswith('--ts='): TSSEL = set(a[5:].split(',')) | {'start', 'end'}
    if a.startswith('--opt='): OPT |= set(a[6:].split(','))
TSDEF = set('start,issued,modpub,wdone,gath,hdone,qkv,opub,opoll,ypub,w2,ypoll,hpub,hpoll,end'.split(','))
STOP = None
for a in sys.argv:
    if a.startswith('--stop='): STOP = a[7:]

GRAN, HELLO, GEN, FLAGS, STATS = 0x0, 0x3000, 0x4000, 0x10000, 0x20000
OB, YB, HB, TSB = 0x100000, 0x300000, 0x500000, 0xB00000
WS_SIZE = 0x1000000
K = 1024
RA, RB = 0, 64 * K
SLOT = [96 * K, 120 * K, 0, 24 * K, 48 * K, 72 * K, 96 * K, 120 * K]
HF = 64 * K
GS = 144 * K
MV = 148 * K
MR = 152 * K
UT = 60 * K
sX, sWQ, sWO, sW1, sW2, sC, sWM, sOUT, sWS = [f's[{i}:{i+3}]' for i in range(8, 44, 4)]
TAG = 's[44:45]'
sW, sXG, sRK, sRB64, sHQ, sGRP, sR, sXCC, sFAST = [f's{i}' for i in range(46, 55)]
sT0, sT1, sT2, sT3, sT4 = [f's{i}' for i in range(55, 60)]
mP, mC0, mC1 = 's[60:61]', 's[62:63]', 's[64:65]'
sCNT, sSO, sM0B = 's66', 's67', 's68'
SPIN = 20000
LOG2E = 1.4426950408889634

import struct
def f2u(x): return struct.unpack('<I', struct.pack('<f', x))[0]
def v(i, n=1): return f'v{i}' if n == 1 else f'v[{i}:{i+n-1}]'
def a_(i, n=1): return f'a{i}' if n == 1 else f'a[{i}:{i+n-1}]'

A = Asm()
I = A.I
nts = [0]
tsnames = []
def ts(name):
    if not DEBUG or name not in (TSSEL or TSDEF): return
    i = nts[0]; nts[0] += 1
    assert i < 15
    tsnames.append(name)
    A._emit(__import__('asm').Ins(f's_memtime s[{70+2*i}:{71+2*i}]'))

def smov(d, x):
    I(f's_mov_b32 {d}, {x:#x}' if isinstance(x, int) else f's_mov_b32 {d}, {x}')

vL, vL16 = 1, 2
vFO = 3

def prologue():
    I('s_cmp_ge_u32 s2, 256')
    I('s_cbranch_scc1 L_end')
    if DEBUG:
        A._emit(__import__('asm').Ins('s_memrealtime s[100:101]'))
    ts('start')
    order = [(28, 48), (32, 56), (40, 80), (8, 0), (12, 8), (16, 16), (20, 32), (24, 40), (36, 64)]
    for s, off in order:
        I(f's_load_dwordx2 s[{s}:{s+1}], s[0:1], {off}')
    I(f'v_lshrrev_b32 v4, 6, v0')
    I(f'v_and_b32 v{vL}, 63, v0')
    I(f'v_readfirstlane_b32 {sW}, v4')
    sizes = {8: 2097152, 12: 1572864, 16: 524288, 20: 1409024, 24: 1409024, 28: 1024, 32: 3145728, 36: 2097152, 40: WS_SIZE}
    for s, off in order:
        smov(f's{s+2}', sizes[s]); smov(f's{s+3}', 0x20000)
    I(f's_and_b32 {sXG}, s2, 7')
    I(f's_lshr_b32 {sRK}, s2, 3')
    I(f's_lshr_b32 {sT0}, {sRK}, 3')
    I(f's_lshl_b32 {sRB64}, {sXG}, 2')
    I(f's_add_u32 {sRB64}, {sRB64}, {sT0}')
    I(f's_and_b32 {sHQ}, {sRK}, 7')
    I(f's_lshr_b32 {sGRP}, {sRB64}, 1')
    I(f's_and_b32 {sR}, {sRK}, 15')
    I(f's_getreg_b32 {sXCC}, hwreg(HW_REG_XCC_ID)')
    I(f's_and_b32 {sXCC}, {sXCC}, 15')
    I(f'v_lshlrev_b32 v{vL16}, 4, v{vL}')

WM0, WMC, WMA = 16, 48, 56
def mod_issue():
    I(f's_lshr_b32 {sT0}, {sRK}, 2')
    I(f's_lshl_b32 {sT0}, {sT0}, 5')
    I(f's_lshl_b32 {sT1}, {sXG}, 2')
    I(f's_add_u32 {sT0}, {sT0}, {sT1}')
    I(f's_and_b32 {sT1}, {sRK}, 3')
    I(f's_add_u32 {sT4}, {sT0}, {sT1}')
    I(f'v_lshrrev_b32 v4, 2, v{vL}')
    I(f'v_mul_u32_u24 v4, {8*6144}, v4')
    I(f'v_and_b32 v5, 3, v{vL}')
    I(f'v_lshl_add_u32 v4, v5, 4, v4')
    I(f'v_lshlrev_b32 v5, 2, v0')
    I(f's_mul_i32 {sT0}, {sW}, {128*6144}')
    I(f's_lshl_b32 {sT1}, {sT4}, 6')
    I(f's_add_u32 {sT0}, {sT0}, {sT1}')
    I(f'buffer_load_dword v{WMC}, v5, {sC}, 0 offen')
    for j in range(8):
        I(f'buffer_load_dwordx4 {v(WM0+4*j,4)}, v4, {sWM}, {sT0} offen')
        if j < 7: I(f's_add_u32 {sT0}, {sT0}, 6144')

def mod_compute():
    c = WMC
    I(f'v_lshlrev_b32 v{c+4}, 16, v{c}')
    I(f'v_and_b32 v{c+5}, 0xffff0000, v{c}')
    for k in (4, 5): I(f'v_mul_f32 v{c+k+2}, {-LOG2E!r}, v{c+k}')
    for k in (4, 5): I(f'v_exp_f32 v{c+k+2}, v{c+k+2}')
    for k in (4, 5): I(f'v_add_f32 v{c+k+2}, 1.0, v{c+k+2}')
    for k in (4, 5): I(f'v_rcp_f32 v{c+k+2}, v{c+k+2}')
    for k in (4, 5): I(f'v_mul_f32 v{c+k}, v{c+k}, v{c+k+2}')
    I(f'v_cvt_pk_bf16_f32 v{c+4}, v{c+4}, v{c+5}')
    smov(sT0, 0x05040100); smov(sT1, 0x07060302)
    for j in range(4):
        I(f'v_mov_b32_dpp v{c+j}, v{c+4} quad_perm:[{j},{j},{j},{j}] row_mask:0xf bank_mask:0xf')
    for i in range(8): I(f'v_mov_b32 v{WMA+i}, 0')
    for j in range(4):
        r0, r1 = WM0 + 8*j, WM0 + 8*j + 4
        for d in range(4):
            I(f'v_perm_b32 v{c+4+(d&1)*2}, v{r1+d}, v{r0+d}, {sT0}')
            I(f'v_perm_b32 v{c+5+(d&1)*2}, v{r1+d}, v{r0+d}, {sT1}')
            I(f'v_dot2c_f32_bf16 v{WMA+2*d}, v{c+4+(d&1)*2}, v{c+j}')
            I(f'v_dot2c_f32_bf16 v{WMA+2*d+1}, v{c+5+(d&1)*2}, v{c+j}')
    m = WMA
    for i in range(4): I(f'v_permlane32_swap_b32 v{m+i}, v{m+i+4}')
    for i in range(4): I(f'v_add_f32 v{m+i}, v{m+i}, v{m+i+4}')
    for i in range(2): I(f'v_permlane16_swap_b32 v{m+i}, v{m+i+2}')
    for i in range(2): I(f'v_add_f32 v{m+i}, v{m+i}, v{m+i+2}')
    I(f'v_and_b32 v4, 3, v{vL}')
    I(f'v_lshlrev_b32 v4, 5, v4')
    for rot in (8, 4):
        for i in range(2): I(f'v_add_f32_dpp v{m+i}, v{m+i}, v{m+i} row_ror:{rot} row_mask:0xf bank_mask:0xf')
    I(f'v_lshrrev_b32 v5, 4, v{vL}')
    I(f'v_lshl_add_u32 v4, v5, 3, v4')
    I(f's_lshl_b32 {sT0}, {sW}, 7')
    I(f's_add_u32 {sT0}, {sT0}, {MR}')
    I(f'v_add_u32 v4, {sT0}, v4')
    I(f'ds_write_b64 v4, {v(m,2)}')
    A.barrier()
    I(f'v_and_b32 v4, 7, v{vL}')
    I(f'v_lshlrev_b32 v4, 4, v4')
    I(f'v_add_u32 v5, {MR}, v4')
    for w in range(4): I(f'ds_read_b128 {v(WM0+4*w,4)}, v5 offset:{128*w}')
    I(f's_lshr_b32 {sT0}, {sT4}, 4')
    I(f's_lshr_b32 {sT1}, 0x12, {sT0}')
    I(f's_and_b32 {sT1}, {sT1}, 1')
    I(f's_mul_i32 {sT1}, {sT1}, {f2u(1.0):#x}')
    I(f's_lshl_b32 {sT0}, {sT4}, 7')
    for i in (0, 2): I(f'v_pk_add_f32 {v(WM0+i,2)}, {v(WM0+i,2)}, {v(WM0+4+i,2)}')
    for i in (0, 2): I(f'v_pk_add_f32 {v(WM0+8+i,2)}, {v(WM0+8+i,2)}, {v(WM0+12+i,2)}')
    for i in (0, 2): I(f'v_pk_add_f32 {v(WM0+i,2)}, {v(WM0+i,2)}, {v(WM0+8+i,2)}')
    I(f'v_cvt_pk_bf16_f32 v{WM0+4}, v{WM0}, v{WM0+1}')
    I(f'v_cvt_pk_bf16_f32 v{WM0+5}, v{WM0+2}, v{WM0+3}')
    for i in range(2):
        I(f'v_lshlrev_b32 v{WM0+2*i}, 16, v{WM0+4+i}')
        I(f'v_and_b32 v{WM0+2*i+1}, 0xffff0000, v{WM0+4+i}')
    for i in range(4): I(f'v_add_f32 v{WM0+i}, {sT1}, v{WM0+i}')
    I(f'v_cvt_pk_bf16_f32 v{WM0+4}, v{WM0}, v{WM0+1}')
    I(f'v_cvt_pk_bf16_f32 v{WM0+5}, v{WM0+2}, v{WM0+3}')
    I(f'v_mov_b32 v{WM0+6}, s44')
    I(f'v_mov_b32 v{WM0+7}, s45')
    I(f'v_cmp_gt_u32 vcc, 8, v0')
    I(f'v_mov_b32 v5, {WS_SIZE:#x}')
    I(f'v_cndmask_b32 v4, v5, v4, vcc')
    I(f'buffer_store_dwordx4 {v(WM0+4,4)}, v4, {sWS}, {sT0} offen sc1')

XB = 96
def xr(rg, c): return XB + c * 40 + rg * 8
vXO = 6
def x_issue():
    I(f's_lshl_b32 {sT0}, {sRB64}, 6')
    I(f's_mul_i32 {sT1}, {sW}, 20')
    I(f's_add_u32 {sT0}, {sT0}, {sT1}')
    I(f's_sub_u32 {sT0}, {sT0}, 16')
    I(f'v_lshrrev_b32 v4, 4, v{vL}')
    I(f'v_add_u32 v4, {sT0}, v4')
    I(f'v_and_b32 v5, 0xf0, v{vL16}')
    for rg in range(5):
        I(f'v_add_u32 v{vXO+rg}, {4*rg}, v4')
        I(f'v_max_i32 v{vXO+rg}, 0, v{vXO+rg}')
        I(f'v_lshl_add_u32 v{vXO+rg}, v{vXO+rg}, 10, v5')
        for c in range(4):
            I(f'buffer_load_dwordx4 {v(xr(rg,c)+4,4)}, v{vXO+rg}, {sX}, 0 offen offset:{256*c}')

XS = 64
def x_ops():
    st = []
    for rg in range(5):
        o = []
        s = XS + 2 * rg
        for c in range(4):
            b = xr(rg, c)
            for d in range(4):
                o.append(f'v_lshlrev_b32 v{b+2*d}, 16, v{b+4+d}')
                o.append(f'v_and_b32 v{b+2*d+1}, 0xffff0000, v{b+4+d}')
            for d in range(4):
                if c == 0 and d == 0: continue
                src = v(b, 2) if (c == 0 and d == 1) else v(s, 2)
                o.append(f'v_pk_add_f32 {v(s,2)}, {src}, {v(b+2*d,2)}')
        o.append(f'v_add_f32 v{s}, v{s}, v{s+1}')
        st.append(o)
    def red():
        o = []
        for rot in (8, 4, 2, 1):
            for rg in range(5):
                s = XS + 2 * rg
                o.append(f'v_add_f32_dpp v{s}, v{s}, v{s} row_ror:{rot} row_mask:0xf bank_mask:0xf')
        return o
    o = red()
    for rg in range(5): o.append(f'v_mul_f32 v{XS+2*rg}, {-1.0/512!r}, v{XS+2*rg}')
    st.append(o)
    for rg in range(5):
        o = []
        s = XS + 2 * rg
        for c in range(4):
            b = xr(rg, c)
            for d in range(4):
                o.append(f'v_pk_add_f32 {v(b+2*d,2)}, {v(b+2*d,2)}, {v(s,2)} op_sel_hi:[1,0]')
        for c in range(4):
            b = xr(rg, c)
            for d in range(4):
                if c == 0 and d == 0: o.append(f'v_pk_mul_f32 {v(s,2)}, {v(b,2)}, {v(b,2)}')
                else: o.append(f'v_pk_fma_f32 {v(s,2)}, {v(b+2*d,2)}, {v(b+2*d,2)}, {v(s,2)}')
        o.append(f'v_add_f32 v{s}, v{s}, v{s+1}')
        st.append(o)
    o = red()
    o.append(f'v_mov_b32 v4, {f2u(1e-5):#x}')
    for rg in range(5): o.append(f'v_fmamk_f32 v{XS+2*rg}, v{XS+2*rg}, {f2u(1.0/512):#x}, v4')
    for rg in range(5): o.append(f'v_rsq_f32 v{XS+2*rg}, v{XS+2*rg}')
    st.append(o)
    o = []
    for rg in range(5):
        s = XS + 2 * rg
        for c in range(4):
            b = xr(rg, c)
            for d in range(4):
                o.append(f'v_pk_mul_f32 {v(b+2*d,2)}, {v(b+2*d,2)}, {v(s,2)} op_sel_hi:[1,0]')
    st.append(o)
    return st

vWE, vWOd, vTR = 11, 12, 13
def swz_voff(dst, tmp, stride, colbase_sgpr, odd):
    I(f'v_lshrrev_b32 v{tmp}, 3, v{vL}')
    I(f'v_mul_u32_u24 v{dst}, {stride}, v{tmp}')
    I(f'v_and_b32 v{tmp}, 16, v{vL}')
    I(f'v_lshlrev_b32 v{tmp}, 1, v{tmp}')
    I(f'v_xor_b32 v{tmp}, v{tmp}, v{vL16}')
    I(f'v_and_b32 v{tmp}, 0x70, v{tmp}')
    I(f'v_add3_u32 v{dst}, v{dst}, v{tmp}, {colbase_sgpr}')

def wq_setup():
    I(f's_lshl_b32 {sT0}, {sHQ}, 7')
    swz_voff(vWE, 4, 3072, sT0, 0)
    I(f'v_xor_b32 v{vWOd}, 64, v{vWE}')
    I(f'v_add_u32 v{vWOd}, {8*3072}, v{vWOd}')
    I(f's_mul_i32 {sSO}, {sW}, {16*3072}')
    I(f's_mul_i32 {sM0B}, {sW}, {2*3072}')

def wq_issue(slab):
    o = []
    for b in range(2):
        o.append(f's_add_u32 m0, {sM0B}, {SLOT[slab] + b*3072}')
        if b == 0: o.append(f's_add_u32 {sT2}, {sSO}, {slab*64*3072}')
        for p in range(3):
            o.append((f'buffer_load_dwordx4 v{vWOd if b else vWE}, {sWQ}, {sT2} offen offset:{1024*p} lds', f'slab{slab}'))
    return o

def tr_base(dst, piece_sgpr_or_int, gstride):
    I(f'v_lshrrev_b32 v4, 4, v{vL}')
    I(f'v_mul_u32_u24 v{dst}, {gstride}, v4')
    I(f'v_bfe_u32 v4, v{vL}, 2, 2')
    I(f'v_lshl_add_u32 v{dst}, v4, 7, v{dst}')
    I(f'v_bfe_u32 v4, v{vL}, 3, 2')
    I(f'v_xor_b32 v4, {piece_sgpr_or_int}, v4')
    I(f'v_lshl_add_u32 v{dst}, v4, 5, v{dst}')
    I(f'v_and_b32 v4, 3, v{vL}')
    I(f'v_lshl_add_u32 v{dst}, v4, 3, v{dst}')

def wq_trsetup():
    tr_base(vTR, sW, 3072)
    I(f'v_add_u32 v{vTR+1}, {48*K}, v{vTR}')
    I(f'v_add_u32 v{vTR+2}, {96*K}, v{vTR}')

def wq_read(slab):
    o = []
    bi, rem = divmod(SLOT[slab], 48 * K)
    for ksl in range(2):
        ks = 2 * slab + ksl
        for p in range(3):
            for hr in range(2):
                o.append(f'ds_read_b64_tr_b16 {a_(12*ks+4*p+2*hr,2)}, v{vTR+bi} offset:{rem + ksl*12288 + p*1024 + hr*512}')
    return o

vWoE, vWoO = 11, 12
def wo_setup():
    I(f's_lshl_b32 {sT0}, {sHQ}, 7')
    swz_voff(vWoE, 4, 1024, sT0, 0)
    I(f'v_xor_b32 v{vWoO}, 64, v{vWoE}')
    I(f's_lshl_b32 {sSO}, {sW}, 14')
    I(f's_lshl_b32 {sM0B}, {sW}, 11')

def wo_issue(grp):
    o = []
    for b in range(2):
        o.append(f's_add_u32 m0, {sM0B}, {RA + grp*8192 + b*1024}')
        o.append(f's_add_u32 {sT2}, {sSO}, {grp*65536 + b*8192}')
        o.append((f'buffer_load_dwordx4 v{vWoO if b else vWoE}, {sWO}, {sT2} offen lds', 'wo'))
    return o

def poll(phase, mask):
    L, D = A.uniq('poll'), A.uniq('pd')
    smov(sCNT, SPIN)
    A.settle()
    A.label(L)
    I(f'buffer_load_dwordx2 v[4:5], v{vFO}, {sWS}, 0 offen offset:{phase*512} sc1')
    A.vm0()
    I(f'v_cmp_ne_u64 vcc, {TAG}, v[4:5]')
    I(f's_and_b64 vcc, vcc, {mask}')
    I(f's_cbranch_scc0 {D}')
    I(f's_sub_u32 {sCNT}, {sCNT}, 1')
    I(f's_cbranch_scc0 {L}')
    A.label(D)

def publish(stores, phase):
    S, J = A.uniq('slow'), A.uniq('join')
    I(f's_lshl_b32 {sT0}, {sR}, 2')
    I(f's_add_u32 {sT0}, {sT0}, {sW}')
    I(f'v_cmp_eq_u32 vcc, {sT0}, v{vL}')
    I(f'v_mov_b32 v4, {WS_SIZE:#x}')
    I(f'v_cndmask_b32 v4, v4, v{vFO}, vcc')
    I(f'v_mov_b32 v14, s44')
    I(f'v_mov_b32 v15, s45')
    I(f's_cmp_eq_u32 {sFAST}, 0')
    A.settle()
    I(f's_cbranch_scc1 {S}')
    for bits in ('', ' sc1'):
        for s in stores:
            if callable(s): s(bits)
            else: I(s + bits)
        A.vm0()
        I(f'buffer_store_dwordx2 v[14:15], v4, {sWS}, 0 offen offset:{phase*512}{bits}')
        if bits == '':
            I(f's_branch {J}')
            A.label(S)
            A.vm.pop()
    A.label(J)

def gather():
    L, D = A.uniq('gat'), A.uniq('gd')
    g = 16
    I(f'v_lshlrev_b32 v4, 4, v0')
    I(f'v_and_b32 v5, 0xf0, v{vL16}')
    I(f's_lshl_b32 {sT0}, {sGRP}, 8')
    I(f's_add_u32 {sT0}, {sT0}, {HELLO}')
    smov(sT1, 4096); smov(sT2, 8192)
    smov(sCNT, SPIN)
    A.settle()
    A.label(L)
    I(f'buffer_load_dwordx4 {v(g,4)}, v4, {sWS}, 0 offen sc1')
    I(f'buffer_load_dwordx4 {v(g+4,4)}, v4, {sWS}, {sT1} offen sc1')
    I(f'buffer_load_dwordx4 {v(g+8,4)}, v4, {sWS}, {sT2} offen sc1')
    I(f'buffer_load_dwordx4 {v(g+12,4)}, v5, {sWS}, {sT0} offen sc1')
    A.vm0()
    I(f'v_cmp_ne_u64 vcc, {TAG}, {v(g+2,2)}')
    I(f'v_cmp_ne_u64 {mP}, {TAG}, {v(g+6,2)}')
    I(f'v_cmp_ne_u64 {mC0}, {TAG}, {v(g+10,2)}')
    I(f'v_cmp_ne_u64 {mC1}, {TAG}, {v(g+14,2)}')
    I(f's_or_b64 vcc, vcc, {mP}')
    I(f's_or_b64 {mC0}, {mC0}, {mC1}')
    I(f's_or_b64 vcc, vcc, {mC0}')
    I(f's_cbranch_scc0 {D}')
    I(f's_sub_u32 {sCNT}, {sCNT}, 1')
    I(f's_cbranch_scc0 {L}')
    A.label(D)
    I(f'v_cmp_ne_u32 vcc, {sXCC}, v{g+12}')
    I(f'v_lshrrev_b32 v4, 5, v0')
    I(f'v_lshlrev_b32 v4, 9, v4')
    I(f's_cmp_eq_u64 vcc, 0')
    I(f's_cselect_b32 {sFAST}, ' + ('0' if 'slow' in OPT else '1') + ', 0')
    I(f'v_and_b32 v5, 1, v0')
    I(f'v_lshl_add_u32 v4, v5, 8, v4')
    I(f'v_bfe_u32 v5, v0, 1, 4')
    I(f'v_lshl_add_u32 v4, v5, 4, v4')
    I(f'v_add_u32 v4, {GS}, v4')
    I(f'v_and_b32 v{g+3}, 0xffff0000, v{g+1}')
    I(f'v_lshlrev_b32 v{g+2}, 16, v{g+1}')
    I(f'v_and_b32 v{g+1}, 0xffff0000, v{g}')
    I(f'v_lshlrev_b32 v{g}, 16, v{g}')
    I(f'ds_write_b128 v4, {v(g,4)}')
    I(f'v_lshlrev_b32 v5, 3, v0')
    I(f'v_add_u32 v5, {MV}, v5')
    I(f'ds_write_b64 v5, {v(g+4,2)}')
    I(f'ds_write_b64 v5, {v(g+8,2)} offset:2048')

vGSA = 11
GSR = 76
def h_setup():
    I(f'v_bfe_u32 v4, v{vL}, 2, 2')
    I(f'v_mul_u32_u24 v5, {5*1024}, v4')
    I(f'v_and_b32 v4, 1, v4')
    I(f'v_mul_u32_u24 v4, 12, v4')
    I(f'v_and_b32 v12, 3, v{vL}')
    I(f'v_xor_b32 v4, v4, v12')
    I(f'v_lshl_add_u32 v5, v12, 8, v5')
    I(f'v_add_u32 v5, {HF}, v5')
    I(f's_mul_i32 {sT0}, {sW}, 20')
    I(f'v_lshrrev_b32 v12, 4, v{vL}')
    I(f'v_add_u32 v12, {sT0}, v12')
    for rg in range(5):
        d = vXO + rg
        I(f'v_add_u32 v{d}, {4*rg}, v12')
        I(f'v_lshrrev_b32 v13, 4, v{d}')
        I(f'v_and_b32 v{d}, 15, v{d}')
        I(f'v_xor_b32 v{d}, v{d}, v4')
        I(f'v_lshl_add_u32 v{d}, v{d}, 4, v5')
        I(f'v_lshl_add_u32 v{d}, v13, 10, v{d}')
    I(f'v_and_b32 v{vGSA}, 0xf0, v{vL16}')
    I(f'v_add_u32 v{vGSA}, {GS}, v{vGSA}')

def h_gsread(c):
    return [f'ds_read_b128 {v(GSR+8*sec+4*half,4)}, v{vGSA} offset:{sec*2048+c*512+half*256}' for sec in range(2) for half in range(2)]

def h_conv(c, pk=True):
    o = []
    for rg in range(5):
        b = xr(rg, c)
        for d in range(4):
            if pk:
                o.append(f'v_pk_fma_f32 {v(b+2*d,2)}, {v(b+2*d,2)}, {v(GSR+8+2*d,2)}, {v(GSR+2*d,2)}')
            else:
                for e in range(2): o.append(f'v_fma_f32 v{b+2*d+e}, v{b+2*d+e}, v{GSR+8+2*d+e}, v{GSR+2*d+e}')
        for d in range(4):
            o.append(f'v_cvt_pk_bf16_f32 v{b+d}, v{b+2*d}, v{b+2*d+1}')
        o.append(f'ds_write_b128 v{vXO+rg}, {v(b,4)} offset:{c*20480}')
    return o

ACC = 16
def accQ(T): return ACC + 4 * (T - 1)
def accK(T): return ACC + 16 + 4 * T
def accV(T): return ACC + 36 + 4 * T
HFR = 96
vHR = 12
def qkv_setup():
    I(f'v_lshrrev_b32 v4, 4, v{vL}')
    I(f'v_xor_b32 v5, v4, v{vL}')
    I(f'v_and_b32 v5, 15, v5')
    I(f'v_lshlrev_b32 v5, 4, v5')
    I(f'v_lshl_add_u32 v5, v4, 8, v5')
    I(f'v_add_u32 v{vHR}, {HF}, v5')
    I(f'v_xor_b32 v{vHR+1}, {12*16}, v{vHR}')
    I(f'v_add_u32 v{vHR+2}, {40*K}, v{vHR}')
    I(f'v_add_u32 v{vHR+3}, {40*K}, v{vHR+1}')

def h_read(ks):
    return [f'ds_read_b128 {v(HFR+20*(ks&1)+4*T,4)}, v{vHR+2*(ks>>3)+(ks&1)} offset:{((ks&7)*5+T)*1024}' for T in range(5)]

def qkv_mfma(ks):
    o = []
    for T in range(5):
        h = v(HFR + 20 * (ks & 1) + 4 * T, 4)
        def m(d, x, y): o.append(f'v_mfma_f32_16x16x32_bf16 {v(d,4)}, {x}, {y}, ' + ('0' if ks == 0 else v(d, 4)))
        m(accK(T), a_(12*ks+4, 4), h)
        m(accV(T), h, a_(12*ks+8, 4))
        if T: m(accQ(T), a_(12*ks, 4), h)
    return o

AUA, AGA, AG2, AGB = 192, 224, 232, 248
def modvec_read():
    o = []
    o.append(f's_lshl_b32 {sT0}, {sHQ}, 7')
    o.append(f's_add_u32 {sT0}, {sT0}, {MV}')
    o.append(f'v_lshrrev_b32 v4, 4, v{vL}')
    o.append(f'v_lshl_add_u32 v4, v4, 3, {sT0}')
    for j in range(4):
        o.append(f'ds_read_b64 {a_(AGA+2*j,2)}, v4 offset:{32*j}')
        o.append(f'ds_read_b64 {a_(AG2+2*j,2)}, v4 offset:{2048+32*j}')
    o.append(f's_and_b32 {sT1}, {sW}, 1')
    o.append(f's_lshl_b32 {sT1}, {sT1}, 6')
    o.append(f's_add_u32 {sT0}, {sT0}, {sT1}')
    o.append(f'v_lshrrev_b32 v5, 5, v{vL}')
    o.append(f'v_lshl_add_u32 v4, v5, 3, {sT0}')
    for q in range(4):
        o.append(f'ds_read_b64 {a_(AGB+2*q,2)}, v4 offset:{3072+16*q}')
    o.append(f's_lshl_b32 {sT0}, {sW}, 8')
    o.append(f's_add_u32 {sT0}, {sT0}, {MV+1024}')
    o.append(f'v_lshl_add_u32 v5, v5, 3, {sT0}')
    o.append(f'v_and_b32 v4, 4, v{vL}')
    o.append(f'v_lshl_add_u32 v4, v4, 8, v5')
    for i in range(8):
        for hr in range(2):
            o.append(f'ds_read_b64 {a_(AUA+4*i+2*hr,2)}, v4 offset:{(i>>1)*64+(i&1)*16+hr*32}')
    return o

def attention():
    QB, KB, VB = 96, 104, 114
    SC, SP = 124, 140
    LG, MX = 156, 164
    PB, OA, SM = 168, 184, 200
    MK, ONE, BIAS = 216, 220, 224
    OS = 228
    I(f'v_and_b32 v4, 1, v{vL}')
    I(f'v_cmp_eq_u32 {mP}, 1, v4')
    I(f'v_lshrrev_b32 v5, 4, v{vL}')
    I(f'v_lshl_add_u32 v5, v5, 2, v4')
    I(f'v_and_b32 v6, 15, v{vL}')
    I(f'v_cmp_le_u32 {mC0}, v5, v6')
    I(f'v_add_u32 v5, 2, v5')
    I(f'v_cmp_le_u32 {mC1}, v5, v6')
    I(f'v_mov_b32 v4, 0xffff')
    I(f'v_mov_b32 v5, 0xffff0000')
    I(f'v_cndmask_b32 v4, v4, v5, {mP}')
    I(f'v_cndmask_b32 v{MK+0}, v4, 0, {mC0}')
    I(f'v_cndmask_b32 v{MK+1}, v4, 0, {mC1}')
    I(f'v_cndmask_b32 v{MK+2}, 0, v4, {mC0}')
    I(f'v_cndmask_b32 v{MK+3}, 0, v4, {mC1}')
    for i in range(4): I(f'v_mov_b32 v{ONE+i}, 0x3f803f80')
    I(f's_cmp_eq_u32 {sRB64}, 0')
    I(f's_cselect_b32 {sT0}, {f2u(-4e9):#x}, 0')
    for i in range(4): I(f'v_mov_b32 v{BIAS+i}, {sT0}')
    def cvt(d, s):
        I(f'v_cvt_pk_bf16_f32 v{d}, v{s}, v{s+1}')
        I(f'v_cvt_pk_bf16_f32 v{d+1}, v{s+2}, v{s+3}')
    cvt(KB, accK(0))
    for T in range(1, 5):
        cvt(KB + 2*T, accK(T)); cvt(QB + 2*(T-1), accQ(T))
    for T in range(1, 5):
        t = T - 1
        I(f'v_mfma_f32_16x16x16_bf16 {v(SC+4*t,4)}, {v(KB+2*T,2)}, {v(QB+2*t,2)}, 0')
        if T == 1: cvt(VB, accV(0))
        I(f'v_mfma_f32_16x16x16_bf16 {v(SP+4*t,4)}, {v(KB+2*t,2)}, {v(QB+2*t,2)}, ' + (v(BIAS, 4) if T == 1 else '0'))
        cvt(VB + 2*T, accV(T))
    for t in range(4):
        for e in range(2):
            I(f'v_cndmask_b32 v{SC+4*t+2*e}, v{SC+4*t+2*e}, v{SC+4*t+2*e+1}, {mP}')
            I(f'v_cndmask_b32 v{SP+4*t+2*e}, v{SP+4*t+2*e}, v{SP+4*t+2*e+1}, {mP}')
            I(f'v_cndmask_b32 v{LG+2*t+e}, v{SP+4*t+2*e}, v{SC+4*t+2*e}, {mC1 if e else mC0}')
        I(f'v_max_f32 v{MX+t}, v{LG+2*t}, v{LG+2*t+1}')
    I(f'v_permlane16_swap_b32 v{MX}, v{MX+1}')
    I(f'v_permlane16_swap_b32 v{MX+2}, v{MX+3}')
    I(f'v_max_f32 v{MX}, v{MX}, v{MX+1}')
    I(f'v_max_f32 v{MX+2}, v{MX+2}, v{MX+3}')
    I(f'v_permlane32_swap_b32 v{MX}, v{MX+2}')
    I(f'v_max_f32 v{MX}, v{MX}, v{MX+2}')
    cs = 0.25 * LOG2E
    smov(sT0, f2u(cs))
    I(f'v_mul_f32 v{MX}, {f2u(-cs):#x}, v{MX}')
    I(f'v_mov_b32 v{MX+2}, v{MX}')
    I(f'v_permlane32_swap_b32 v{MX}, v{MX+2}')
    I(f'v_mov_b32 v{MX+1}, v{MX}')
    I(f'v_mov_b32 v{MX+3}, v{MX+2}')
    I(f'v_permlane16_swap_b32 v{MX}, v{MX+1}')
    I(f'v_permlane16_swap_b32 v{MX+2}, v{MX+3}')
    for t in range(4):
        for e in range(2): I(f'v_fma_f32 v{LG+2*t+e}, v{LG+2*t+e}, {sT0}, v{MX+t}')
    for t in range(4):
        for e in range(2): I(f'v_exp_f32 v{LG+2*t+e}, v{LG+2*t+e}')
    for t in range(4):
        for e in range(2): I(f'v_cvt_pk_bf16_f32 v{LG+2*t+e}, v{LG+2*t+e}, v{LG+2*t+e}')
        for i in range(4): I(f'v_and_b32 v{PB+4*t+i}, v{MK+i}, v{LG+2*t+(i&1)}')
        if t:
            u = t - 1
            I(f'v_mfma_f32_16x16x32_bf16 {v(SM+4*u,4)}, {v(ONE,4)}, {v(PB+4*u,4)}, 0')
            I(f'v_mfma_f32_16x16x32_bf16 {v(OA+4*u,4)}, {v(VB+2*u,4)}, {v(PB+4*u,4)}, 0')
    u = 3
    I(f'v_mfma_f32_16x16x32_bf16 {v(SM+4*u,4)}, {v(ONE,4)}, {v(PB+4*u,4)}, 0')
    I(f'v_mfma_f32_16x16x32_bf16 {v(OA+4*u,4)}, {v(VB+2*u,4)}, {v(PB+4*u,4)}, 0')
    I(f's_lshl_b32 {sT0}, {sRB64}, 16')
    I(f's_lshl_b32 {sT1}, {sHQ}, 11')
    I(f's_add_u32 {sT0}, {sT0}, {sT1}')
    I(f's_lshl_b32 {sT1}, {sW}, 9')
    I(f's_add_u32 {sT0}, {sT0}, {sT1}')
    I(f's_add_u32 {sT3}, {sT0}, {OB}')
    I(f's_add_u32 {sT4}, {sT3}, {2*16384}')
    I(f'v_bfe_u32 v5, v{vL}, 4, 1')
    I(f'v_lshlrev_b32 v5, 14, v5')
    I(f'v_lshrrev_b32 v6, 5, v{vL}')
    I(f'v_lshl_add_u32 v5, v6, 8, v5')
    I(f'v_and_b32 v6, 0xf0, v{vL16}')
    I(f'v_add_u32 v6, v5, v6')
    for t in range(4): I(f'v_rcp_f32 v{SM+4*t}, v{SM+4*t}')
    for t in range(4):
        for i in range(4): I(f'v_mul_f32 v{OA+4*t+i}, v{OA+4*t+i}, v{SM+4*t}')
        cvt(OS + 2*t, OA + 4*t)
    for pr in range(2):
        for i in range(2): I(f'v_permlane16_swap_b32 v{OS+4*pr+i}, v{OS+4*pr+2+i}')
    return [f'buffer_store_dwordx4 {v(OS,4)}, v6, {sWS}, {sT3} offen',
            f'buffer_store_dwordx4 {v(OS+4,4)}, v6, {sWS}, {sT4} offen']

vW1 = 11
def w1_setup():
    I(f'v_lshrrev_b32 v4, 2, v{vL}')
    I(f'v_mul_u32_u24 v{vW1}, 2752, v4')
    I(f'v_and_b32 v4, 0x30, v{vL16}')
    I(f's_mul_i32 {sT0}, {sR}, 192')
    I(f'v_add3_u32 v{vW1}, v{vW1}, v4, {sT0}')
    I(f's_mul_i32 {sSO}, {sW}, {16*2752}')
    I(f's_lshl_b32 {sM0B}, {sW}, 10')

def w1_issue(i):
    o = [f's_add_u32 {sT2}, {sSO}, {i*64*2752}']
    for t in range(3):
        o.append(f's_add_u32 m0, {sM0B}, {RB + t*32768 + i*4096 - 64*t}')
        o.append((f'buffer_load_dwordx4 v{vW1}, {sW1}, {sT2} offen offset:{64*t} lds', 'w1'))
    return o

X1 = 16
CG = 32
CAC = 64
CO = 96
CW = 160
def c_pre():
    I(f's_lshl_b32 {sT0}, {sRB64}, 16')
    I(f's_lshl_b32 {sT1}, {sW}, 14')
    I(f's_add_u32 {sT0}, {sT0}, {sT1}')
    I(f's_lshl_b32 {sT1}, {sHQ}, 7')
    I(f's_add_u32 {sT0}, {sT0}, {sT1}')
    I(f'v_and_b32 v4, 15, v{vL}')
    I(f'v_lshlrev_b32 v4, 10, v4')
    I(f'v_lshrrev_b32 v5, 4, v{vL}')
    I(f'v_lshl_add_u32 v4, v5, 3, v4')
    for j in range(4):
        I(f'buffer_load_dwordx2 {v(X1+4*j+2,2)}, v4, {sX}, {sT0} offen offset:{32*j}')
    for k in range(16):
        I(f'v_accvgpr_read_b32 v4, a{AGA+k}')
        I(f'v_lshlrev_b32 v{CG+2*k}, 16, v4')
        I(f'v_and_b32 v{CG+2*k+1}, 0xffff0000, v4')
    for j in range(4): tr_base(6 + j, j, 1024)
    for j in range(4):
        b = X1 + 4*j
        I(f'v_lshlrev_b32 v{b}, 16, v{b+2}')
        I(f'v_and_b32 v{b+1}, 0xffff0000, v{b+2}')
        I(f'v_lshlrev_b32 v{b+2}, 16, v{b+3}')
        I(f'v_and_b32 v{b+3}, 0xffff0000, v{b+3}')

def c_main():
    I(f's_lshl_b32 {sT0}, {sRB64}, 16')
    I(f's_lshl_b32 {sT1}, {sW}, 14')
    I(f's_add_u32 {sT0}, {sT0}, {sT1}')
    I(f's_add_u32 {sT0}, {sT0}, {OB}')
    for ks in range(16):
        if ks and ks % 4 == 0: I(f's_add_u32 {sT0}, {sT0}, 4096')
        I(f'buffer_load_dwordx4 {v(CO+4*ks,4)}, v{vL16}, {sWS}, {sT0} offen offset:{(ks&3)*1024} sc1')
    def rd(ks):
        return [f'ds_read_b64_tr_b16 {v(CW+16*(ks&1)+4*j+2*hr,2)}, v{6+j} offset:{RA+ks*4096+hr*512}' for j in range(4) for hr in range(2)]
    A.run(rd(0))
    for ks in range(16):
        mm = [f'v_mfma_f32_16x16x32_bf16 {v(CAC+4*j,4)}, {v(CW+16*(ks&1)+4*j,4)}, {v(CO+4*ks,4)}, ' + ('0' if ks == 0 else v(CAC+4*j,4)) for j in range(4)]
        A.run(weave(mm, rd(ks+1) if ks < 15 else []))

def c_epi():
    YT, YP = 96, 112
    I(f's_lshl_b32 {sT0}, {sRB64}, 16')
    I(f's_lshr_b32 {sT1}, {sW}, 1')
    I(f's_lshl_b32 {sT1}, {sT1}, 15')
    I(f's_add_u32 {sT0}, {sT0}, {sT1}')
    I(f's_lshl_b32 {sT1}, {sHQ}, 12')
    I(f's_add_u32 {sT0}, {sT0}, {sT1}')
    I(f's_and_b32 {sT1}, {sW}, 1')
    I(f's_lshl_b32 {sT1}, {sT1}, 8')
    I(f's_add_u32 {sT0}, {sT0}, {sT1}')
    I(f's_add_u32 {sT3}, {sT0}, {YB}')
    I(f'v_lshrrev_b32 v5, 4, v{vL}')
    I(f'v_and_b32 v6, 0xf0, v{vL16}')
    I(f'v_lshl_add_u32 v6, v5, 9, v6')
    I(f's_lshl_b32 {sT0}, {sRB64}, 12')
    I(f's_lshl_b32 {sT1}, {sW}, 10')
    I(f's_add_u32 {sT0}, {sT0}, {sT1}')
    I(f's_lshl_b32 {sT1}, {sHQ}, 3')
    I(f's_add_u32 {sT0}, {sT0}, {sT1}')
    I(f's_add_u32 {sT4}, {sT0}, {STATS}')
    I(f'v_and_b32 v7, 15, v{vL}')
    I(f'v_lshlrev_b32 v7, 6, v7')
    I(f'v_and_b32 v5, 1, v5')
    I(f'v_lshl_add_u32 v7, v5, 2, v7')
    for k in range(8): I(f'v_pk_fma_f32 {v(X1+2*k,2)}, {v(CAC+2*k,2)}, {v(CG+2*k,2)}, {v(X1+2*k,2)}')
    for k in range(8): I(f'v_pk_mul_f32 {v(YT+2*k,2)}, {v(X1+2*k,2)}, {v(CG+16+2*k,2)}')
    for k in range(8): I(f'v_cvt_pk_bf16_f32 v{YP+k}, v{YT+2*k}, v{YT+2*k+1}')
    I(f'v_pk_add_f32 v[8:9], {v(X1,2)}, {v(X1+2,2)}')
    I(f'v_pk_mul_f32 v[10:11], {v(X1,2)}, {v(X1,2)}')
    for k in range(1, 8):
        if k > 1: I(f'v_pk_add_f32 v[8:9], v[8:9], {v(X1+2*k,2)}')
        I(f'v_pk_fma_f32 v[10:11], {v(X1+2*k,2)}, {v(X1+2*k,2)}, v[10:11]')
    I(f'v_add_f32 v8, v8, v9')
    I(f'v_add_f32 v10, v10, v11')
    I(f'v_permlane16_swap_b32 v8, v10')
    I(f'v_add_f32 v8, v8, v10')
    I(f'v_mov_b32 v10, v8')
    I(f'v_permlane32_swap_b32 v8, v10')
    I(f'v_add_f32 v8, v8, v10')
    return [f'buffer_store_dwordx4 {v(YP,4)}, v6, {sWS}, {sT3} offen',
            f'buffer_store_dwordx4 {v(YP+4,4)}, v6, {sWS}, {sT3} offen offset:2048',
            f'buffer_store_dword v8, v7, {sWS}, {sT4} offen']

vW2, vW2R = 12, 13
W2R = [(0, 15), (15, 15), (30, 14)]
def w2_setup():
    I(f'v_lshrrev_b32 v4, 3, v{vL}')
    I(f'v_lshlrev_b32 v{vW2}, 10, v4')
    I(f'v_and_b32 v4, 16, v{vL}')
    I(f'v_lshlrev_b32 v4, 2, v4')
    I(f'v_xor_b32 v4, v4, v{vL16}')
    I(f'v_and_b32 v4, 0x70, v4')
    I(f's_lshl_b32 {sT0}, {sHQ}, 7')
    I(f'v_add3_u32 v{vW2}, v{vW2}, v4, {sT0}')
    I(f's_mul_i32 s3, {sW}, {352*1024}')
    I(f's_mul_i32 s4, {sW}, {15*K}')
    I(f'v_lshrrev_b32 v4, 5, v{vL}')
    I(f'v_lshlrev_b32 v{vW2R}, 9, v4')
    I(f'v_bfe_u32 v4, v{vL}, 2, 2')
    I(f'v_lshl_add_u32 v{vW2R}, v4, 7, v{vW2R}')
    I(f'v_bfe_u32 v4, v{vL}, 3, 1')
    I(f's_and_b32 {sT0}, {sW}, 1')
    I(f'v_xor_b32 v4, {sT0}, v4')
    I(f'v_lshl_add_u32 v{vW2R}, v4, 6, v{vW2R}')
    I(f'v_bfe_u32 v4, v{vL}, 4, 1')
    I(f'v_lshl_add_u32 v{vW2R}, v4, 5, v{vW2R}')
    I(f'v_and_b32 v4, 3, v{vL}')
    I(f'v_lshl_add_u32 v{vW2R}, v4, 3, v{vW2R}')
    I(f'v_add_u32 v{vW2R}, s4, v{vW2R}')
    I(f'v_xor_b32 v{vW2R+1}, 64, v{vW2R}')

def w2_issue(rnd):
    o = []
    b0, n = W2R[rnd]
    for i in range(n):
        o.append(f's_add_u32 m0, s4, {RA + i*1024}')
        o.append(f's_add_u32 {sT2}, s3, {(b0+i)*8192}')
        o.append((f'buffer_load_dwordx4 v{vW2}, {sW2}, {sT2} offen lds', f'w2_{rnd}'))
    return o

def w2_read(rnd):
    o = []
    b0, n = W2R[rnd]
    for i in range(n):
        s, hr = divmod(b0 + i, 2)
        for slot in range(2):
            o.append(f'ds_read_b64_tr_b16 {a_(8*s+4*slot+2*hr,2)}, v{vW2R+slot} offset:{RA+i*1024}')
    return o

DAC = 32
DW = 80
DST = 104
DY = 128
vD = 6
vUT = 120
vSB, vRS = 123, 124
def d_setup():
    I(f'v_lshrrev_b32 v4, 5, v{vL}')
    I(f'v_lshlrev_b32 v{vD}, 8, v4')
    I(f'v_bfe_u32 v4, v{vL}, 2, 2')
    I(f'v_lshl_add_u32 v{vD}, v4, 6, v{vD}')
    I(f'v_bfe_u32 v4, v{vL}, 4, 1')
    I(f'v_lshl_add_u32 v{vD}, v4, 5, v{vD}')
    I(f'v_and_b32 v4, 3, v{vL}')
    I(f'v_lshl_add_u32 v{vD}, v4, 3, v{vD}')
    I(f'v_add_u32 v{vD}, {RB}, v{vD}')
    I(f'v_add_u32 v{vD+1}, 32768, v{vD}')
    I(f'v_add_u32 v{vD+2}, 65536, v{vD}')

def w1_rd(k16, buf, base=vD):
    return [f'ds_read_b64_tr_b16 {v(DW+12*buf+4*t+2*hr,2)}, v{base+t} offset:{(k16>>1)*2048+hr*1024+(k16&1)*512}' for t in range(3) for hr in range(2)]

def d_ut():
    I(f's_lshl_b32 {sT0}, {sW}, 13')
    for t in range(3): I(f'v_add_u32 v{9+t}, {sT0}, v{vD+t}')
    A.run(w1_rd(0, 0, 9))
    for i in range(8):
        mm = [f'v_mfma_f32_32x32x16_bf16 {v(DAC+16*t,16)}, {a_(AUA+4*i,4)}, {v(DW+12*(i&1)+4*t,4)}, ' + ('0' if i == 0 else v(DAC+16*t,16)) for t in range(3)]
        A.run(weave(mm, w1_rd(i+1, (i+1)&1, 9) if i < 7 else []))
    I(f's_mul_i32 {sT0}, {sW}, 768')
    I(f's_add_u32 {sT0}, {sT0}, {UT}')
    I(f'v_lshl_add_u32 v4, v{vL}, 2, {sT0}')
    for t in range(3): I(f'ds_write_b32 v4, v{DAC+16*t} offset:{256*t}')
    A.barrier()
    I(f'v_lshlrev_b32 v4, 2, v{vL}')
    I(f'v_add_u32 v4, {UT}, v4')
    for w in range(4):
        for t in range(3): I(f'ds_read_b32 v{DAC+3*w+t}, v4 offset:{768*w+256*t}')
    for t in range(3):
        I(f'v_add_f32 v{DAC+t}, v{DAC+t}, v{DAC+3+t}')
        I(f'v_add_f32 v{DAC+6+t}, v{DAC+6+t}, v{DAC+9+t}')
        I(f'v_add_f32 v{vUT+t}, v{DAC+t}, v{DAC+6+t}')

def stats_load(dst, row_sgpr):
    I(f'v_and_b32 v4, 31, v{vL}')
    I(f'v_lshlrev_b32 v4, 6, v4')
    I(f'v_and_b32 v5, 32, v{vL}')
    I(f'v_add_u32 v4, v4, v5')
    I(f's_lshl_b32 {sT1}, {row_sgpr}, 6')
    I(f's_add_u32 {sT1}, {sT1}, {STATS}')
    I(f'buffer_load_dwordx4 {v(dst,4)}, v4, {sWS}, {sT1} offen sc1')
    I(f'buffer_load_dwordx4 {v(dst+4,4)}, v4, {sWS}, {sT1} offen offset:16 sc1')

def stats_ops(d):
    o = []
    for e in range(2):
        o.append(f'v_add_f32 v{d+e}, v{d+e}, v{d+2+e}')
        o.append(f'v_add_f32 v{d+4+e}, v{d+4+e}, v{d+6+e}')
    for e in range(2): o.append(f'v_add_f32 v{d+e}, v{d+e}, v{d+4+e}')
    for e in range(2): o.append(f'v_mov_b32 v{d+2+e}, v{d+e}')
    for e in range(2): o.append(f'v_permlane32_swap_b32 v{d+e}, v{d+2+e}')
    for e in range(2): o.append(f'v_add_f32 v{d+e}, v{d+e}, v{d+2+e}')
    o.append(f'v_mul_f32 v{d}, {f2u(1/512):#x}, v{d}')
    o.append(f'v_mov_b32 v{d+2}, {f2u(1e-5):#x}')
    o.append(f'v_fmac_f32 v{d+2}, {f2u(1/512):#x}, v{d+1}')
    o.append(f'v_fma_f32 v{d+1}, -v{d}, v{d}, v{d+2}')
    o.append(f'v_max_f32 v{d+1}, {f2u(1e-5):#x}, v{d+1}')
    return o

def d_main():
    I(f's_lshl_b32 {sT0}, {sGRP}, 2')
    I(f's_add_u32 {sT0}, {sT0}, {sW}')
    I(f's_lshl_b32 {sT3}, {sT0}, 5')
    stats_load(DST, sT3)
    I(f's_lshl_b32 {sT0}, {sT0}, 15')
    I(f's_add_u32 {sT0}, {sT0}, {YB}')
    for k in range(32):
        if k and k % 4 == 0: I(f's_add_u32 {sT0}, {sT0}, 4096')
        I(f'buffer_load_dwordx4 {v(DY+4*k,4)}, v{vL16}, {sWS}, {sT0} offen offset:{(k&3)*1024} sc1')
    A.run(w1_rd(0, 0))
    A.run(stats_ops(DST))
    I(f'v_sqrt_f32 v{DST+1}, v{DST+1}')
    I(f'v_cmp_gt_u32 vcc, 32, v{vL}')
    I(f'v_sub_f32 v{DST}, 0, v{DST}')
    I(f'v_cndmask_b32 v{vSB}, v{DST}, v{DST+1}, vcc')
    for t in range(3):
        I(f'v_mfma_f32_32x32x2_f32 {v(DAC+16*t,16)}, v{vUT+t}, v{vSB}, 0')
    for k in range(32):
        mm = [f'v_mfma_f32_32x32x16_bf16 {v(DAC+16*t,16)}, {v(DW+12*(k&1)+4*t,4)}, {v(DY+4*k,4)}, {v(DAC+16*t,16)}' for t in range(3)]
        A.run(weave(mm, w1_rd(k+1, (k+1)&1) if k < 31 else []))

def d_epi():
    HP = 128
    I(f's_lshl_b32 {sT0}, {sGRP}, 2')
    I(f's_add_u32 {sT0}, {sT0}, {sW}')
    I(f's_mul_i32 {sT0}, {sT0}, {86*1024}')
    I(f's_mul_i32 {sT1}, {sR}, {6*1024}')
    I(f's_add_u32 {sT0}, {sT0}, {sT1}')
    I(f's_add_u32 {sT2}, {sT0}, {HB}')
    I(f's_add_u32 {sT3}, {sT2}, 2048')
    I(f's_add_u32 {sT4}, {sT2}, 4096')
    I(f's_cmp_ge_u32 {sR}, 14')
    I(f's_cselect_b32 {sT3}, {WS_SIZE:#x}, {sT3}')
    I(f's_cselect_b32 {sT4}, {WS_SIZE:#x}, {sT4}')
    st = []
    for t in range(3):
        for k in range(8): I(f'v_cvt_pk_bf16_f32 v{HP+8*t+k}, v{DAC+16*t+2*k}, v{DAC+16*t+2*k+1}')
        for k in range(8): I(f'v_pk_max_i16 v{HP+8*t+k}, v{HP+8*t+k}, 0')
        for s in range(2):
            st.append(f'buffer_store_dwordx4 {v(HP+8*t+4*s,4)}, v{vL16}, {sWS}, {[sT2,sT3,sT4][t]} offen offset:{1024*s}')
    return st

EH = 80
EAC = 176
XE = 32
EX = RB
XT = RB + 48 * K
def e_pre():
    I(f's_lshl_b32 {sT0}, {sW}, 4')
    I(f'v_and_b32 v4, 15, v{vL}')
    I(f'v_add_u32 v4, {sT0}, v4')
    I(f'v_mul_u32_u24 v4, 272, v4')
    I(f'v_and_b32 v5, 0x30, v{vL}')
    I(f'v_add_u32 v4, v4, v5')
    I(f'v_add_u32 v4, {XT}, v4')
    for j in range(4): I(f'ds_write_b128 v4, {v(X1+4*j,4)} offset:{64*j}')
    I(f's_lshl_b32 {sT0}, {sRB64}, 1')
    I(f's_lshr_b32 {sT1}, {sW}, 1')
    I(f's_add_u32 {sT0}, {sT0}, {sT1}')
    I(f's_lshl_b32 {sT3}, {sT0}, 5')
    stats_load(48, sT3)
    A.barrier()
    I(f's_lshr_b32 {sT0}, {sW}, 1')
    I(f's_mul_i32 {sT0}, {sT0}, {32*272}')
    I(f's_and_b32 {sT1}, {sW}, 1')
    I(f's_lshl_b32 {sT1}, {sT1}, 7')
    I(f's_add_u32 {sT0}, {sT0}, {sT1}')
    I(f's_add_u32 {sT0}, {sT0}, {XT}')
    I(f'v_and_b32 v4, 31, v{vL}')
    I(f'v_mul_u32_u24 v4, 272, v4')
    I(f'v_lshrrev_b32 v5, 5, v{vL}')
    I(f'v_lshlrev_b32 v5, 4, v5')
    I(f'v_add3_u32 v4, v4, v5, {sT0}')
    for q in range(4): I(f'ds_read_b128 {v(XE+4*q,4)}, v4 offset:{32*q}')
    A.run(stats_ops(48))
    I(f'v_rsq_f32 v48, v49')
    for k in range(8):
        I(f'v_accvgpr_read_b32 v4, a{AGB+k}')
        I(f'v_lshlrev_b32 v{56+2*k}, 16, v4')
        I(f'v_and_b32 v{57+2*k}, 0xffff0000, v4')
    for k in range(16): I(f'v_mul_f32 v{56+k}, v48, v{56+k}')

def e_mask():
    I(f's_mul_i32 {sT0}, {sW}, 11')
    I(f'v_lshrrev_b32 v4, 2, v{vL}')
    I(f'v_mul_u32_u24 v4, 3, v4')
    I(f'v_add_u32 v5, 2, v4')
    I(f'v_cmp_le_u32 {mC0}, {sT0}, v5')
    I(f's_add_u32 {sT0}, {sT0}, 10')
    I(f's_min_u32 {sT0}, {sT0}, 42')
    I(f'v_cmp_ge_u32 {mC1}, {sT0}, v4')
    I(f'v_bfe_u32 v4, v{vL}, 1, 1')
    I(f's_and_b32 {sT0}, {sRB64}, 1')
    I(f'v_cmp_eq_u32 {mP}, {sT0}, v4')
    I(f's_and_b64 {mC0}, {mC0}, {mC1}')
    I(f's_and_b64 {mC0}, {mC0}, {mP}')

def e_main():
    I(f's_lshr_b32 {sT0}, {sW}, 1')
    I(f's_lshl_b32 {sT1}, {sRB64}, 1')
    I(f's_add_u32 {sT1}, {sT1}, {sT0}')
    I(f's_xor_b32 {sT0}, {sT1}, 1')
    I(f's_mul_i32 {sT0}, {sT0}, {86*1024}')
    I(f's_mul_i32 {sT1}, {sT1}, {86*1024}')
    I(f's_mul_i32 {sT2}, {sW}, {22*1024}')
    I(f's_add_u32 {sT2}, {sT2}, {HB}')
    I(f's_add_u32 {sT0}, {sT0}, {sT2}')
    I(f's_add_u32 {sT1}, {sT1}, {sT2}')
    smov(sT2, 4096)
    I(f's_cmp_eq_u32 {sW}, 3')
    I(f's_cselect_b32 {sT2}, {WS_SIZE:#x}, {sT2}')
    for rel, sg in ((0, sT0), (1, sT1)):
        for i in range(22):
            if i and i % 4 == 0: I(f's_add_u32 {sg}, {sg}, ' + (sT2 if i == 20 else '4096'))
            I(f'buffer_load_dwordx4 {v(EH+88*rel+4*i,4)}, v{vL16}, {sWS}, {sg} offen offset:{(i&3)*1024} sc1')
    for rel in (1, 2, 3):
        I(f's_xor_b32 {sT0}, {sW}, {rel}')
        I(f's_mul_i32 {sT0}, {sT0}, 12288')
        I(f's_add_u32 {sT0}, {sT0}, {EX + (rel-1)*4096}')
        I(f'v_add_u32 v{5+rel}, {sT0}, v{vL16}')
    def mm(tile, slot, rel, i):
        d = a_(EAC + 16*tile, 16)
        return f'v_mfma_f32_32x32x16_bf16 {d}, {a_(8*i+4*slot,4)}, {v(EH+88*rel+4*i,4)}, ' + ('0' if i == 0 else d)
    def wr(tile): return [f'ds_write_b128 v{5+tile}, {a_(EAC+16*tile+4*q,4)} offset:{1024*q}' for q in range(4)]
    for i in range(22):
        I(mm(2, 0, 0, i)); I(mm(3, 1, 0, i))
    m2 = []
    for i in range(22):
        m2 += [mm(1, 1, 1, i), mm(0, 0, 1, i)]
    A.run(weave(m2, wr(2) + wr(3), per=1, start=12))
    A.run(wr(1))
    I(f's_mul_i32 {sT0}, {sW}, 12288')
    I(f's_add_u32 {sT0}, {sT0}, {EX}')
    I(f'v_add_u32 v4, {sT0}, v{vL16}')
    for k in range(16): I(f'v_accvgpr_read_b32 v{EH+k}, a{EAC+k}')
    A.barrier()
    for rel in range(3):
        for q in range(4): I(f'ds_read_b128 {v(EH+16+16*rel+4*q,4)}, v4 offset:{4096*rel+1024*q}')
    I(f's_lshl_b32 {sT0}, {sRB64}, 16')
    I(f's_lshr_b32 {sT1}, {sW}, 1')
    I(f's_lshl_b32 {sT1}, {sT1}, 15')
    I(f's_add_u32 {sT0}, {sT0}, {sT1}')
    I(f's_lshl_b32 {sT1}, {sHQ}, 7')
    I(f's_add_u32 {sT0}, {sT0}, {sT1}')
    I(f's_and_b32 {sT1}, {sW}, 1')
    I(f's_lshl_b32 {sT1}, {sT1}, 6')
    I(f's_add_u32 {sT0}, {sT0}, {sT1}')
    I(f'v_and_b32 v5, 31, v{vL}')
    I(f'v_lshlrev_b32 v5, 10, v5')
    I(f'v_lshrrev_b32 v6, 5, v{vL}')
    I(f'v_lshl_add_u32 v5, v6, 4, v5')
    for rel in range(3):
        for k in range(8): I(f'v_pk_add_f32 {v(EH+2*k,2)}, {v(EH+2*k,2)}, {v(EH+16+16*rel+2*k,2)}')
    for k in range(8): I(f'v_pk_fma_f32 {v(EH+2*k,2)}, {v(EH+2*k,2)}, {v(56+2*k,2)}, {v(XE+2*k,2)}')
    for k in range(8): I(f'v_cvt_pk_bf16_f32 v{EH+16+k}, v{EH+2*k}, v{EH+2*k+1}')
    for pr in range(2):
        for i in range(2): I(f'v_permlane32_swap_b32 v{EH+16+4*pr+i}, v{EH+16+4*pr+2+i}')
    for pr in range(2):
        I(f'buffer_store_dwordx4 {v(EH+16+4*pr,4)}, v5, {sOUT}, {sT0} offen offset:{32*pr}')

def preread():
    d = 74
    I(f'v_lshlrev_b32 v4, 7, v{vL}')
    I(f's_lshl_b32 {sT0}, {sGRP}, 2')
    I(f's_add_u32 {sT0}, {sT0}, {sW}')
    I(f's_mul_i32 {sT0}, {sT0}, {86*1024}')
    I(f's_mul_i32 {sT1}, {sR}, {6*1024}')
    I(f's_add_u32 {sT0}, {sT0}, {sT1}')
    I(f's_add_u32 {sT0}, {sT0}, {HB}')
    I(f'buffer_load_dword v{d}, v4, {sWS}, {sT0} offen')
    I(f's_lshl_b32 {sT0}, {sRB64}, 16')
    I(f's_lshl_b32 {sT1}, {sHQ}, 13')
    I(f's_add_u32 {sT0}, {sT0}, {sT1}')
    I(f's_add_u32 {sT1}, {sT0}, {YB}')
    I(f's_add_u32 {sT0}, {sT0}, {OB}')
    I(f's_cmp_eq_u32 {sW}, 1')
    I(f's_cselect_b32 {sT0}, {sT1}, {sT0}')
    I(f's_lshl_b32 {sT1}, {sGRP}, 13')
    I(f's_add_u32 {sT1}, {sT1}, {STATS}')
    I(f's_cmp_eq_u32 {sW}, 2')
    I(f's_cselect_b32 {sT0}, {sT1}, {sT0}')
    I(f's_lshl_b32 {sT1}, {sGRP}, 11')
    I(f's_add_u32 {sT1}, {sT1}, {FLAGS}')
    I(f's_cmp_eq_u32 {sW}, 3')
    I(f's_cselect_b32 {sT0}, {sT1}, {sT0}')
    I(f'buffer_load_dword v{d+1}, v4, {sWS}, {sT0} offen')

def finish():
    if DEBUG:
        A.vm0()
        ts('end')
        A._emit(__import__('asm').Ins('s_memrealtime s[6:7]'))
        A.lg0(force=True)
        for i in range(32):
            I(f'v_writelane_b32 v4, s{70+i}, {i}')
        I('v_writelane_b32 v4, s6, 32'); I('v_writelane_b32 v4, s7, 33'); I(f'v_writelane_b32 v4, {sFAST}, 34'); I(f'v_writelane_b32 v4, {sXCC}, 35')
        I(f's_lshl_b32 {sT0}, s2, 2')
        I(f's_add_u32 {sT0}, {sT0}, {sW}')
        I(f's_lshl_b32 {sT0}, {sT0}, 8')
        I(f's_add_u32 {sT0}, {sT0}, {TSB}')
        I(f'v_lshlrev_b32 v5, 2, v{vL}')
        I(f'buffer_store_dword v4, v5, {sWS}, {sT0} offen')
    A.label('L_end')
    I('s_endpgm')

def main():
    prologue()
    I(f's_load_dwordx2 {TAG}, s[40:41], {GEN}')
    ts('karg')
    I(f's_cmp_ge_u32 {sRK}, 12')
    A.settle()
    I('s_cbranch_scc1 L_nomod1')
    A.cond = 'mod'; mod_issue(); A.cond = None
    A.label('L_nomod1')
    ts('modiss')
    x_issue()
    ts('xiss')
    wq_setup()
    for s in range(6):
        A.run(wq_issue(s)); ts(f'is{s}')
    I(f's_add_u32 s44, s44, 0x7f4a7c15')
    I(f's_addc_u32 s45, s45, 0x9e3779b9')
    I(f's_lshl_b32 {sT0}, {sGRP}, 4')
    I(f's_add_u32 {sT0}, {sT0}, {sR}')
    I(f's_lshl_b32 {sT0}, {sT0}, 4')
    I(f's_add_u32 {sT0}, {sT0}, {HELLO}')
    I(f'v_mov_b32 v76, {sXCC}')
    I(f'v_mov_b32 v77, 0')
    I(f'v_mov_b32 v78, s44')
    I(f'v_mov_b32 v79, s45')
    I(f'v_lshlrev_b32 v4, 24, v0')
    I(f'buffer_store_dwordx4 v[76:79], v4, {sWS}, {sT0} offen sc1')
    I(f's_lshl_b32 {sT0}, {sGRP}, 11')
    I(f's_add_u32 {sT0}, {sT0}, {FLAGS}')
    I(f'v_lshl_add_u32 v{vFO}, v{vL}, 3, {sT0}')
    ts('issued')
    I(f's_cmp_ge_u32 {sRK}, 12')
    A.settle()
    I('s_cbranch_scc1 L_nomod2')
    A.cond = 'mod'; mod_compute(); A.settle(); A.cond = None
    A.label('L_nomod2')
    ts('modpub')
    wq_trsetup()
    xs = x_ops()
    for o in xs[:6]: A.run(o)
    ts('x6')
    A.waitvm('slab1'); A.barrier()
    ts('b0')
    A.run(weave(xs[6] + xs[7], wq_read(0) + wq_read(1), per=1))
    ts('r0')
    A.waitvm('slab3'); A.barrier()
    ts('b1')
    A.run(wq_issue(6) + wq_issue(7))
    A.run(weave(xs[8] + xs[9], wq_read(2) + wq_read(3), per=1))
    wo_setup()
    ts('r1')
    A.waitvm('slab5'); A.barrier()
    ts('b2')
    for g in range(6): A.run(wo_issue(g))
    A.run(weave(xs[10] + xs[11], wq_read(4) + wq_read(5), per=1))
    ts('r2')
    A.waitvm('slab7'); A.barrier()
    ts('b3')
    for g in range(6, 8): A.run(wo_issue(g))
    preread()
    A.run(weave(xs[12], wq_read(6) + wq_read(7), per=1))
    A.lg0()
    h_setup()
    ts('wdone')
    gather()
    ts('gath')
    A.barrier()
    for c in range(4):
        A.run(h_gsread(c)); A.run(h_conv(c))
    qkv_setup()
    A.run(modvec_read())
    A.barrier()
    ts('hdone')
    A.run(h_read(0))
    for ks in range(16):
        A.run(weave(qkv_mfma(ks), h_read(ks+1) if ks < 15 else [], per=1, start=3))
    A.barrier()
    ts('qkv')
    st = attention()
    publish(st, 0)
    ts('opub')
    if STOP == 'B': return finish()
    w1_setup()
    for i in range(8): A.run(w1_issue(i))
    c_pre()
    I(f's_bitcmp1_b32 {sRB64}, 0')
    I(f's_cselect_b32 s62, 0, -1')
    I(f's_cselect_b32 s63, -1, 0')
    poll(0, mC0)
    ts('opoll')
    A.barrier()
    c_main()
    st = c_epi()
    publish(st, 1)
    ts('ypub')
    if STOP == 'C': return finish()
    A.barrier()
    w2_setup()
    A.run(w2_issue(0))
    d_setup()
    d_ut()
    for r in range(3):
        A.waitvm(f'w2_{r}')
        A.run(w2_read(r))
        A.lg0()
        if r < 2: A.run(w2_issue(r + 1))
    ts('w2')
    I(f's_cmp_eq_u32 {sR}, 15')
    A.settle()
    I('s_cbranch_scc1 L_noD')
    I(f's_bitcmp1_b32 {sW}, 0')
    smov(sT1, 0xcccccccc)
    I(f's_cselect_b32 {sT0}, {sT1}, 0x33333333')
    I(f's_bitcmp1_b32 {sW}, 1')
    I(f's_cselect_b32 s62, 0, {sT0}')
    I(f's_cselect_b32 s63, {sT0}, 0')
    poll(1, mC0)
    ts('ypoll')
    d_main()
    st = d_epi()
    publish(st, 2)
    A.settle()
    I('s_branch L_doneD')
    A.label('L_noD')
    I(f's_bitcmp1_b32 {sRB64}, 0')
    I(f's_cselect_b32 s62, 0, -1')
    I(f's_cselect_b32 s63, -1, 0')
    poll(1, mC0)
    I(f's_lshl_b32 {sT0}, {sGRP}, 2')
    I(f's_add_u32 {sT0}, {sT0}, {sW}')
    I(f's_cmp_lg_u32 {sT0}, 0')
    I('s_cbranch_scc1 L_doneD')
    smov(sCNT, SPIN)
    smov(sT0, HELLO)
    A.label('L_gen')
    for i in range(4): I(f'buffer_load_dwordx4 {v(32+4*i,4)}, v{vL16}, {sWS}, {sT0} offen offset:{1024*i} sc1')
    A.vm0()
    I(f'v_cmp_ne_u64 vcc, {TAG}, v[34:35]')
    I(f'v_cmp_ne_u64 {mP}, {TAG}, v[38:39]')
    I(f'v_cmp_ne_u64 {mC0}, {TAG}, v[42:43]')
    I(f'v_cmp_ne_u64 {mC1}, {TAG}, v[46:47]')
    I(f's_or_b64 vcc, vcc, {mP}')
    I(f's_or_b64 {mC0}, {mC0}, {mC1}')
    I(f's_or_b64 vcc, vcc, {mC0}')
    I(f's_cbranch_scc0 L_gend')
    I(f's_sub_u32 {sCNT}, {sCNT}, 1')
    I(f's_cbranch_scc0 L_gen')
    A.label('L_gend')
    I(f'v_mov_b32 v14, s44')
    I(f'v_mov_b32 v15, s45')
    I(f'v_lshlrev_b32 v4, 24, v{vL}')
    smov(sT0, GEN)
    I(f'buffer_store_dwordx2 v[14:15], v4, {sWS}, {sT0} offen sc1')
    A.settle()
    A.label('L_doneD')
    ts('hpub')
    if STOP == 'D': return finish()
    A.barrier()
    e_pre()
    e_mask()
    poll(2, mC0)
    ts('hpoll')
    e_main()
    finish()

main()
hdr = open(f'cdna_kernels/{NAME}.s.ref').read().split('\n')
head = [l for l in hdr if l.startswith(';') and '@launch' not in l]
out = '\n'.join(head) + '\n; @launch grid=(256,1,1) block=(256,1,1) lds=163840\n'
out += f'''.amdgcn_target "amdgcn-amd-amdhsa--gfx950"
.text
.globl {NAME}_kernel
.p2align 8
.type {NAME}_kernel,@function
{NAME}_kernel:
'''
out += A.text()
out += f'''.section .rodata,"a"
.p2align 6
.amdhsa_kernel {NAME}_kernel
  .amdhsa_next_free_vgpr 512
  .amdhsa_next_free_sgpr 102
  .amdhsa_accum_offset 256
  .amdhsa_group_segment_fixed_size 0
  .amdhsa_kernarg_size 88
  .amdhsa_user_sgpr_count 2
  .amdhsa_user_sgpr_kernarg_segment_ptr 1
  .amdhsa_system_sgpr_workgroup_id_x 1
.end_amdhsa_kernel
'''
dst = sys.argv[1]
open(dst, 'w').write(out)
if DEBUG: open(dst + '.ts', 'w').write(','.join(tsnames))
print(A.stats, 'nops', A.nnop, 'waits', A.nwait, file=sys.stderr)
```

```python
import re

REG_RE = re.compile(r'^(-|\|)?([vas])(?:(\d+)|\[(\d+):(\d+)\])\|?$')
TRANS = ('v_exp_f32', 'v_log_f32', 'v_rcp_f32', 'v_rsq_f32', 'v_sqrt_f32', 'v_sin_f32', 'v_cos_f32')


def regs_of(op):
    op = op.strip()
    if op == 'vcc':
        return {('s', 106), ('s', 107)}
    if op == 'vcc_lo':
        return {('s', 106)}
    if op == 'vcc_hi':
        return {('s', 107)}
    if op == 'exec':
        return {('s', 126), ('s', 127)}
    if op == 'exec_lo':
        return {('s', 126)}
    if op == 'exec_hi':
        return {('s', 127)}
    if op == 'm0':
        return {('s', 124)}
    m = REG_RE.match(op)
    if not m:
        return set()
    k = m.group(2)
    if m.group(3) is not None:
        return {(k, int(m.group(3)))}
    return {(k, i) for i in range(int(m.group(4)), int(m.group(5)) + 1)}


VCC = {('s', 106), ('s', 107)}
EXEC = {('s', 126), ('s', 127)}
M0 = {('s', 124)}


class Ins:
    __slots__ = ('text', 'mn', 'cls', 'w', 'r', 'states', 'A', 'B', 'C', 'passes', 'sgemm', 'dpp', 'wide', 'data', 'dma', 'dot')

    def __init__(self, text):
        self.text = text
        t = text.split(';')[0].strip()
        parts = t.split(None, 1)
        mn = parts[0]
        rest = parts[1] if len(parts) > 1 else ''
        ops, depth, cur = [], 0, ''
        for ch in rest:
            if ch == '[':
                depth += 1
            if ch == ']':
                depth -= 1
            if ch == ',' and depth == 0:
                ops.append(cur.strip()); cur = ''
            else:
                cur += ch
        if cur.strip():
            ops.append(cur.strip())
        mods = ''
        if ops:
            last = ops[-1].split(None, 1)
            ops[-1] = last[0]
            mods = last[1] if len(last) > 1 else ''
        self.mn = mn
        self.states = 1
        self.A = self.B = self.C = set()
        self.passes = 0
        self.sgemm = False
        self.dpp = False
        self.wide = False
        self.data = set()
        self.dma = False
        self.dot = False
        R = [regs_of(o) for o in ops]
        U = lambda l: set().union(*l) if l else set()
        base = re.sub(r'_(e32|e64|dpp|sdwa)$', '', mn)
        if mn.startswith('v_mfma'):
            self.cls = 'mfma'
            self.w = R[0]; self.A, self.B, self.C = R[1], R[2], R[3]
            self.r = R[1] | R[2] | R[3]
            if '32x32x16' in mn: self.passes = 8
            elif '16x16x32' in mn or '16x16x16' in mn: self.passes = 4
            elif '32x32x2_f32' in mn: self.passes = 16; self.sgemm = True
            elif '16x16x4_f32' in mn: self.passes = 8; self.sgemm = True
            else: raise ValueError(mn)
        elif mn.startswith('v_'):
            self.cls = 'valu'
            self.dpp = ('dpp' in mn) or any(k in mods for k in ('row_', 'quad_perm', 'wave_'))
            if base.startswith('v_permlane') and 'swap' in base:
                self.w = R[0] | R[1]; self.r = R[0] | R[1]
            elif base.startswith('v_cmpx'):
                self.w = set(EXEC) | R[0]; self.r = U(R[1:])
            elif base in ('v_add_co_u32', 'v_sub_co_u32', 'v_addc_co_u32', 'v_subb_co_u32', 'v_mad_u64_u32'):
                self.w = R[0] | R[1]; self.r = U(R[2:])
            elif base == 'v_nop':
                self.w = set(); self.r = set()
            else:
                self.w = R[0]; self.r = U(R[1:])
                if base in ('v_fmac_f32', 'v_dot2c_f32_bf16', 'v_writelane_b32', 'v_pk_fmac_f16') or self.dpp:
                    self.r = self.r | R[0]
                if base == 'v_cndmask_b32' and len(ops) == 3:
                    self.r = self.r | VCC
            self.dot = base.startswith('v_dot')
        elif mn.startswith('ds_'):
            self.cls = 'ds'
            if mn.startswith('ds_read') or mn.startswith('ds_bpermute') or mn.startswith('ds_permute') or mn.startswith('ds_swizzle'):
                self.w = R[0]; self.r = U(R[1:])
            else:
                self.w = set(); self.r = U(R)
        elif mn.startswith('buffer_') or mn.startswith('global_'):
            self.cls = 'vmem'
            allm = ' ' + mods + ' '
            if mn in ('buffer_wbl2', 'buffer_inv'):
                self.w = set(); self.r = set()
            elif ' lds ' in allm:
                self.dma = True
                self.w = set(); self.r = U(R) | M0
            elif 'load' in mn:
                self.w = R[0]; self.r = U(R[1:])
            elif mn.startswith('buffer_store'):
                self.w = set(); self.r = U(R); self.data = R[0]
                self.wide = mn.endswith('x4') or mn.endswith('x3')
            elif mn.startswith('global_store'):
                self.w = set(); self.r = U(R); self.data = R[1]
                self.wide = mn.endswith('x4') or mn.endswith('x3')
            else:
                raise ValueError(mn)
        elif mn.startswith('s_'):
            if mn.startswith('s_load') or mn.startswith('s_memtime') or mn.startswith('s_memrealtime'):
                self.cls = 'smem'; self.w = R[0]; self.r = U(R[1:])
            else:
                self.cls = 'salu'
                if mn == 's_nop':
                    self.states = int(ops[0]) + 1; self.w = set(); self.r = set()
                elif mn.startswith('s_cmp') or mn.startswith('s_cbranch') or mn.startswith('s_bitcmp') or mn in ('s_branch', 's_waitcnt', 's_barrier', 's_endpgm', 's_sleep', 's_setprio'):
                    self.w = set(); self.r = U(R)
                elif 'saveexec' in mn:
                    self.w = R[0] | EXEC; self.r = U(R[1:]) | EXEC
                else:
                    self.w = R[0]; self.r = U(R[1:])
        else:
            raise ValueError('unknown instr ' + text)


def isv(s):
    return {x for x in s if x[0] in 'va'}


def iss(s):
    return {x for x in s if x[0] == 's'}


def need(p, c):
    n = 0
    if p.cls == 'valu':
        wv = isv(p.w); ws = iss(p.w)
        if c.cls == 'mfma':
            if wv & c.r: n = max(n, 3 if p.dot else 2)
            if ws & EXEC: n = max(n, 4)
        if c.cls == 'valu':
            if c.dpp and (wv & c.r): n = max(n, 2)
            if c.dpp and (ws & EXEC): n = max(n, 5)
            if c.mn.startswith('v_permlane') and (wv & c.r): n = max(n, 2)
            if c.mn.startswith('v_permlane') and (ws & EXEC): n = max(n, 4)
            if (c.mn.startswith('v_readlane') or c.mn.startswith('v_readfirstlane')) and (wv & c.r): n = max(n, 1)
            if (c.mn.startswith('v_readlane') or c.mn.startswith('v_readfirstlane') or c.mn.startswith('v_writelane')):
                if ws & EXEC: n = max(n, 4)
                if ws & c.r: n = max(n, 4)
            if ws & c.r: n = max(n, 2)
            if any(p.mn.startswith(t) for t in TRANS) and (wv & c.r): n = max(n, 1)
            if ('op_sel' in p.text and not p.mn.startswith('v_pk')) or 'sdwa' in p.mn:
                if wv & (c.r | c.w): n = max(n, 1)
            if p.dot and (wv & (c.r | c.w)):
                same = re.sub(r'_(e32|e64|dpp)$', '', p.mn) == re.sub(r'_(e32|e64|dpp)$', '', c.mn)
                if not (same and c.w == p.w):
                    n = max(n, 3)
        if c.cls == 'vmem' and (ws & c.r): n = max(n, 5)
        if p.dot and c.cls in ('vmem', 'ds') and (wv & c.r): n = max(n, 3)
    elif p.cls == 'mfma':
        D = p.w
        idx = {4: 0, 8: 1, 16: 2}[p.passes]
        if c.cls == 'mfma':
            if D & (c.A | c.B):
                n = max(n, ([6, 10, 18] if p.sgemm else [8, 12, 20])[idx])
            if D & c.C:
                if p.sgemm:
                    if c.sgemm and not (c.C == D and c.passes == p.passes): n = max(n, [4, 8, 16][idx])
                else:
                    if c.sgemm or not (c.C == D and c.passes == p.passes): n = max(n, [6, 10, 18][idx])
            elif D & c.w:
                n = max(n, [8, 12, 20][idx])
        elif c.cls in ('valu', 'ds', 'vmem'):
            if D & (c.r | c.w):
                n = max(n, ([6, 10, 18] if p.sgemm else [8, 12, 20])[idx])
            if c.cls == 'valu' and not p.sgemm and (p.C & c.w):
                n = max(n, [3, 7, 15][idx])
    elif p.cls == 'vmem':
        if p.wide and (p.data & c.w):
            n = max(n, 2 if c.cls in ('valu', 'mfma') else 1)
    elif p.cls == 'salu':
        if (p.w & M0) and c.cls == 'vmem' and c.dma: n = max(n, 1)
    return n


class Asm:
    def __init__(self):
        self.lines = []
        self.hist = []
        self.vm = []
        self.lg = []
        self.sm = set()
        self.cond = None
        self.nuniq = 0
        self.stats = {}
        self.nnop = 0
        self.nwait = 0

    def uniq(self, p):
        self.nuniq += 1
        return f'L_{p}_{self.nuniq}'

    def raw(self, s):
        self.lines.append(s)

    def comment(self, s):
        self.lines.append('    ; ' + s)

    def _emit(self, ins):
        self.lines.append('    ' + ins.text)
        self.hist.append(ins)
        if len(self.hist) > 40:
            self.hist.pop(0)
        self.stats[ins.cls] = self.stats.get(ins.cls, 0) + 1

    def _after(self, q, i):
        return sum(1 for e in q[i + 1:] if e[2] is None or e[2] == self.cond)

    def _wait(self, vm=None, lg=None):
        s = []
        if vm is not None: s.append(f'vmcnt({min(vm, 63)})')
        if lg is not None: s.append(f'lgkmcnt({min(lg, 15)})')
        self._emit(Ins('s_waitcnt ' + ' '.join(s)))
        self.nwait += 1

    def _retire(self, q, i):
        if self.cond is None:
            del q[:i + 1]
        else:
            keep = [e for k, e in enumerate(q) if k > i or (e[2] != self.cond)]
            for k, e in enumerate(q):
                if k <= i and e[2] != self.cond:
                    e[3].add(self.cond)
            q[:] = keep

    def _find(self, q, regs):
        last = -1
        for i, e in enumerate(q):
            if (e[0] & regs) and self.cond not in e[3]:
                last = i
        return last

    def I(self, text, tok=None):
        ins = Ins(text)
        touch = ins.r | ins.w
        vm = lg = None
        i = self._find(self.vm, touch)
        if i >= 0:
            vm = self._after(self.vm, i); self._retire(self.vm, i)
        if self.sm & touch:
            lg = 0; self.sm = set()
            if self.lg: self._retire(self.lg, len(self.lg) - 1)
        else:
            j = self._find(self.lg, touch)
            if j >= 0:
                lg = self._after(self.lg, j); self._retire(self.lg, j)
        if vm is not None or lg is not None:
            self._wait(vm, lg)
        dist = 0
        req = 0
        for p in reversed(self.hist):
            n = need(p, ins)
            if n - dist > req: req = n - dist
            dist += p.states
            if dist >= 20: break
        while req > 0:
            k = min(req, 16)
            self._emit(Ins(f's_nop {k - 1}')); self.nnop += 1
            req -= k
        self._emit(ins)
        if ins.cls == 'vmem':
            self.vm.append((ins.w, tok, self.cond, set()))
        elif ins.cls == 'ds':
            self.lg.append((ins.w, tok, self.cond, set()))
        elif ins.cls == 'smem':
            self.sm |= ins.w
        return ins

    def waitvm(self, tok):
        last = -1
        for i, e in enumerate(self.vm):
            if e[1] == tok and self.cond not in e[3]: last = i
        if last >= 0:
            n = self._after(self.vm, last); self._retire(self.vm, last)
            self._wait(vm=n)

    def waitlg(self, tok):
        last = -1
        for i, e in enumerate(self.lg):
            if e[1] == tok and self.cond not in e[3]: last = i
        if last >= 0:
            n = self._after(self.lg, last); self._retire(self.lg, last)
            self._wait(lg=n)

    def vm0(self):
        self._wait(vm=0)
        if self.vm: self._retire(self.vm, len(self.vm) - 1)

    def lg0(self, force=False):
        if self.lg or self.sm or force:
            self._wait(lg=0)
            if self.lg: self._retire(self.lg, len(self.lg) - 1)
            self.sm = set()

    def barrier(self):
        self.lg0()
        self.I('s_barrier')

    def settle(self):
        dist = 0; req = 0
        for p in reversed(self.hist):
            n = 0
            if p.cls == 'mfma': n = {4: 8, 8: 12, 16: 20}[p.passes]
            elif p.cls == 'valu': n = 5 if iss(p.w) else (3 if p.dot else 2)
            elif p.cls == 'vmem' and p.wide: n = 2
            elif p.cls == 'salu' and (p.w & M0): n = 1
            req = max(req, n - dist)
            dist += p.states
            if dist >= 20: break
        req -= 1
        while req > 0:
            k = min(req, 16)
            self._emit(Ins(f's_nop {k - 1}')); self.nnop += 1
            req -= k

    def label(self, l):
        self.lines.append(l + ':')

    def run(self, ops):
        for o in ops:
            if callable(o): o()
            elif isinstance(o, tuple): self.I(o[0], tok=o[1])
            else: self.I(o)

    def text(self):
        return '\n'.join(self.lines) + '\n'


def weave(main, fill, per=2, start=0):
    out = []; k = 0
    for i, m in enumerate(main):
        out.append(m)
        if i >= start:
            for _ in range(per):
                if k < len(fill):
                    out.append(fill[k]); k += 1
    out.extend(fill[k:])
    return out


def _txt(o):
    return o[0] if isinstance(o, tuple) else o


def cost(o):
    if isinstance(o, list): return sum(cost(x) for x in o)
    if callable(o): return 4
    t = _txt(o)
    if t.startswith('v_mfma'): return 8
    if t.startswith('buffer_') or t.startswith('global_'): return 10
    if any(t.startswith(x) for x in TRANS) or t.startswith('v_permlane'): return 8
    if t.startswith('ds_write_b128'): return 12
    return 4


def mdur(o):
    t = _txt(o)
    if '32x32x16' in t: return 32
    if '32x32x2' in t: return 64
    return 16


def isds(o):
    return (not callable(o)) and (not isinstance(o, list)) and _txt(o).startswith('ds_')


def isvalu(o):
    return (not callable(o)) and (not isinstance(o, list)) and _txt(o).startswith('v_') and not _txt(o).startswith('v_mfma')


def flat(l):
    out = []
    for o in l:
        if isinstance(o, list): out.extend(flat(o))
        else: out.append(o)
    return out


def pace(main, groups, period=80, first=0):
    out = []; t = 0; nxt = first; k = 0
    for o in main:
        if k < len(groups) and t >= nxt:
            out.append(groups[k]); nxt = t + period; t += cost(groups[k]); k += 1
        out.append(o); t += cost(o)
    out.extend(groups[k:])
    return flat(out)


def spread(a, b):
    if not b: return list(a)
    out = []; k = 0
    n = max(len(a), 1)
    for i, o in enumerate(a):
        while k < len(b) and k * n <= i * len(b):
            out.append(b[k]); k += 1
        out.append(o)
    out.extend(b[k:])
    return out


def mweave(mf, fill, skip=0):
    tot = sum(cost(f) for f in fill)
    cap = sum(mdur(m) - 8 for m in mf[skip:])
    scale = max(1.0, tot / max(cap, 1))
    out = []; k = 0; budget = 0.0
    for i, m in enumerate(mf):
        out.append(m)
        if i < skip: continue
        budget = min(budget, 0.0) + (mdur(m) - 8) * scale
        seenv = False
        while k < len(fill) and budget >= min(cost(fill[k]), 8) - 0.01:
            f = fill[k]
            if isds(f) and seenv: break
            if isvalu(f): seenv = True
            out.append(f); budget -= cost(f); k += 1
    out.extend(fill[k:])
    return flat(out)
```

```python
import sys, struct
from asm import Asm, Ins, weave, pace, spread, mweave, flat

NAME = 'adaLN_cond__sliding_local_dilated__dense_activation_relu__prompt'
DEBUG = any(a.startswith('--ts') for a in sys.argv)
TSSEL = None
OPT = {}
for a in sys.argv:
    if a.startswith('--ts='): TSSEL = set(a[5:].split(',')) | {'start', 'end'}
    if a.startswith('--opt='):
        for kv in a[6:].split(','):
            k, _, val = kv.partition('=')
            OPT[k] = int(val) if val else 1
TSDEF = set('start,xiss,s3,mf0,qkv,opub,opoll,ypub,ypoll,hpub,hpoll,end'.split(','))
def opt(k, d=0): return OPT.get(k, d)

GRAN, HELLO, GEN, FLAGS, STATS = 0x0, 0x3000, 0x4000, 0x10000, 0x20000
OB, YB, HB, TSB = 0x100000, 0x300000, 0x500000, 0xB00000
WS_SIZE = 0x1000000
OOB = 0x40000000
K = 1024
RA, RB = 0, 64 * K
HF = 112 * K
GS = 152 * K
MV = 156 * K
MR = GS
UT = 60 * K
EX = RB
XT = RB + 48 * K
W2X = RB + 66 * K
sX, sWQ, sWO, sW1, sW2, sC, sWM, sOUT, sWS = [f's[{i}:{i+3}]' for i in range(8, 44, 4)]
TAG = 's[44:45]'
sW, sXG, sRK, sRB64, sHQ, sGRP, sR, sXCC, sFAST = [f's{i}' for i in range(46, 55)]
sT0, sT1, sT2, sT3, sT4 = [f's{i}' for i in range(55, 60)]
mP, mC0, mC1 = 's[60:61]', 's[62:63]', 's[64:65]'
sCNT, sD, sM3, sM1, sM2, sP, sLB, sLB2, sS0, sS1, sS2, sCBK = [f's{i}' for i in range(66, 78)]
sG0, sG1, sG2 = 's3', 's4', 's5'
TS0 = 78
SPIN = 20000
LOG2E = 1.4426950408889634

def f2u(x): return struct.unpack('<I', struct.pack('<f', x))[0]
def v(i, n=1): return f'v{i}' if n == 1 else f'v[{i}:{i+n-1}]'
def a_(i, n=1): return f'a{i}' if n == 1 else f'a[{i}:{i+n-1}]'
def smov(d, x): return f's_mov_b32 {d}, {x:#x}'

A = Asm()
I = A.I
R = lambda l: A.run(flat(l))
def cat(*ls): return [o for l in ls for o in l]
tsnames = []
def ts(name):
    if not DEBUG or name not in (TSSEL or TSDEF): return
    i = len(tsnames)
    assert i < 11
    tsnames.append(name)
    A._emit(Ins(f's_memtime s[{TS0+2*i}:{TS0+1+2*i}]'))

vL, vL16, vFO = 1, 2, 3
vWQ, vTR, vHW, vGSA, vHR, vWO, vT128, vDUM, vW2, vW2R, vW1 = 6, 7, 9, 14, 15, 17, 18, 19, 20, 21, 23
vFS, vTAG = 6, 8
XB = 96
def xr(rg, c): return XB + c * 40 + rg * 8
vXO = 88
XS = 80
GSR = 80
GA = 24
WM0, WMC, WMA = 40, 72, 80

def prologue():
    I('s_cmp_ge_u32 s2, 256')
    I('s_cbranch_scc1 L_end')
    if DEBUG: A._emit(Ins('s_memrealtime s[100:101]'))
    ts('start')
    order = [(32, 56), (28, 48), (40, 80), (8, 0), (12, 8), (16, 16), (20, 32), (24, 40), (36, 64)]
    I('s_getpc_b64 s[6:7]')
    I(f'v_lshlrev_b32 v{vT128}, 7, v0')
    for s, off in order[:5]:
        I(f's_load_dwordx2 s[{s}:{s+1}], s[0:1], {off}')
    if not opt('nocode'):
        I(f'global_load_dword v{vDUM}, v{vT128}, s[6:7]')
    for s, off in order[5:]:
        I(f's_load_dwordx2 s[{s}:{s+1}], s[0:1], {off}')
    I(f'v_lshrrev_b32 v4, 6, v0')
    I(f'v_and_b32 v{vL}, 63, v0')
    I(f'v_readfirstlane_b32 {sW}, v4')
    sizes = {8: 2097152, 12: 1572864, 16: 524288, 20: 1409024, 24: 1409024, 28: 1024, 32: 3145728, 36: 2097152, 40: WS_SIZE}
    for s, off in order:
        I(smov(f's{s+2}', sizes[s])); I(smov(f's{s+3}', 0x20000))
    I(f's_and_b32 {sXG}, s2, 7')
    I(f's_lshr_b32 {sRK}, s2, 3')
    I(f's_lshr_b32 {sT0}, {sRK}, 3')
    I(f's_lshl_b32 {sRB64}, {sXG}, 2')
    I(f's_add_u32 {sRB64}, {sRB64}, {sT0}')
    I(f's_and_b32 {sHQ}, {sRK}, 7')
    I(f's_lshr_b32 {sGRP}, {sRB64}, 1')
    I(f's_and_b32 {sR}, {sRK}, 15')
    I(f'v_lshlrev_b32 v{vL16}, 4, v{vL}')

def mod_setup():
    return [
        f's_lshr_b32 {sT0}, {sRK}, 1',
        f's_add_u32 {sT0}, {sT0}, {sXG}',
        f's_and_b32 {sT0}, {sT0}, 7',
        f's_lshl_b32 {sT0}, {sT0}, 2',
        f's_lshr_b32 {sT1}, {sRK}, 2',
        f's_lshl_b32 {sT1}, {sT1}, 5',
        f's_add_u32 {sT0}, {sT0}, {sT1}',
        f's_and_b32 {sT1}, {sRK}, 3',
        f's_add_u32 {sCBK}, {sT0}, {sT1}',
        f'v_lshrrev_b32 v4, 2, v{vL}',
        f'v_mul_u32_u24 v4, {8*6144}, v4',
        f'v_and_b32 v5, 0x30, v{vL16}',
        f'v_add_u32 v4, v5, v4',
        f'v_lshlrev_b32 v5, 2, v0',
        f's_mul_i32 {sT0}, {sW}, {128*6144}',
        f's_lshl_b32 {sT1}, {sCBK}, 6',
        f's_add_u32 {sT4}, {sT0}, {sT1}',
        f'v_lshrrev_b32 v25, 4, v0',
        f'v_add_u32 v26, {sXG}, v25',
        f'v_and_b32 v26, 7, v26',
        f'v_lshlrev_b32 v26, 8, v26',
        f'v_and_b32 v24, 15, v0',
        f'v_mul_u32_u24 v24, 6144, v24',
        f'v_add_u32 v24, v24, v26',
        f'v_lshrrev_b32 v26, 1, v25',
        f'v_lshl_add_u32 v24, v26, 11, v24',
        f'v_and_b32 v26, 1, v25',
        f'v_lshl_add_u32 v24, v26, 7, v24',
        f'v_cmp_gt_u32 vcc, 6, v25',
        f'v_mov_b32 v26, {OOB:#x}',
        f's_mul_i32 {sT3}, {sRK}, {16*6144}',
        f'v_cndmask_b32 v24, v26, v24, vcc',
    ]

def mod_issue():
    I(f'buffer_load_dword v{WMC}, v5, {sC}, 0 offen')
    for j in range(8):
        I(f'buffer_load_dwordx4 {v(WM0+4*j,4)}, v4, {sWM}, {sT4} offen')
        if j < 7: I(f's_add_u32 {sT4}, {sT4}, 6144')

def mod_compute():
    c = WMC
    I(f'v_lshlrev_b32 v{c+4}, 16, v{c}')
    I(f'v_and_b32 v{c+5}, 0xffff0000, v{c}')
    for k in (4, 5): I(f'v_mul_f32 v{c+k+2}, {-LOG2E!r}, v{c+k}')
    for k in (4, 5): I(f'v_exp_f32 v{c+k+2}, v{c+k+2}')
    for k in (4, 5): I(f'v_add_f32 v{c+k+2}, 1.0, v{c+k+2}')
    for k in (4, 5): I(f'v_rcp_f32 v{c+k+2}, v{c+k+2}')
    for k in (4, 5): I(f'v_mul_f32 v{c+k}, v{c+k}, v{c+k+2}')
    I(f'v_cvt_pk_bf16_f32 v{c+4}, v{c+4}, v{c+5}')
    I(smov(sT0, 0x05040100)); I(smov(sT1, 0x07060302))
    for j in range(4):
        I(f'v_mov_b32_dpp v{c+j}, v{c+4} quad_perm:[{j},{j},{j},{j}] row_mask:0xf bank_mask:0xf')
    for i in range(8): I(f'v_mov_b32 v{WMA+i}, 0')
    I(f'v_and_b32 v4, 3, v{vL}')
    I(f'v_lshlrev_b32 v4, 5, v4')
    I(f'v_lshrrev_b32 v5, 4, v{vL}')
    I(f'v_lshl_add_u32 v4, v5, 3, v4')
    I(f's_lshl_b32 {sT2}, {sW}, 7')
    I(f's_add_u32 {sT2}, {sT2}, {MR}')
    I(f'v_add_u32 v4, {sT2}, v4')
    I(f'v_and_b32 v24, 0x70, v{vL16}')
    I(f'v_add_u32 v5, {MR}, v24')
    I(f'v_cmp_gt_u32 vcc, 8, v0')
    I(f'v_mov_b32 v25, {OOB:#x}')
    I(f's_lshr_b32 {sT2}, {sCBK}, 4')
    I(f'v_cndmask_b32 v24, v25, v24, vcc')
    I(f's_lshr_b32 {sT3}, 0x12, {sT2}')
    I(f's_and_b32 {sT3}, {sT3}, 1')
    I(f's_mul_i32 {sT3}, {sT3}, {f2u(1.0):#x}')
    I(f's_lshl_b32 {sT2}, {sCBK}, 7')
    I(f'v_mov_b32 v30, s44')
    I(f'v_mov_b32 v31, s45')
    for j in range(4):
        r0, r1 = WM0 + 8*j, WM0 + 8*j + 4
        for d in range(4):
            I(f'v_perm_b32 v{c+4+(d&1)*2}, v{r1+d}, v{r0+d}, {sT0}')
            I(f'v_perm_b32 v{c+5+(d&1)*2}, v{r1+d}, v{r0+d}, {sT1}')
            I(f'v_dot2c_f32_bf16 v{WMA+2*d}, v{c+4+(d&1)*2}, v{c+j}')
            I(f'v_dot2c_f32_bf16 v{WMA+2*d+1}, v{c+5+(d&1)*2}, v{c+j}')
    m = WMA
    for i in range(4): I(f'v_permlane32_swap_b32 v{m+i}, v{m+i+4}')
    for i in range(4): I(f'v_add_f32 v{m+i}, v{m+i}, v{m+i+4}')
    for i in range(2): I(f'v_permlane16_swap_b32 v{m+i}, v{m+i+2}')
    for i in range(2): I(f'v_add_f32 v{m+i}, v{m+i}, v{m+i+2}')
    for rot in (8, 4):
        for i in range(2): I(f'v_add_f32_dpp v{m+i}, v{m+i}, v{m+i} row_ror:{rot} row_mask:0xf bank_mask:0xf')
    I(f'ds_write_b64 v4, {v(m,2)}')
    A.barrier()
    for w in range(4): I(f'ds_read_b128 {v(WM0+4*w,4)}, v5 offset:{128*w}')
    for i in (0, 2): I(f'v_pk_add_f32 {v(WM0+i,2)}, {v(WM0+i,2)}, {v(WM0+4+i,2)}')
    for i in (0, 2): I(f'v_pk_add_f32 {v(WM0+8+i,2)}, {v(WM0+8+i,2)}, {v(WM0+12+i,2)}')
    for i in (0, 2): I(f'v_pk_add_f32 {v(WM0+i,2)}, {v(WM0+i,2)}, {v(WM0+8+i,2)}')
    I(f'v_cvt_pk_bf16_f32 v{WM0+4}, v{WM0}, v{WM0+1}')
    I(f'v_cvt_pk_bf16_f32 v{WM0+5}, v{WM0+2}, v{WM0+3}')
    for i in range(2):
        I(f'v_lshlrev_b32 v{WM0+2*i}, 16, v{WM0+4+i}')
        I(f'v_and_b32 v{WM0+2*i+1}, 0xffff0000, v{WM0+4+i}')
    for i in range(4): I(f'v_add_f32 v{WM0+i}, {sT3}, v{WM0+i}')
    I(f'v_cvt_pk_bf16_f32 v28, v{WM0}, v{WM0+1}')
    I(f'v_cvt_pk_bf16_f32 v29, v{WM0+2}, v{WM0+3}')
    I(f'buffer_store_dwordx4 v[28:31], v24, {sWS}, {sT2} offen sc1')

def pf(srd, base_ops, wlo=0, whi=4):
    o = list(base_ops)
    if wlo: o.append(f's_sub_u32 {sP}, {sP}, {wlo*8192}')
    if wlo:
        o += [f's_cmp_lt_u32 {sW}, {wlo}', f's_cselect_b32 {sP}, {OOB:#x}, {sP}']
    if whi < 4:
        o += [f's_cmp_ge_u32 {sW}, {whi}', f's_cselect_b32 {sP}, {OOB:#x}, {sP}']
    o.append(lambda: A._emit_nodep(f'buffer_load_dword v{vDUM}, v{vT128}, {srd}, {sP} offen'))
    return o

def _emit_nodep(text):
    ins = Ins(text); ins.w = set()
    A._emit(ins); A.vm.append((set(), None, A.cond, set()))
A._emit_nodep = _emit_nodep

def pf_x():
    return [f's_lshl_b32 {sP}, {sXG}, 5', f's_add_u32 {sP}, {sP}, {sRK}', f's_lshl_b32 {sP}, {sP}, 13',
            f's_cmp_lg_u32 {sW}, 2', f's_cselect_b32 {sP}, {OOB:#x}, {sP}',
            f'v_lshlrev_b32 v25, 7, v{vL}',
            lambda: A._emit_nodep(f'buffer_load_dword v{vDUM}, v25, {sX}, {sP} offen')]
def pf_wq(i): return pf(sWQ, [f's_mul_i32 {sP}, {sRK}, {384*128}'] + ([f's_add_u32 {sP}, {sP}, 32768'] if i else []), 2 if i else 0, 4)
def pf_wo(): return pf(sWO, [f's_lshl_b32 {sP}, {sRK}, 14'], 0, 2)
def pf_w2a(): return pf(sW2, [f's_lshr_b32 {sP}, {sRK}, 3', f's_mul_i32 {sP}, {sP}, {352*1024}', f's_mul_i32 {sD}, {sHQ}, {12*1024}', f's_add_u32 {sP}, {sP}, {sD}'], 0, 2)
def pf_w2b(): return pf(sW2, [f's_lshr_b32 {sP}, {sRK}, 3', f's_mul_i32 {sP}, {sP}, {352*1024}', f's_lshl_b32 {sD}, {sHQ}, 15', f's_add_u32 {sP}, {sP}, {sD}', f's_add_u32 {sP}, {sP}, {96*1024}'])
def pf_w1(i): return pf(sW1, [f's_mul_i32 {sP}, {sRK}, {344*128}'] + ([f's_add_u32 {sP}, {sP}, 32768'] if i else []), 2 if i else 0, 4)
def pf_h():
    return pf(sWS, [f's_mul_i32 {sP}, {sGRP}, {4*86*1024}', f's_mul_i32 {sD}, {sR}, {172*128}', f's_add_u32 {sP}, {sP}, {sD}', f's_add_u32 {sP}, {sP}, {HB}'], 0, 3)
def pf_misc():
    return [f's_lshl_b32 {sP}, {sRB64}, 3', f's_add_u32 {sP}, {sP}, {sHQ}', f's_lshl_b32 {sP}, {sP}, 13',
            f's_add_u32 {sD}, {sP}, {YB - 8192}', f's_add_u32 {sP}, {sP}, {OB}',
            f's_cmp_eq_u32 {sW}, 1', f's_cselect_b32 {sP}, {sD}, {sP}',
            f's_lshl_b32 {sD}, {sGRP}, 13', f's_add_u32 {sD}, {sD}, {STATS - 2*8192}',
            f's_cmp_eq_u32 {sW}, 2', f's_cselect_b32 {sP}, {sD}, {sP}',
            f's_lshl_b32 {sD}, {sGRP}, 11', f's_add_u32 {sD}, {sD}, {FLAGS - 3*8192}',
            f's_cmp_eq_u32 {sW}, 3', f's_cselect_b32 {sP}, {sD}, {sP}',
            lambda: A._emit_nodep(f'buffer_load_dword v{vDUM}, v{vT128}, {sWS}, {sP} offen')]

def x_setup():
    o = [f's_lshl_b32 {sT0}, {sRB64}, 6', f's_mul_i32 {sT1}, {sW}, 20', f's_add_u32 {sT0}, {sT0}, {sT1}', f's_sub_u32 {sT0}, {sT0}, 16',
         f'v_lshrrev_b32 v94, 4, v{vL}', f'v_add_u32 v94, {sT0}, v94', f'v_and_b32 v95, 0xf0, v{vL16}']
    for rg in range(5):
        o += [f'v_add_u32 v{vXO+rg}, {4*rg}, v94', f'v_max_i32 v{vXO+rg}, 0, v{vXO+rg}', f'v_lshl_add_u32 v{vXO+rg}, v{vXO+rg}, 10, v95']
    return o
def x_issue(rg):
    return [f'buffer_load_dwordx4 {v(xr(rg,c)+4,4)}, v{vXO+rg}, {sX}, 0 offen offset:{256*c}' for c in range(4)]

def x_ops():
    st = []
    for rg in range(5):
        o = []
        s = XS + 2 * rg
        for c in range(4):
            b = xr(rg, c)
            for d in range(4):
                o.append(f'v_lshlrev_b32 v{b+2*d}, 16, v{b+4+d}')
                o.append(f'v_and_b32 v{b+2*d+1}, 0xffff0000, v{b+4+d}')
            for d in range(4):
                if c == 0 and d == 0: continue
                src = v(b, 2) if (c == 0 and d == 1) else v(s, 2)
                o.append(f'v_pk_add_f32 {v(s,2)}, {src}, {v(b+2*d,2)}')
        o.append(f'v_add_f32 v{s}, v{s}, v{s+1}')
        st.append(o)
    def red():
        o = []
        for rot in (8, 4, 2, 1):
            for rg in range(5):
                s = XS + 2 * rg
                o.append(f'v_add_f32_dpp v{s}, v{s}, v{s} row_ror:{rot} row_mask:0xf bank_mask:0xf')
        return o
    o = red()
    for rg in range(5): o.append(f'v_mul_f32 v{XS+2*rg}, {-1.0/512!r}, v{XS+2*rg}')
    st.append(o)
    for rg in range(5):
        o = []
        s = XS + 2 * rg
        for c in range(4):
            b = xr(rg, c)
            for d in range(4):
                o.append(f'v_pk_add_f32 {v(b+2*d,2)}, {v(b+2*d,2)}, {v(s,2)} op_sel_hi:[1,0]')
        for c in range(4):
            b = xr(rg, c)
            for d in range(4):
                if c == 0 and d == 0: o.append(f'v_pk_mul_f32 {v(s,2)}, {v(b,2)}, {v(b,2)}')
                else: o.append(f'v_pk_fma_f32 {v(s,2)}, {v(b+2*d,2)}, {v(b+2*d,2)}, {v(s,2)}')
        o.append(f'v_add_f32 v{s}, v{s}, v{s+1}')
        st.append(o)
    o = red()
    o.append(f'v_mov_b32 v95, {f2u(1e-5):#x}')
    for rg in range(5): o.append(f'v_fmamk_f32 v{XS+2*rg}, v{XS+2*rg}, {f2u(1.0/512):#x}, v95')
    for rg in range(5): o.append(f'v_rsq_f32 v{XS+2*rg}, v{XS+2*rg}')
    st.append(o)
    o = []
    for rg in range(5):
        s = XS + 2 * rg
        for c in range(4):
            b = xr(rg, c)
            for d in range(4):
                o.append(f'v_pk_mul_f32 {v(b+2*d,2)}, {v(b+2*d,2)}, {v(s,2)} op_sel_hi:[1,0]')
    st.append(o)
    return st

def dma_setup():
    return [
        f'v_and_b32 v4, 16, v{vL}', f'v_lshlrev_b32 v4, 1, v4', f'v_xor_b32 v4, v4, v{vL16}',
        f's_and_b32 {sT0}, {sW}, 1', f's_lshl_b32 {sT0}, {sT0}, 6', f'v_xor_b32 v4, {sT0}, v4', f'v_and_b32 v4, 0x70, v4',
        f's_lshl_b32 {sT1}, {sHQ}, 7', f'v_add_u32 v4, {sT1}, v4',
        f'v_lshrrev_b32 v5, 3, v0',
        f'v_mul_u32_u24 v{vWQ}, 3072, v5', f'v_add_u32 v{vWQ}, v{vWQ}, v4',
        f'v_lshl_add_u32 v{vWO}, v5, 10, v4',
        f's_mul_i32 {sM3}, {sW}, 3072', f's_lshl_b32 {sM1}, {sW}, 10',
    ]

def wq_issue(ks):
    g = []
    for p in range(3):
        ld = (f'buffer_load_dwordx4 v{vWQ}, {sWQ}, {sD} offen offset:{1024*p} lds', f'ks{ks}')
        g.append([f's_add_u32 m0, {sM3}, {(ks&7)*12288}', smov(sD, ks*32*3072), ld] if p == 0 else [ld])
    return g

def tr_base(dst, piece, gstride, tmp=4):
    return [
        f'v_lshrrev_b32 v{tmp}, 4, v{vL}', f'v_mul_u32_u24 v{dst}, {gstride}, v{tmp}',
        f'v_bfe_u32 v{tmp}, v{vL}, 2, 2', f'v_lshl_add_u32 v{dst}, v{tmp}, 7, v{dst}',
        f'v_bfe_u32 v{tmp}, v{vL}, 3, 2', f'v_xor_b32 v{tmp}, {piece}, v{tmp}', f'v_lshl_add_u32 v{dst}, v{tmp}, 5, v{dst}',
        f'v_and_b32 v{tmp}, 3, v{vL}', f'v_lshl_add_u32 v{dst}, v{tmp}, 3, v{dst}']

def wq_read(ks):
    sl = ks & 7
    return [f'ds_read_b64_tr_b16 {a_(12*ks+4*p+2*hr,2)}, v{vTR+(sl>>2)} offset:{(sl&3)*12288 + p*1024 + hr*512}' for p in range(3) for hr in range(2)]

def wo_issue(i):
    return [f's_add_u32 m0, {sM1}, {RA + i*4096}', smov(sD, i*32768), (f'buffer_load_dwordx4 v{vWO}, {sWO}, {sD} offen lds', 'wo')]

def b_setup():
    o = tr_base(vTR, sW, 3072) + [f'v_add_u32 v{vTR+1}, {48*K}, v{vTR}']
    o += [f'v_bfe_u32 v4, v{vL}, 2, 2', f'v_mul_u32_u24 v5, {5*1024}, v4', f'v_and_b32 v4, 1, v4', f'v_mul_u32_u24 v4, 12, v4',
          f'v_and_b32 v14, 3, v{vL}', f'v_xor_b32 v4, v4, v14', f'v_lshl_add_u32 v5, v14, 8, v5', f'v_add_u32 v5, {HF}, v5',
          f's_mul_i32 {sT0}, {sW}, 20', f'v_lshrrev_b32 v14, 4, v{vL}', f'v_add_u32 v14, {sT0}, v14']
    for rg in range(5):
        d = vHW + rg
        o += [f'v_add_u32 v{d}, {4*rg}, v14', f'v_lshrrev_b32 v15, 4, v{d}', f'v_and_b32 v{d}, 15, v{d}', f'v_xor_b32 v{d}, v{d}, v4',
              f'v_lshl_add_u32 v{d}, v{d}, 4, v5', f'v_lshl_add_u32 v{d}, v15, 10, v{d}']
    o += [f'v_and_b32 v{vGSA}, 0xf0, v{vL16}', f'v_add_u32 v{vGSA}, {GS}, v{vGSA}']
    o += [f'v_lshrrev_b32 v4, 4, v{vL}', f'v_xor_b32 v5, v4, v{vL}', f'v_and_b32 v5, 15, v5', f'v_lshlrev_b32 v5, 4, v5',
          f'v_lshl_add_u32 v5, v4, 8, v5', f'v_add_u32 v{vHR}, {HF}, v5', f'v_xor_b32 v{vHR+1}, {12*16}, v{vHR}']
    o += [f'v_lshrrev_b32 v4, 3, v{vL}', f'v_lshlrev_b32 v{vW2}, 10, v4', f'v_and_b32 v4, 16, v{vL}', f'v_lshlrev_b32 v4, 2, v4',
          f'v_xor_b32 v4, v4, v{vL16}', f'v_and_b32 v4, 0x70, v4', f's_lshl_b32 {sT0}, {sHQ}, 7', f's_mul_i32 {sT1}, {sW}, {352*1024}',
          f's_add_u32 {sT0}, {sT0}, {sT1}', f'v_add3_u32 v{vW2}, v{vW2}, v4, {sT0}',
          f's_mul_i32 {sM2}, {sW}, {12*K}', f's_add_u32 {sM2}, {sM2}, {64*K}']
    o += [f'v_lshrrev_b32 v4, 5, v{vL}', f'v_lshlrev_b32 v{vW2R}, 9, v4', f'v_bfe_u32 v4, v{vL}, 2, 2', f'v_lshl_add_u32 v{vW2R}, v4, 7, v{vW2R}',
          f'v_bfe_u32 v4, v{vL}, 3, 1', f's_and_b32 {sT0}, {sW}, 1', f'v_xor_b32 v4, {sT0}, v4', f'v_lshl_add_u32 v{vW2R}, v4, 6, v{vW2R}',
          f'v_bfe_u32 v4, v{vL}, 4, 1', f'v_lshl_add_u32 v{vW2R}, v4, 5, v{vW2R}', f'v_and_b32 v4, 3, v{vL}', f'v_lshl_add_u32 v{vW2R}, v4, 3, v{vW2R}',
          f'v_add_u32 v{vW2R}, {sM2}, v{vW2R}', f'v_xor_b32 v{vW2R+1}, 64, v{vW2R}']
    o += [f'v_lshrrev_b32 v4, 2, v0', f'v_mul_u32_u24 v{vW1}, 2752, v4', f'v_and_b32 v4, 0x30, v{vL16}', f's_mul_i32 {sT0}, {sR}, 192',
          f'v_add3_u32 v{vW1}, v{vW1}, v4, {sT0}']
    o += [f's_lshl_b32 {sT0}, {sGRP}, 11', f's_add_u32 {sT0}, {sT0}, {FLAGS}', f'v_lshl_add_u32 v{vFO}, v{vL}, 3, {sT0}']
    return o

def hello():
    return [f's_add_u32 s44, s44, 0x7f4a7c15', f's_addc_u32 s45, s45, 0x9e3779b9',
            f's_getreg_b32 {sXCC}, hwreg(HW_REG_XCC_ID)', f's_and_b32 {sXCC}, {sXCC}, 15',
            f's_lshl_b32 {sT0}, {sGRP}, 4', f's_add_u32 {sT0}, {sT0}, {sR}', f's_lshl_b32 {sT0}, {sT0}, 4', f's_add_u32 {sT0}, {sT0}, {HELLO}',
            f'v_mov_b32 v32, {sXCC}', f'v_mov_b32 v33, 0', f'v_mov_b32 v34, s44', f'v_mov_b32 v35, s45',
            f'v_lshlrev_b32 v36, 24, v0',
            f'buffer_store_dwordx4 v[32:35], v36, {sWS}, {sT0} offen sc1']

def check_loop(loads, cmps):
    L, D = A.uniq('chk'), A.uniq('ok')
    I(smov(sCNT, SPIN))
    A.waitvm('poll')
    A.settle()
    A.label(L)
    R(cmps)
    I(f's_cbranch_scc0 {D}')
    A.cond = L
    I(f's_sub_u32 {sCNT}, {sCNT}, 1')
    I(f's_cbranch_scc1 {D}')
    R(loads)
    A.vm0()
    I(f's_branch {L}')
    A.cond = None
    A.label(D)

vPD = 4
def poll_load(phase): return (f'buffer_load_dwordx2 v[4:5], v{vFO}, {sWS}, 0 offen offset:{phase*512} sc1', 'poll')
def poll_check(phase, mask):
    check_loop([poll_load(phase)], [f'v_cmp_ne_u64 vcc, {TAG}, v[4:5]', f's_and_b64 vcc, vcc, {mask}'])

def pub_setup():
    return [f's_lshl_b32 {sT0}, {sR}, 2', f's_add_u32 {sT0}, {sT0}, {sW}', f'v_cmp_eq_u32 vcc, {sT0}, v{vL}',
            f'v_mov_b32 v{vFS}, {OOB:#x}', f'v_mov_b32 v{vTAG}, s44', f'v_cndmask_b32 v{vFS}, v{vFS}, v{vFO}, vcc', f'v_mov_b32 v{vTAG+1}, s45']

slow_blocks = []
def publish(body, phase):
    S, J = A.uniq('slow'), A.uniq('join')
    I(f's_cmp_eq_u32 {sFAST}, 0')
    A.settle()
    I(f's_cbranch_scc1 {S}')
    def emit(bits):
        R([o.replace('@', bits) for o in body])
        A.vm0()
        I(f'buffer_store_dwordx2 {v(vTAG,2)}, v{vFS}, {sWS}, 0 offen offset:{phase*512}{bits}')
    emit('')
    A.label(J)
    def slow():
        A.label(S)
        A.vm0(); A.lg0(force=True)
        emit(' sc1')
        A.settle()
        I(f's_branch {J}')
    slow_blocks.append(slow)

def gather_loads():
    g = GA
    return [(f'buffer_load_dwordx4 {v(g,4)}, v94, {sWS}, 0 offen sc1', 'poll'),
            (f'buffer_load_dwordx4 {v(g+4,4)}, v94, {sWS}, {sG1} offen sc1', 'poll'),
            (f'buffer_load_dwordx4 {v(g+8,4)}, v94, {sWS}, {sG2} offen sc1', 'poll'),
            (f'buffer_load_dwordx4 {v(g+12,4)}, v93, {sWS}, {sG0} offen sc1', 'poll')]
def gather_setup():
    return [f'v_lshlrev_b32 v94, 4, v0', f'v_and_b32 v93, 0xf0, v{vL16}', f's_lshl_b32 {sG0}, {sGRP}, 8', f's_add_u32 {sG0}, {sG0}, {HELLO}',
            smov(sG1, 4096), smov(sG2, 8192),
            f'v_lshrrev_b32 v40, 5, v0', f'v_lshlrev_b32 v40, 9, v40', f'v_and_b32 v41, 1, v0', f'v_lshl_add_u32 v40, v41, 8, v40',
            f'v_bfe_u32 v41, v0, 1, 4', f'v_lshl_add_u32 v40, v41, 4, v40', f'v_add_u32 v40, {GS}, v40',
            f'v_lshlrev_b32 v41, 3, v0', f'v_add_u32 v41, {MV}, v41']
def gather_check():
    g = GA
    check_loop(gather_loads(), [
        f'v_cmp_ne_u64 vcc, {TAG}, {v(g+2,2)}', f'v_cmp_ne_u64 {mP}, {TAG}, {v(g+6,2)}',
        f'v_cmp_ne_u64 {mC0}, {TAG}, {v(g+10,2)}', f'v_cmp_ne_u64 {mC1}, {TAG}, {v(g+14,2)}',
        f's_or_b64 vcc, vcc, {mP}', f's_or_b64 {mC0}, {mC0}, {mC1}', f's_or_b64 vcc, vcc, {mC0}'])
    R([f'v_and_b32 v{g+3}, 0xffff0000, v{g+1}', f'v_lshlrev_b32 v{g+2}, 16, v{g+1}',
       f'v_and_b32 v{g+1}, 0xffff0000, v{g}', f'v_lshlrev_b32 v{g}, 16, v{g}',
       f'ds_write_b128 v40, {v(g,4)}', f'ds_write_b64 v41, {v(g+4,2)}', f'ds_write_b64 v41, {v(g+8,2)} offset:2048',
       f'v_cmp_ne_u32 vcc, {sXCC}, v{g+12}', f's_cmp_eq_u64 vcc, 0',
       f's_cselect_b32 {sFAST}, ' + ('0' if opt('slow') else '1') + ', 0'])

def h_gsread(c):
    return [f'ds_read_b128 {v(GSR+8*sec+4*half,4)}, v{vGSA} offset:{sec*2048+c*512+half*256}' for half in range(2) for sec in range(2)]
def h_conv(c, pk):
    o = []
    for rg in range(5):
        b = xr(rg, c)
        for d in range(4):
            if pk:
                o.append(f'v_pk_fma_f32 {v(b+2*d,2)}, {v(b+2*d,2)}, {v(GSR+8+2*d,2)}, {v(GSR+2*d,2)}')
            else:
                for e in range(2): o.append(f'v_fma_f32 v{b+2*d+e}, v{b+2*d+e}, v{GSR+8+2*d+e}, v{GSR+2*d+e}')
        for d in range(4):
            o.append(f'v_cvt_pk_bf16_f32 v{b+d}, v{b+2*d}, v{b+2*d+1}')
        o.append(f'ds_write_b128 v{vHW+rg}, {v(b,4)} offset:{(c&1)*20480}')
    return o

ACC = 24
def accQ(T): return ACC + 4 * (T - 1)
def accK(T): return ACC + 16 + 4 * T
def accV(T): return ACC + 36 + 4 * T
HFR = 96
def h_read(ks):
    return [f'ds_read_b128 {v(HFR+20*(ks&1)+4*T,4)}, v{vHR+(ks&1)} offset:{((ks&7)*5+T)*1024}' for T in range(5)]
def qkv_mfma(ks):
    o = []
    for T in range(5):
        h = v(HFR + 20 * (ks & 1) + 4 * T, 4)
        def m(d, x, y): o.append(f'v_mfma_f32_16x16x32_bf16 {v(d,4)}, {x}, {y}, ' + ('0' if ks == 0 else v(d, 4)))
        m(accK(T), a_(12*ks+4, 4), h)
        m(accV(T), h, a_(12*ks+8, 4))
        if T: m(accQ(T), a_(12*ks, 4), h)
    return o

AUA, AGA, AG2, AGB = 192, 224, 232, 248
def modvec_read():
    o = [f's_lshl_b32 {sT0}, {sHQ}, 7', f's_add_u32 {sT0}, {sT0}, {MV}', f'v_lshrrev_b32 v4, 4, v{vL}', f'v_lshl_add_u32 v4, v4, 3, {sT0}']
    for j in range(4):
        o.append(f'ds_read_b64 {a_(AGA+2*j,2)}, v4 offset:{32*j}')
        o.append(f'ds_read_b64 {a_(AG2+2*j,2)}, v4 offset:{2048+32*j}')
    o += [f's_and_b32 {sT1}, {sW}, 1', f's_lshl_b32 {sT1}, {sT1}, 6', f's_add_u32 {sT0}, {sT0}, {sT1}',
          f'v_lshrrev_b32 v5, 5, v{vL}', f'v_lshl_add_u32 v4, v5, 3, {sT0}']
    for q in range(4):
        o.append(f'ds_read_b64 {a_(AGB+2*q,2)}, v4 offset:{3072+16*q}')
    o += [f's_lshl_b32 {sT0}, {sW}, 8', f's_add_u32 {sT0}, {sT0}, {MV+1024}', f'v_lshl_add_u32 v5, v5, 3, {sT0}',
          f'v_and_b32 v4, 4, v{vL}', f'v_lshl_add_u32 v4, v4, 8, v5']
    for i in range(8):
        for hr in range(2):
            o.append(f'ds_read_b64 {a_(AUA+4*i+2*hr,2)}, v4 offset:{(i>>1)*64+(i&1)*16+hr*32}')
    return o

MK, ONE, BIAS = 216, 220, 224
vOA = 7
def att_setup():
    o = [f'v_and_b32 v4, 1, v{vL}', f'v_cmp_eq_u32 {mP}, 1, v4', f'v_lshrrev_b32 v5, 4, v{vL}', f'v_lshl_add_u32 v5, v5, 2, v4',
         f'v_and_b32 v4, 15, v{vL}', f'v_cmp_le_u32 {mC0}, v5, v4', f'v_add_u32 v5, 2, v5', f'v_cmp_le_u32 {mC1}, v5, v4',
         f'v_mov_b32 v4, 0xffff', f'v_mov_b32 v5, 0xffff0000', f'v_cndmask_b32 v4, v4, v5, {mP}',
         f'v_cndmask_b32 v{MK+0}, v4, 0, {mC0}', f'v_cndmask_b32 v{MK+1}, v4, 0, {mC1}',
         f'v_cndmask_b32 v{MK+2}, 0, v4, {mC0}', f'v_cndmask_b32 v{MK+3}, 0, v4, {mC1}']
    o += [f'v_mov_b32 v{ONE+i}, 0x3f803f80' for i in range(4)]
    o += [[f's_cmp_eq_u32 {sRB64}, 0', f's_cselect_b32 {sT0}, {f2u(-4e9):#x}, 0']]
    o += [f'v_mov_b32 v{BIAS+i}, {sT0}' for i in range(4)]
    o += [f's_lshl_b32 {sT0}, {sRB64}, 16', f's_lshl_b32 {sT1}, {sHQ}, 11', f's_add_u32 {sT0}, {sT0}, {sT1}', f's_lshl_b32 {sT1}, {sW}, 9',
          f's_add_u32 {sT0}, {sT0}, {sT1}', f's_add_u32 {sS0}, {sT0}, {OB}', f's_add_u32 {sS1}, {sS0}, {2*16384}',
          f'v_bfe_u32 v5, v{vL}, 4, 1', f'v_lshlrev_b32 v5, 14, v5', f'v_lshrrev_b32 v4, 5, v{vL}', f'v_lshl_add_u32 v5, v4, 8, v5',
          f'v_and_b32 v4, 0xf0, v{vL16}', f'v_add_u32 v{vOA}, v5, v4', smov(sS2, f2u(0.25 * LOG2E))]
    return o

def attention():
    QB, KB, VB = 136, 144, 154
    SC, SP = 164, 180
    LG, MX = 196, 204
    PB, OA, SM = 164, 180, 228
    OS = 208
    o = []
    def cvt(d, s): return [f'v_cvt_pk_bf16_f32 v{d}, v{s}, v{s+1}', f'v_cvt_pk_bf16_f32 v{d+1}, v{s+2}, v{s+3}']
    o += cvt(KB, accK(0))
    for T in range(1, 5): o += cvt(KB + 2*T, accK(T)) + cvt(QB + 2*(T-1), accQ(T))
    for T in range(1, 5):
        t = T - 1
        o.append(f'v_mfma_f32_16x16x16_bf16 {v(SC+4*t,4)}, {v(KB+2*T,2)}, {v(QB+2*t,2)}, 0')
        if T == 1: o += cvt(VB, accV(0))
        o.append(f'v_mfma_f32_16x16x16_bf16 {v(SP+4*t,4)}, {v(KB+2*t,2)}, {v(QB+2*t,2)}, ' + (v(BIAS, 4) if T == 1 else '0'))
        o += cvt(VB + 2*T, accV(T))
    for t in range(4):
        for e in range(2):
            o.append(f'v_cndmask_b32 v{SC+4*t+2*e}, v{SC+4*t+2*e}, v{SC+4*t+2*e+1}, {mP}')
            o.append(f'v_cndmask_b32 v{SP+4*t+2*e}, v{SP+4*t+2*e}, v{SP+4*t+2*e+1}, {mP}')
            o.append(f'v_cndmask_b32 v{LG+2*t+e}, v{SP+4*t+2*e}, v{SC+4*t+2*e}, {mC1 if e else mC0}')
        o.append(f'v_max_f32 v{MX+t}, v{LG+2*t}, v{LG+2*t+1}')
    cs = 0.25 * LOG2E
    o += [f'v_permlane16_swap_b32 v{MX}, v{MX+1}', f'v_permlane16_swap_b32 v{MX+2}, v{MX+3}',
          f'v_max_f32 v{MX}, v{MX}, v{MX+1}', f'v_max_f32 v{MX+2}, v{MX+2}, v{MX+3}',
          f'v_permlane32_swap_b32 v{MX}, v{MX+2}', f'v_max_f32 v{MX}, v{MX}, v{MX+2}',
          f'v_mul_f32 v{MX+2}, {f2u(-cs):#x}, v{MX}', f'v_mul_f32 v{MX}, {f2u(-cs):#x}, v{MX}',
          f'v_permlane32_swap_b32 v{MX}, v{MX+2}', f'v_mov_b32 v{MX+1}, v{MX}', f'v_mov_b32 v{MX+3}, v{MX+2}',
          f'v_permlane16_swap_b32 v{MX}, v{MX+1}', f'v_permlane16_swap_b32 v{MX+2}, v{MX+3}']
    for t in range(4):
        for e in range(2): o.append(f'v_fma_f32 v{LG+2*t+e}, v{LG+2*t+e}, {sS2}, v{MX+t}')
    for t in range(4):
        for e in range(2): o.append(f'v_exp_f32 v{LG+2*t+e}, v{LG+2*t+e}')
    def pv(u): return [f'v_mfma_f32_16x16x32_bf16 {v(SM+4*u,4)}, {v(ONE,4)}, {v(PB+4*u,4)}, 0',
                       f'v_mfma_f32_16x16x32_bf16 {v(OA+4*u,4)}, {v(VB+2*u,4)}, {v(PB+4*u,4)}, 0']
    for t in range(4):
        p = [f'v_cvt_pk_bf16_f32 v{LG+2*t+e}, v{LG+2*t+e}, v{LG+2*t+e}' for e in range(2)]
        p += [f'v_and_b32 v{PB+4*t+i}, v{MK+i}, v{LG+2*t+(i&1)}' for i in range(4)]
        if t:
            m = pv(t - 1)
            p = p[:2] + [m[0]] + p[2:4] + [m[1]] + p[4:]
        o += p
    def fin(t): return [f'v_rcp_f32 v{SM+4*t}, v{SM+4*t}'] + [f'v_mul_f32 v{OA+4*t+i}, v{OA+4*t+i}, v{SM+4*t}' for i in range(4)] + cvt(OS + 2*t, OA + 4*t)
    m = pv(3)
    f0 = fin(0)
    o += f0[:2] + [m[0]] + f0[2:4] + [m[1]] + f0[4:] + fin(1)
    tail = [f'v_permlane16_swap_b32 v{OS+i}, v{OS+2+i}' for i in range(2)]
    tail += [f'buffer_store_dwordx4 {v(OS,4)}, v{vOA}, {sWS}, {sS0} offen@']
    tail += fin(2) + fin(3)
    tail += [f'v_permlane16_swap_b32 v{OS+4+i}, v{OS+6+i}' for i in range(2)]
    tail += [f'buffer_store_dwordx4 {v(OS+4,4)}, v{vOA}, {sWS}, {sS1} offen@']
    return o, tail

def w1_issue(i):
    g = []
    for t in range(3):
        g.append([f's_add_u32 m0, {sM1}, {RB + t*32768 + i*4096 - 64*t}', smov(sD, i*64*2752),
                  (f'buffer_load_dwordx4 v{vW1}, {sW1}, {sD} offen offset:{64*t} lds', 'w1')])
    return g

X1 = 24
CG = 40
CAC = 72
CO = 96
CW = 160
vC = 10
vYA, vSA = 14, 15
XC = 88
def c_xload():
    o = [f's_lshl_b32 {sT2}, {sRB64}, 16', f's_lshl_b32 {sT3}, {sW}, 14', f's_add_u32 {sT2}, {sT2}, {sT3}',
         f's_add_u32 {sLB}, {sT2}, {OB}',
         f's_lshl_b32 {sT3}, {sHQ}, 7', f's_add_u32 {sT2}, {sT2}, {sT3}',
         f'v_and_b32 v80, 15, v{vL}', f'v_lshlrev_b32 v80, 10, v80', f'v_lshrrev_b32 v81, 4, v{vL}', f'v_lshl_add_u32 v80, v81, 3, v80']
    o += [f'buffer_load_dwordx2 {v(XC+2*j,2)}, v80, {sX}, {sT2} offen offset:{32*j}' for j in range(4)]
    return o

def c_pre():
    o = tr_base(vC, 0, 1024, tmp=16)
    o += [f'v_xor_b32 v{vC+j}, {32*j}, v{vC}' for j in range(1, 4)]
    o += cat(*[c_rd(k) for k in range(NCW-1)])
    for k in range(16):
        o += [f'v_accvgpr_read_b32 v{CG+2*k+1}, a{AGA+k}', f'v_lshlrev_b32 v{CG+2*k}, 16, v{CG+2*k+1}', f'v_and_b32 v{CG+2*k+1}, 0xffff0000, v{CG+2*k+1}']
    for k in range(8):
        o += [f'v_lshlrev_b32 v{X1+2*k}, 16, v{XC+k}', f'v_and_b32 v{X1+2*k+1}, 0xffff0000, v{XC+k}']
    o += [f's_lshl_b32 {sT0}, {sRB64}, 16', f's_lshr_b32 {sT1}, {sW}, 1', f's_lshl_b32 {sT1}, {sT1}, 15', f's_add_u32 {sT0}, {sT0}, {sT1}',
          f's_lshl_b32 {sT1}, {sHQ}, 12', f's_add_u32 {sT0}, {sT0}, {sT1}', f's_and_b32 {sT1}, {sW}, 1', f's_lshl_b32 {sT1}, {sT1}, 8',
          f's_add_u32 {sT0}, {sT0}, {sT1}', f's_add_u32 {sS0}, {sT0}, {YB}',
          f'v_lshrrev_b32 v16, 4, v{vL}', f'v_and_b32 v{vYA}, 0xf0, v{vL16}', f'v_lshl_add_u32 v{vYA}, v16, 9, v{vYA}',
          f's_lshl_b32 {sT0}, {sRB64}, 12', f's_lshl_b32 {sT1}, {sW}, 10', f's_add_u32 {sT0}, {sT0}, {sT1}', f's_lshl_b32 {sT1}, {sHQ}, 3',
          f's_add_u32 {sT0}, {sT0}, {sT1}', f's_add_u32 {sS1}, {sT0}, {STATS}',
          f'v_and_b32 v{vSA}, 15, v{vL}', f'v_lshlrev_b32 v{vSA}, 6, v{vSA}', f'v_and_b32 v16, 1, v16', f'v_lshl_add_u32 v{vSA}, v16, 2, v{vSA}',
          [f's_bitcmp1_b32 {sRB64}, 0', f's_cselect_b32 s62, 0, -1', f's_cselect_b32 s63, -1, 0']]
    return o

def frag_loads(dst, n, sreg, bump=None):
    g = []
    for i in range(n):
        o = []
        if i and i % 4 == 0: o.append(f's_add_u32 {sreg}, {sreg}, ' + (bump if (bump and i == 20) else '4096'))
        o.append(f'buffer_load_dwordx4 {v(dst+4*i,4)}, v{vL16}, {sWS}, {sreg} offen offset:{(i&3)*1024} sc1')
        g.append(o)
    return g

NCW = 4
def c_rd(ks):
    return [f'ds_read_b64_tr_b16 {v(CW+16*(ks%NCW)+4*j+2*hr,2)}, v{vC+j} offset:{RA+ks*4096+hr*512}' for j in range(4) for hr in range(2)]
def c_main():
    ld = frag_loads(CO, 16, sLB)
    LA = opt('cla', 8)
    R(ld[:LA])
    for ks in range(16):
        mm = [f'v_mfma_f32_16x16x32_bf16 {v(CAC+4*j,4)}, {v(CW+16*(ks%NCW)+4*j,4)}, {v(CO+4*ks,4)}, ' + ('0' if ks == 0 else v(CAC+4*j,4)) for j in range(4)]
        fill = (c_rd(ks+NCW-1) if ks + NCW - 1 < 16 else [])
        if ks + LA < 16: R(ld[ks+LA])
        R(weave(mm, fill))

def c_epi():
    YT, YP = 96, 112
    o = []
    for h in range(2):
        ks = range(4*h, 4*h+4)
        o += [f'v_pk_fma_f32 {v(X1+2*k,2)}, {v(CAC+2*k,2)}, {v(CG+2*k,2)}, {v(X1+2*k,2)}' for k in ks]
        o += [f'v_pk_mul_f32 {v(YT+2*k,2)}, {v(X1+2*k,2)}, {v(CG+16+2*k,2)}' for k in ks]
        o += [f'v_cvt_pk_bf16_f32 v{YP+k}, v{YT+2*k}, v{YT+2*k+1}' for k in ks]
        o += [f'buffer_store_dwordx4 {v(YP+4*h,4)}, v{vYA}, {sWS}, {sS0} offen offset:{2048*h}@']
    o += [f'v_pk_add_f32 v[120:121], {v(X1,2)}, {v(X1+2,2)}', f'v_pk_mul_f32 v[122:123], {v(X1,2)}, {v(X1,2)}']
    for k in range(1, 8):
        if k > 1: o.append(f'v_pk_add_f32 v[120:121], v[120:121], {v(X1+2*k,2)}')
        o.append(f'v_pk_fma_f32 v[122:123], {v(X1+2*k,2)}, {v(X1+2*k,2)}, v[122:123]')
    o += ['v_add_f32 v120, v120, v121', 'v_add_f32 v122, v122, v123', 'v_permlane16_swap_b32 v120, v122', 'v_add_f32 v120, v120, v122',
          'v_mov_b32 v122, v120', 'v_permlane32_swap_b32 v120, v122', 'v_add_f32 v120, v120, v122',
          f'buffer_store_dword v120, v{vSA}, {sWS}, {sS1} offen@']
    return o

W2R = [(0, 12), (12, 15), (27, 15), (42, 2)]
def w2_rebase(mul, add):
    return [[f's_mul_i32 {sT0}, {sW}, {mul}', f's_add_u32 {sT0}, {sT0}, {add}', f's_sub_u32 {sT1}, {sT0}, {sM2}', f's_mov_b32 {sM2}, {sT0}',
            f'v_add_u32 v{vW2R}, {sT1}, v{vW2R}', f'v_add_u32 v{vW2R+1}, {sT1}, v{vW2R+1}']]
def w2_issue(rnd, base=None):
    b0, n = W2R[rnd]
    return [[f's_add_u32 m0, {base or sM2}, {i*1024}', smov(sD, (b0+i)*8192), (f'buffer_load_dwordx4 v{vW2}, {sW2}, {sD} offen lds', f'w2_{rnd}')] for i in range(n)]
def w2_read(rnd):
    o = []
    b0, n = W2R[rnd]
    for i in range(n):
        s, hr = divmod(b0 + i, 2)
        for slot in range(2):
            o.append(f'ds_read_b64_tr_b16 {a_(8*s+4*slot+2*hr,2)}, v{vW2R+slot} offset:{i*1024}')
    return o

DAC, DW, DST, DY = 40, 88, 112, 128
vD = 10
vUT, vSB = 120, 123
vST = 16
def d_setup():
    o = [f'v_lshrrev_b32 v16, 5, v{vL}', f'v_lshlrev_b32 v{vD}, 8, v16', f'v_bfe_u32 v16, v{vL}, 2, 2', f'v_lshl_add_u32 v{vD}, v16, 6, v{vD}',
         f'v_bfe_u32 v16, v{vL}, 4, 1', f'v_lshl_add_u32 v{vD}, v16, 5, v{vD}', f'v_and_b32 v16, 3, v{vL}', f'v_lshl_add_u32 v{vD}, v16, 3, v{vD}',
         f'v_add_u32 v{vD}, {RB}, v{vD}', f'v_add_u32 v{vD+1}, 32768, v{vD}', f'v_add_u32 v{vD+2}, 65536, v{vD}',
         f's_lshl_b32 {sT0}, {sW}, 13']
    o += [f'v_add_u32 v{13+t}, {sT0}, v{vD+t}' for t in range(3)]
    return o
def d_setup2():
    return [
        f'v_and_b32 v{vST}, 31, v{vL}', f'v_lshlrev_b32 v{vST}, 6, v{vST}', f'v_and_b32 v17, 32, v{vL}', f'v_add_u32 v{vST}, v{vST}, v17',
        f's_lshl_b32 {sT0}, {sGRP}, 2', f's_add_u32 {sT0}, {sT0}, {sW}',
        f's_lshl_b32 {sLB2}, {sT0}, 11', f's_add_u32 {sLB2}, {sLB2}, {STATS}',
        f's_lshl_b32 {sLB}, {sT0}, 15', f's_add_u32 {sLB}, {sLB}, {YB}',
        f's_mul_i32 {sT0}, {sT0}, {86*1024}', f's_mul_i32 {sT1}, {sR}, {6*1024}', f's_add_u32 {sT0}, {sT0}, {sT1}',
        f's_add_u32 {sS0}, {sT0}, {HB}', f's_add_u32 {sS1}, {sS0}, 2048', f's_add_u32 {sS2}, {sS0}, 4096',
        [f's_cmp_ge_u32 {sR}, 14', f's_cselect_b32 {sS1}, {OOB:#x}, {sS1}', f's_cselect_b32 {sS2}, {OOB:#x}, {sS2}'],
        [f's_cmp_eq_u32 {sR}, 15', f's_cselect_b32 {sS0}, {OOB:#x}, {sS0}'],
        smov(sT1, 0xcccccccc),
        [f's_bitcmp1_b32 {sW}, 0', f's_cselect_b32 {sT0}, {sT1}, 0x33333333'],
        [f's_bitcmp1_b32 {sW}, 1', f's_cselect_b32 s62, 0, {sT0}', f's_cselect_b32 s63, {sT0}, 0'],
        f's_mul_i32 {sT0}, {sW}, 768', f's_add_u32 {sT0}, {sT0}, {UT}', f'v_lshl_add_u32 v17, v{vL}, 2, {sT0}',
        f'v_lshlrev_b32 v7, 2, v{vL}', f'v_add_u32 v7, {UT}, v7',
    ]

def w1_rd(k16, buf, base=vD):
    return [f'ds_read_b64_tr_b16 {v(DW+12*buf+4*t+2*hr,2)}, v{base+t} offset:{(k16>>1)*2048+hr*1024+(k16&1)*512}' for t in range(3) for hr in range(2)]

def d_ut(extra):
    R(w1_rd(0, 0, 13))
    per = -(-len(extra) // 8)
    for i in range(8):
        mm = [f'v_mfma_f32_32x32x16_bf16 {v(DAC+16*t,16)}, {a_(AUA+4*i,4)}, {v(DW+12*(i&1)+4*t,4)}, ' + ('0' if i == 0 else v(DAC+16*t,16)) for t in range(3)]
        R(mweave(mm, (w1_rd(i+1, (i+1)&1, 13) if i < 7 else []) + extra[per*i:per*(i+1)]))
    R([f'ds_write_b32 v17, v{DAC+16*t} offset:{256*t}' for t in range(3)])
def d_ut2():
    o = [f'ds_read_b32 v{DAC+3*w+t}, v7 offset:{768*w+256*t}' for w in range(4) for t in range(3)]
    for t in range(3):
        o += [f'v_add_f32 v{DAC+t}, v{DAC+t}, v{DAC+3+t}', f'v_add_f32 v{DAC+6+t}, v{DAC+6+t}, v{DAC+9+t}', f'v_add_f32 v{vUT+t}, v{DAC+t}, v{DAC+6+t}']
    return o

def stats_load(dst, sreg):
    return [f'buffer_load_dwordx4 {v(dst,4)}, v{vST}, {sWS}, {sreg} offen sc1', f'buffer_load_dwordx4 {v(dst+4,4)}, v{vST}, {sWS}, {sreg} offen offset:16 sc1']

def stats_ops(d):
    o = []
    for e in range(2):
        o.append(f'v_add_f32 v{d+e}, v{d+e}, v{d+2+e}')
        o.append(f'v_add_f32 v{d+4+e}, v{d+4+e}, v{d+6+e}')
    for e in range(2): o.append(f'v_add_f32 v{d+2+e}, v{d+e}, v{d+4+e}')
    for e in range(2): o.append(f'v_add_f32 v{d+e}, v{d+e}, v{d+4+e}')
    o.append(f'v_mov_b32 v{d+4}, {f2u(1e-5):#x}')
    for e in range(2): o.append(f'v_permlane32_swap_b32 v{d+e}, v{d+2+e}')
    for e in range(2): o.append(f'v_add_f32 v{d+e}, v{d+e}, v{d+2+e}')
    o.append(f'v_mul_f32 v{d}, {f2u(1/512):#x}, v{d}')
    o.append(f'v_fmac_f32 v{d+4}, {f2u(1/512):#x}, v{d+1}')
    o.append(f'v_fma_f32 v{d+1}, -v{d}, v{d}, v{d+4}')
    o.append(f'v_max_f32 v{d+1}, {f2u(1e-5):#x}, v{d+1}')
    return o

def d_main():
    ld = frag_loads(DY, 32, sLB)
    LA = opt('dla', 7)
    R(ld[:2]); R(stats_load(DST, sLB2)); R(ld[2:LA])
    R(w1_rd(0, 0))
    w2r = w2_read(1)
    R(w2r[:opt('dpre', 16)]); w2r = w2r[opt('dpre', 16):]
    so = stats_ops(DST) + [f'v_sqrt_f32 v{DST+1}, v{DST+1}', f'v_cmp_gt_u32 vcc, 32, v{vL}', f'v_sub_f32 v{DST}, 0, v{DST}',
                           f'v_cndmask_b32 v{vSB}, v{DST}, v{DST+1}, vcc']
    extra = {0: w2r[:7], 1: w2r[7:], 2: so[:10], 3: so[10:]}
    w2i = w2_issue(2)
    ND = opt('nd', 8)
    k0 = 32 - LA
    for k in range(32):
        mm = [f'v_mfma_f32_32x32x16_bf16 {v(DAC+16*t,16)}, {v(DW+12*(k&1)+4*t,4)}, {v(DY+4*k,4)}, ' + ('0' if k == 0 else v(DAC+16*t,16)) for t in range(3)]
        fill = (w1_rd(k+1, (k+1)&1) if k < 31 else []) + extra.get(k, [])
        if k + LA < 32: fill = [ld[k+LA]] + fill
        elif ND > 0 and k < 30:
            fill = [w2i.pop(0)] + fill; ND -= 1
        R(mweave(mm, fill))
    for t in range(3):
        I(f'v_mfma_f32_32x32x2_f32 {v(DAC+16*t,16)}, v{vUT+t}, v{vSB}, {v(DAC+16*t,16)}')
    return w2i

def d_epi():
    HP = 128
    o = []
    for t in range(3):
        for s in range(2):
            ks = range(4*s, 4*s+4)
            o += [f'v_cvt_pk_bf16_f32 v{HP+8*t+k}, v{DAC+16*t+2*k}, v{DAC+16*t+2*k+1}' for k in ks]
            o += [f'v_pk_max_i16 v{HP+8*t+k}, v{HP+8*t+k}, 0' for k in ks]
            o.append(f'buffer_store_dwordx4 {v(HP+8*t+4*s,4)}, v{vL16}, {sWS}, {[sS0,sS1,sS2][t]} offen offset:{1024*s}@')
    return o

EH, EAC, XE, EST, EG = 80, 176, 40, 56, 64
def e_pre1():
    o = [f's_lshl_b32 {sT0}, {sRB64}, 1', f's_lshr_b32 {sT1}, {sW}, 1', f's_add_u32 {sT0}, {sT0}, {sT1}',
         f's_lshl_b32 {sT2}, {sT0}, 11', f's_add_u32 {sT2}, {sT2}, {STATS}'] + stats_load(EST, sT2)
    o += [f's_xor_b32 {sT1}, {sT0}, 1', f's_mul_i32 {sLB}, {sT1}, {86*1024}', f's_mul_i32 {sLB2}, {sT0}, {86*1024}',
          f's_mul_i32 {sT1}, {sW}, {22*1024}', f's_add_u32 {sT1}, {sT1}, {HB}', f's_add_u32 {sLB}, {sLB}, {sT1}', f's_add_u32 {sLB2}, {sLB2}, {sT1}',
          smov(sS2, 4096), [f's_cmp_eq_u32 {sW}, 3', f's_cselect_b32 {sS2}, {OOB:#x}, {sS2}']]
    o += [f's_lshl_b32 {sT0}, {sW}, 4', f'v_and_b32 v10, 15, v{vL}', f'v_add_u32 v10, {sT0}, v10', f'v_mul_u32_u24 v10, 272, v10',
          f'v_and_b32 v11, 0x30, v{vL}', f'v_add_u32 v10, v10, v11', f'v_add_u32 v10, {XT}, v10']
    o += [f'ds_write_b128 v10, {v(X1+4*j,4)} offset:{64*j}' for j in range(4)]
    o += [f's_lshr_b32 {sT0}, {sW}, 1', f's_mul_i32 {sT0}, {sT0}, {32*272}', f's_and_b32 {sT1}, {sW}, 1', f's_lshl_b32 {sT1}, {sT1}, 7',
          f's_add_u32 {sT0}, {sT0}, {sT1}', f's_add_u32 {sT0}, {sT0}, {XT}',
          f'v_and_b32 v10, 31, v{vL}', f'v_mul_u32_u24 v10, 272, v10', f'v_lshrrev_b32 v11, 5, v{vL}', f'v_lshlrev_b32 v11, 4, v11',
          f'v_add3_u32 v10, v10, v11, {sT0}']
    o += [f's_mul_i32 {sT0}, {sW}, 11', f'v_lshrrev_b32 v12, 2, v{vL}', f'v_mul_u32_u24 v12, 3, v12', f'v_add_u32 v13, 2, v12',
          f'v_cmp_le_u32 {mC0}, {sT0}, v13', f's_add_u32 {sT0}, {sT0}, 10', f's_min_u32 {sT0}, {sT0}, 42', f'v_cmp_ge_u32 {mC1}, {sT0}, v12',
          f'v_bfe_u32 v12, v{vL}, 1, 1', f's_and_b32 {sT0}, {sRB64}, 1', f'v_cmp_eq_u32 {mP}, {sT0}, v12',
          f's_and_b64 {mC0}, {mC0}, {mC1}', f's_and_b64 {mC0}, {mC0}, {mP}']
    return o
def e_pre2():
    o = [f'ds_read_b128 {v(XE+4*q,4)}, v10 offset:{32*q}' for q in range(4)]
    for k in range(8):
        o += [f'v_accvgpr_read_b32 v{EG+2*k+1}, a{AGB+k}', f'v_lshlrev_b32 v{EG+2*k}, 16, v{EG+2*k+1}', f'v_and_b32 v{EG+2*k+1}, 0xffff0000, v{EG+2*k+1}']
    o += stats_ops(EST) + [f'v_rsq_f32 v{EST}, v{EST+1}']
    for rel in (1, 2, 3):
        o += [f's_xor_b32 {sT0}, {sW}, {rel}', f's_mul_i32 {sT0}, {sT0}, 12288', f's_add_u32 {sT0}, {sT0}, {EX + (rel-1)*4096}', f'v_add_u32 v{10+rel}, {sT0}, v{vL16}']
    o += [f'v_mul_f32 v{EG+k}, v{EST}, v{EG+k}' for k in range(16)]
    o += [f's_mul_i32 {sT0}, {sW}, 12288', f's_add_u32 {sT0}, {sT0}, {EX}', f'v_add_u32 v14, {sT0}, v{vL16}']
    o += [f's_lshl_b32 {sT0}, {sRB64}, 16', f's_lshr_b32 {sT1}, {sW}, 1', f's_lshl_b32 {sT1}, {sT1}, 15', f's_add_u32 {sT0}, {sT0}, {sT1}',
          f's_lshl_b32 {sT1}, {sHQ}, 7', f's_add_u32 {sT0}, {sT0}, {sT1}', f's_and_b32 {sT1}, {sW}, 1', f's_lshl_b32 {sT1}, {sT1}, 6',
          f's_add_u32 {sS0}, {sT0}, {sT1}',
          f'v_and_b32 v15, 31, v{vL}', f'v_lshlrev_b32 v15, 10, v15', f'v_lshrrev_b32 v16, 5, v{vL}', f'v_lshl_add_u32 v15, v16, 4, v15']
    return o

def e_main(pre):
    ld = frag_loads(EH, 22, sLB, sS2) + frag_loads(EH + 88, 22, sLB2, sS2)
    LA = opt('ela', 8)
    R(ld[:LA])
    R(pre)
    def mm(tile, slot, rel, i):
        d = a_(EAC + 16*tile, 16) if tile else v(X1, 16)
        return f'v_mfma_f32_32x32x16_bf16 {d}, {a_(8*i+4*slot,4)}, {v(EH+88*rel+4*i,4)}, ' + ('0' if i == 0 else d)
    def wr(tile): return [f'ds_write_b128 v{10+tile}, {a_(EAC+16*tile+4*q,4)} offset:{1024*q}' for q in range(4)]
    w23 = wr(2) + wr(3)
    for j in range(44):
        rel, i = divmod(j, 22)
        if j + LA < 44: R(ld[j+LA])
        m = [mm(2, 0, 0, i), mm(3, 1, 0, i)] if rel == 0 else [mm(1, 1, 1, i), mm(0, 0, 1, i)]
        if rel == 1 and i >= 6 and w23: m.insert(1, w23.pop(0))
        R(m)
    R(wr(1))
    A.barrier()
    for rel in range(3):
        for q in range(4): I(f'ds_read_b128 {v(EH+16+16*rel+4*q,4)}, v14 offset:{4096*rel+1024*q}')
    for rel in range(3):
        for k in range(8): I(f'v_pk_add_f32 {v(X1+2*k,2)}, {v(X1+2*k,2)}, {v(EH+16+16*rel+2*k,2)}')
    for pr in range(2):
        ks = range(4*pr, 4*pr+4)
        for k in ks: I(f'v_pk_fma_f32 {v(X1+2*k,2)}, {v(X1+2*k,2)}, {v(EG+2*k,2)}, {v(XE+2*k,2)}')
        for k in ks: I(f'v_cvt_pk_bf16_f32 v{EH+k}, v{X1+2*k}, v{X1+2*k+1}')
    for pr in range(2):
        for i in range(2): I(f'v_permlane32_swap_b32 v{EH+4*pr+i}, v{EH+4*pr+2+i}')
        I(f'buffer_store_dwordx4 {v(EH+4*pr,4)}, v15, {sOUT}, {sS0} offen offset:{32*pr}')

def gen_update():
    I(f's_lshl_b32 {sT0}, s2, 2')
    I(f's_add_u32 {sT0}, {sT0}, {sW}')
    I(f's_cmp_lg_u32 {sT0}, {120*4}')
    A.settle()
    I('s_cbranch_scc1 L_nogen')
    A.cond = 'gen'
    I(smov(sCNT, SPIN)); I(smov(sT0, HELLO))
    A.label('L_gen')
    for i in range(4): I(f'buffer_load_dwordx4 {v(128+4*i,4)}, v{vL16}, {sWS}, {sT0} offen offset:{1024*i} sc1')
    A.vm0()
    R([f'v_cmp_ne_u64 vcc, {TAG}, v[130:131]', f'v_cmp_ne_u64 s[4:5], {TAG}, v[134:135]', f's_or_b64 vcc, vcc, s[4:5]',
       f'v_cmp_ne_u64 s[4:5], {TAG}, v[138:139]', f's_or_b64 vcc, vcc, s[4:5]', f'v_cmp_ne_u64 s[4:5], {TAG}, v[142:143]', f's_or_b64 vcc, vcc, s[4:5]',
       's_cbranch_scc0 L_gend', f's_sub_u32 {sCNT}, {sCNT}, 1', 's_cbranch_scc0 L_gen'])
    A.label('L_gend')
    I(f'v_lshlrev_b32 v128, 24, v{vL}')
    I(smov(sT0, GEN))
    I(f'buffer_store_dwordx2 {v(vTAG,2)}, v128, {sWS}, {sT0} offen sc1')
    A.settle()
    A.cond = None
    A.label('L_nogen')

def finish():
    if DEBUG:
        A.vm0()
        ts('end')
        A._emit(Ins('s_memrealtime s[6:7]'))
        A.lg0(force=True)
        for i in range(22): I(f'v_writelane_b32 v4, s{TS0+i}, {i}')
        I('v_writelane_b32 v4, s100, 30'); I('v_writelane_b32 v4, s101, 31')
        I('v_writelane_b32 v4, s6, 32'); I('v_writelane_b32 v4, s7, 33'); I(f'v_writelane_b32 v4, {sFAST}, 34'); I(f'v_writelane_b32 v4, {sXCC}, 35')
        R([f's_lshl_b32 {sT0}, s2, 2', f's_add_u32 {sT0}, {sT0}, {sW}', f's_lshl_b32 {sT0}, {sT0}, 8', f's_add_u32 {sT0}, {sT0}, {TSB}',
           f'v_lshlrev_b32 v5, 2, v{vL}', f'buffer_store_dword v4, v5, {sWS}, {sT0} offen'])
    A.label('L_end')
    I('s_endpgm')
    for s in slow_blocks: s()

def stage(tok):
    A.waitvm(tok); A.barrier()

def main():
    prologue()
    R(mod_setup()); R(x_setup())
    I(f's_load_dwordx2 {TAG}, s[40:41], {GEN}')
    ts('karg')
    A._emit_nodep(f'buffer_load_dword v{vDUM}, v24, {sWM}, {sT3} offen')
    I(f's_cmp_ge_u32 {sRK}, 12')
    I('s_cbranch_scc1 L_nomod1')
    A.cond = 'mod'; mod_issue(); A.cond = None
    A.label('L_nomod1')
    R(pf_x()); R(pf_wq(0)); R(pf_wq(1))
    XPRE = opt('xpre', 1)
    for rg in range(XPRE): R(x_issue(rg))
    ts('pfiss')
    R(hello())
    I(f's_cmp_ge_u32 {sRK}, 12')
    A.settle()
    I('s_cbranch_scc1 L_nomod2')
    A.cond = 'mod'; mod_compute(); A.settle(); A.cond = None
    A.label('L_nomod2')
    ts('modpub')
    for rg in range(XPRE, 5): R(x_issue(rg))
    ts('xiss')
    R(dma_setup())
    xs = x_ops()
    W = lambda a, b: [g for ks in range(a, b) for g in wq_issue(ks)]
    RD = lambda a, b: [o for ks in range(a, b) for o in wq_read(ks)]
    R(pace(cat(b_setup(), *xs[:6]), W(0, 5)))
    ts('s0a')
    stage('ks1')
    ts('s0')
    R(pace(spread(cat(*xs[6:9], gather_setup()), RD(0, 2)), W(5, 8) + [pf_wo()]))
    stage('ks3')
    ts('s1')
    R(gather_loads())
    R(pace(spread(cat(*xs[9:12]), RD(2, 4)), W(8, 10)))
    stage('ks5')
    ts('s2')
    R(pace(spread(xs[12], RD(4, 6)), W(10, 12)))
    stage('ks7')
    ts('s3')
    w = W(12, 14)
    R(w[:3])
    gather_check()
    ts('gath')
    R(pace(RD(6, 8), w[3:], period=20))
    stage('ks9')
    ts('s4')
    R(h_gsread(0))
    R(pace(RD(8, 10) + h_conv(0, True), W(14, 16), period=50))
    stage('ks11')
    ts('mf0')
    R(h_read(0))
    w2i = w2_issue(0)
    vm = {0: [pf_w2a()] + [wo_issue(i) for i in range(6)] + [pf_misc()],
          1: [pf_w1(0)] + [wo_issue(i) for i in range(6, 12)] + [pf_w1(1)],
          2: [wo_issue(i) for i in range(12, 16)] + w2i[:7],
          3: w2i[7:] + [pf_w2b(), c_xload()]}
    oth = {0: RD(10, 12), 1: RD(12, 16), 2: modvec_read(), 3: att_setup() + pub_setup()}
    for c in range(4):
        fill = (h_gsread(c+1) + oth[c][:8] + spread(h_conv(c+1, False), oth[c][8:])) if c < 3 else oth[c]
        if c < 3:
            fill = spread(fill, vm[c])
        else:
            fill = spread(fill, vm[c])
        n = len(fill)
        cuts = [0, n*3//10, n*6//10, n*9//10, n] if c < 3 else [0, n//2, n, n, n]
        for kl in range(4):
            ks = 4*c + kl
            f = fill[cuts[kl]:cuts[kl+1]]
            mm = qkv_mfma(ks)
            if kl < 3:
                if c == 3 and kl == 2: f = []
                R(mweave(mm, h_read(ks+1) + f))
            elif c < 3:
                R(mweave(mm[:7], f))
                if c == 0: A.waitvm('ks15')
                A.barrier()
                R(mweave(mm[7:], h_read(ks+1)))
            else:
                R(mm[:1]); A.waitvm('w2_0')
                R(mweave(mm[1:], w2_read(0)))
    A.waitvm('wo')
    A.barrier()
    ts('qkv')
    att, tail = attention()
    w1 = [g for i in range(8) for g in w1_issue(i)]
    NW1 = opt('nw1', 8)
    R(pace(att, w1[:NW1], period=70))
    publish(tail, 0)
    ts('opub')
    R(pace(c_pre() + w2_rebase(15*K, RA), w1[NW1:] + [pf_h()], period=40))
    R([poll_load(0)])
    poll_check(0, mC0)
    ts('opoll')
    c_main()
    publish(c_epi(), 1)
    ts('ypub')
    R(d_setup())
    A.barrier()
    d_ut(spread(d_setup2(), w2_issue(1)))
    R([poll_load(1)])
    A.barrier()
    R(d_ut2())
    gen_update()
    poll_check(1, mC0)
    ts('ypoll')
    rest = d_main()
    publish(d_epi(), 2)
    ts('hpub')
    A.barrier()
    I(f's_lshl_b32 {sP}, {sW}, 11'); I(f's_add_u32 {sP}, {sP}, {W2X}')
    R(pace(e_pre1(), rest + w2_issue(3, sP), period=30))
    R([poll_load(2)])
    A.barrier()
    R(e_pre2())
    poll_check(2, mC0)
    ts('hpoll')
    e_main(w2_read(2) + w2_rebase(2*K, W2X) + w2_read(3))
    finish()

main()
hdr = open(f'cdna_kernels/{NAME}.s.ref').read().split('\n')
head = [l for l in hdr if l.startswith(';') and '@launch' not in l]
out = '\n'.join(head) + '\n; @launch grid=(256,1,1) block=(256,1,1) lds=163840\n'
out += f'''.amdgcn_target "amdgcn-amd-amdhsa--gfx950"
.text
.globl {NAME}_kernel
.p2align 8
.type {NAME}_kernel,@function
{NAME}_kernel:
'''
out += A.text()
out += f'''.fill @PAD@, 4, 0xbf810000
.section .rodata,"a"
.p2align 6
.amdhsa_kernel {NAME}_kernel
  .amdhsa_next_free_vgpr 512
  .amdhsa_next_free_sgpr 102
  .amdhsa_accum_offset 256
  .amdhsa_group_segment_fixed_size 0
  .amdhsa_kernarg_size 88
  .amdhsa_user_sgpr_count 2
  .amdhsa_user_sgpr_kernarg_segment_ptr 1
  .amdhsa_system_sgpr_workgroup_id_x 1
.end_amdhsa_kernel
'''
dst = sys.argv[1]
import subprocess, re
def textsize(t):
    open('_sz.s', 'w').write(t)
    subprocess.run(['clang', '-x', 'assembler', '-target', 'amdgcn-amd-amdhsa', '-mcpu=gfx950', '-c', '_sz.s', '-o', '_sz.o'], check=True)
    h = subprocess.run(['llvm-objdump', '-h', '_sz.o'], capture_output=True, text=True).stdout
    return int(re.search(r'\.text\s+([0-9a-f]+)', h).group(1), 16)
sz = textsize(out.replace('@PAD@', '1'))
out = out.replace('@PAD@', str(max(1, (33024 - sz) // 4 + 2)))
assert textsize(out) >= 33024
print('code bytes', sz, file=sys.stderr)
open(dst, 'w').write(out)
if DEBUG: open(dst + '.ts', 'w').write(','.join(tsnames))
print(A.stats, 'nops', A.nnop, 'waits', A.nwait, file=sys.stderr)
```

```python
import re

REG_RE = re.compile(r'^(-|\|)?([vas])(?:(\d+)|\[(\d+):(\d+)\])\|?$')
TRANS = ('v_exp_f32', 'v_log_f32', 'v_rcp_f32', 'v_rsq_f32', 'v_sqrt_f32', 'v_sin_f32', 'v_cos_f32')


def regs_of(op):
    op = op.strip()
    if op == 'vcc':
        return {('s', 106), ('s', 107)}
    if op == 'vcc_lo':
        return {('s', 106)}
    if op == 'vcc_hi':
        return {('s', 107)}
    if op == 'exec':
        return {('s', 126), ('s', 127)}
    if op == 'exec_lo':
        return {('s', 126)}
    if op == 'exec_hi':
        return {('s', 127)}
    if op == 'm0':
        return {('s', 124)}
    m = REG_RE.match(op)
    if not m:
        return set()
    k = m.group(2)
    if m.group(3) is not None:
        return {(k, int(m.group(3)))}
    return {(k, i) for i in range(int(m.group(4)), int(m.group(5)) + 1)}


VCC = {('s', 106), ('s', 107)}
EXEC = {('s', 126), ('s', 127)}
M0 = {('s', 124)}


class Ins:
    __slots__ = ('text', 'mn', 'cls', 'w', 'r', 'states', 'A', 'B', 'C', 'passes', 'sgemm', 'dpp', 'wide', 'data', 'dma', 'dot')

    def __init__(self, text):
        self.text = text
        t = text.split(';')[0].strip()
        parts = t.split(None, 1)
        mn = parts[0]
        rest = parts[1] if len(parts) > 1 else ''
        ops, depth, cur = [], 0, ''
        for ch in rest:
            if ch == '[':
                depth += 1
            if ch == ']':
                depth -= 1
            if ch == ',' and depth == 0:
                ops.append(cur.strip()); cur = ''
            else:
                cur += ch
        if cur.strip():
            ops.append(cur.strip())
        mods = ''
        if ops:
            last = ops[-1].split(None, 1)
            ops[-1] = last[0]
            mods = last[1] if len(last) > 1 else ''
        self.mn = mn
        self.states = 1
        self.A = self.B = self.C = set()
        self.passes = 0
        self.sgemm = False
        self.dpp = False
        self.wide = False
        self.data = set()
        self.dma = False
        self.dot = False
        R = [regs_of(o) for o in ops]
        U = lambda l: set().union(*l) if l else set()
        base = re.sub(r'_(e32|e64|dpp|sdwa)$', '', mn)
        if mn.startswith('v_mfma'):
            self.cls = 'mfma'
            self.w = R[0]; self.A, self.B, self.C = R[1], R[2], R[3]
            self.r = R[1] | R[2] | R[3]
            if '32x32x16' in mn: self.passes = 8
            elif '16x16x32' in mn or '16x16x16' in mn: self.passes = 4
            elif '32x32x2_f32' in mn: self.passes = 16; self.sgemm = True
            elif '16x16x4_f32' in mn: self.passes = 8; self.sgemm = True
            else: raise ValueError(mn)
        elif mn.startswith('v_'):
            self.cls = 'valu'
            self.dpp = ('dpp' in mn) or any(k in mods for k in ('row_', 'quad_perm', 'wave_'))
            if base.startswith('v_permlane') and 'swap' in base:
                self.w = R[0] | R[1]; self.r = R[0] | R[1]
            elif base.startswith('v_cmpx'):
                self.w = set(EXEC) | R[0]; self.r = U(R[1:])
            elif base in ('v_add_co_u32', 'v_sub_co_u32', 'v_addc_co_u32', 'v_subb_co_u32', 'v_mad_u64_u32'):
                self.w = R[0] | R[1]; self.r = U(R[2:])
            elif base == 'v_nop':
                self.w = set(); self.r = set()
            else:
                self.w = R[0]; self.r = U(R[1:])
                if base in ('v_fmac_f32', 'v_dot2c_f32_bf16', 'v_writelane_b32', 'v_pk_fmac_f16') or self.dpp:
                    self.r = self.r | R[0]
                if base == 'v_cndmask_b32' and len(ops) == 3:
                    self.r = self.r | VCC
            self.dot = base.startswith('v_dot')
        elif mn.startswith('ds_'):
            self.cls = 'ds'
            if mn.startswith('ds_read') or mn.startswith('ds_bpermute') or mn.startswith('ds_permute') or mn.startswith('ds_swizzle'):
                self.w = R[0]; self.r = U(R[1:])
            else:
                self.w = set(); self.r = U(R)
        elif mn.startswith('buffer_') or mn.startswith('global_'):
            self.cls = 'vmem'
            allm = ' ' + mods + ' '
            if mn in ('buffer_wbl2', 'buffer_inv'):
                self.w = set(); self.r = set()
            elif ' lds ' in allm:
                self.dma = True
                self.w = set(); self.r = U(R) | M0
            elif 'load' in mn:
                self.w = R[0]; self.r = U(R[1:])
            elif mn.startswith('buffer_atomic'):
                self.w = set(); self.r = U(R)
            elif mn.startswith('buffer_store'):
                self.w = set(); self.r = U(R); self.data = R[0]
                self.wide = mn.endswith('x4') or mn.endswith('x3')
            elif mn.startswith('global_store'):
                self.w = set(); self.r = U(R); self.data = R[1]
                self.wide = mn.endswith('x4') or mn.endswith('x3')
            else:
                raise ValueError(mn)
        elif mn.startswith('s_'):
            if mn.startswith('s_load') or mn.startswith('s_memtime') or mn.startswith('s_memrealtime'):
                self.cls = 'smem'; self.w = R[0]; self.r = U(R[1:])
            else:
                self.cls = 'salu'
                if mn == 's_nop':
                    self.states = int(ops[0]) + 1; self.w = set(); self.r = set()
                elif mn.startswith('s_cmp') or mn.startswith('s_cbranch') or mn.startswith('s_bitcmp') or mn in ('s_branch', 's_waitcnt', 's_barrier', 's_endpgm', 's_sleep', 's_setprio'):
                    self.w = set(); self.r = U(R)
                elif 'saveexec' in mn:
                    self.w = R[0] | EXEC; self.r = U(R[1:]) | EXEC
                else:
                    self.w = R[0]; self.r = U(R[1:])
        else:
            raise ValueError('unknown instr ' + text)


def isv(s):
    return {x for x in s if x[0] in 'va'}


def iss(s):
    return {x for x in s if x[0] == 's'}


def need(p, c):
    n = 0
    if p.cls == 'valu':
        wv = isv(p.w); ws = iss(p.w)
        if c.cls == 'mfma':
            if wv & c.r: n = max(n, 3 if p.dot else 2)
            if ws & EXEC: n = max(n, 4)
        if c.cls == 'valu':
            if c.dpp and (wv & c.r): n = max(n, 2)
            if c.dpp and (ws & EXEC): n = max(n, 5)
            if c.mn.startswith('v_permlane') and (wv & c.r): n = max(n, 2)
            if c.mn.startswith('v_permlane') and (ws & EXEC): n = max(n, 4)
            if (c.mn.startswith('v_readlane') or c.mn.startswith('v_readfirstlane')) and (wv & c.r): n = max(n, 1)
            if (c.mn.startswith('v_readlane') or c.mn.startswith('v_readfirstlane') or c.mn.startswith('v_writelane')):
                if ws & EXEC: n = max(n, 4)
                if ws & c.r: n = max(n, 4)
            if ws & c.r: n = max(n, 2)
            if any(p.mn.startswith(t) for t in TRANS) and (wv & c.r): n = max(n, 1)
            if ('op_sel' in p.text and not p.mn.startswith('v_pk')) or 'sdwa' in p.mn:
                if wv & (c.r | c.w): n = max(n, 1)
            if p.dot and (wv & (c.r | c.w)):
                same = re.sub(r'_(e32|e64|dpp)$', '', p.mn) == re.sub(r'_(e32|e64|dpp)$', '', c.mn)
                if not (same and c.w == p.w):
                    n = max(n, 3)
        if c.cls == 'vmem' and (ws & c.r): n = max(n, 5)
        if p.dot and c.cls in ('vmem', 'ds') and (wv & c.r): n = max(n, 3)
    elif p.cls == 'mfma':
        D = p.w
        idx = {4: 0, 8: 1, 16: 2}[p.passes]
        if c.cls == 'mfma':
            if D & (c.A | c.B):
                n = max(n, ([6, 10, 18] if p.sgemm else [8, 12, 20])[idx])
            if D & c.C:
                if p.sgemm:
                    if c.sgemm and not (c.C == D and c.passes == p.passes): n = max(n, [4, 8, 16][idx])
                else:
                    if c.sgemm or not (c.C == D and c.passes == p.passes): n = max(n, [6, 10, 18][idx])
            elif D & c.w:
                n = max(n, [8, 12, 20][idx])
        elif c.cls in ('valu', 'ds', 'vmem'):
            if D & (c.r | c.w):
                n = max(n, ([6, 10, 18] if p.sgemm else [8, 12, 20])[idx])
            if c.cls == 'valu' and not p.sgemm and (p.C & c.w):
                n = max(n, [3, 7, 15][idx])
    elif p.cls == 'vmem':
        if p.wide and (p.data & c.w):
            n = max(n, 2 if c.cls in ('valu', 'mfma') else 1)
    elif p.cls == 'salu':
        if (p.w & M0) and c.cls == 'vmem' and c.dma: n = max(n, 1)
    return n


class Asm:
    def __init__(self):
        self.lines = []
        self.hist = []
        self.vm = []
        self.lg = []
        self.sm = set()
        self.cond = None
        self.nuniq = 0
        self.stats = {}
        self.nnop = 0
        self.nwait = 0
        self.tokc = {}

    def uniq(self, p):
        self.nuniq += 1
        return f'L_{p}_{self.nuniq}'

    def raw(self, s):
        self.lines.append(s)

    def comment(self, s):
        self.lines.append('    ; ' + s)

    def _emit(self, ins):
        self.lines.append('    ' + ins.text)
        self.hist.append(ins)
        if len(self.hist) > 40:
            self.hist.pop(0)
        self.stats[ins.cls] = self.stats.get(ins.cls, 0) + 1

    def _after(self, q, i):
        return sum(1 for e in q[i + 1:] if e[2] is None or e[2] == self.cond)

    def _wait(self, vm=None, lg=None):
        s = []
        if vm is not None: s.append(f'vmcnt({min(vm, 63)})')
        if lg is not None: s.append(f'lgkmcnt({min(lg, 15)})')
        self._emit(Ins('s_waitcnt ' + ' '.join(s)))
        self.nwait += 1

    def _retire(self, q, i):
        if self.cond is None:
            del q[:i + 1]
        else:
            keep = [e for k, e in enumerate(q) if k > i or (e[2] != self.cond)]
            for k, e in enumerate(q):
                if k <= i and e[2] != self.cond:
                    e[3].add(self.cond)
            q[:] = keep

    def _find(self, q, regs):
        last = -1
        for i, e in enumerate(q):
            if (e[0] & regs) and self.cond not in e[3]:
                last = i
        return last

    def I(self, text, tok=None):
        ins = Ins(text)
        touch = ins.r | ins.w
        vm = lg = None
        i = self._find(self.vm, touch)
        if i >= 0:
            vm = self._after(self.vm, i); self._retire(self.vm, i)
        if self.sm & touch:
            lg = 0; self.sm = set()
            if self.lg: self._retire(self.lg, len(self.lg) - 1)
        else:
            j = self._find(self.lg, touch)
            if j >= 0:
                lg = self._after(self.lg, j); self._retire(self.lg, j)
        if vm is not None or lg is not None:
            self._wait(vm, lg)
        dist = 0
        req = 0
        for p in reversed(self.hist):
            n = need(p, ins)
            if n - dist > req: req = n - dist
            dist += p.states
            if dist >= 20: break
        while req > 0:
            k = min(req, 16)
            self._emit(Ins(f's_nop {k - 1}')); self.nnop += 1
            req -= k
        self._emit(ins)
        if tok: self.tokc[tok] = self.tokc.get(tok, 0) + 1
        if ins.cls == 'vmem':
            self.vm.append((ins.w, tok, self.cond, set()))
        elif ins.cls == 'ds':
            self.lg.append((ins.w, tok, self.cond, set()))
        elif ins.cls == 'smem':
            self.sm |= ins.w
        return ins

    def waitvm(self, tok, n=None):
        assert n is None or self.tokc.get(tok, 0) == n, (tok, self.tokc.get(tok, 0))
        last = -1
        for i, e in enumerate(self.vm):
            if e[1] == tok and self.cond not in e[3]: last = i
        if last >= 0:
            n = self._after(self.vm, last); self._retire(self.vm, last)
            self._wait(vm=n)

    def waitlg(self, tok):
        last = -1
        for i, e in enumerate(self.lg):
            if e[1] == tok and self.cond not in e[3]: last = i
        if last >= 0:
            n = self._after(self.lg, last); self._retire(self.lg, last)
            self._wait(lg=n)

    def vm0(self):
        self._wait(vm=0)
        if self.vm: self._retire(self.vm, len(self.vm) - 1)

    def lg0(self, force=False):
        if self.lg or self.sm or force:
            self._wait(lg=0)
            if self.lg: self._retire(self.lg, len(self.lg) - 1)
            self.sm = set()

    def barrier(self):
        self.lg0()
        self.I('s_barrier')

    def settle(self):
        dist = 0; req = 0
        for p in reversed(self.hist):
            n = 0
            if p.cls == 'mfma': n = {4: 8, 8: 12, 16: 20}[p.passes]
            elif p.cls == 'valu': n = 5 if iss(p.w) else (3 if p.dot else 2)
            elif p.cls == 'vmem' and p.wide: n = 2
            elif p.cls == 'salu' and (p.w & M0): n = 1
            req = max(req, n - dist)
            dist += p.states
            if dist >= 20: break
        req -= 1
        while req > 0:
            k = min(req, 16)
            self._emit(Ins(f's_nop {k - 1}')); self.nnop += 1
            req -= k

    def label(self, l):
        self.lines.append(l + ':')

    def run(self, ops):
        for o in ops:
            if callable(o): o()
            elif isinstance(o, tuple): self.I(o[0], tok=o[1])
            else: self.I(o)

    def text(self):
        return '\n'.join(self.lines) + '\n'


def weave(main, fill, per=2, start=0):
    out = []; k = 0
    for i, m in enumerate(main):
        out.append(m)
        if i >= start:
            for _ in range(per):
                if k < len(fill):
                    out.append(fill[k]); k += 1
    out.extend(fill[k:])
    return out


def _txt(o):
    return o[0] if isinstance(o, tuple) else o


def cost(o):
    if isinstance(o, list): return sum(cost(x) for x in o)
    if callable(o): return 4
    t = _txt(o)
    if t.startswith('v_mfma'): return 8
    if t.startswith('buffer_') or t.startswith('global_'): return 10
    if any(t.startswith(x) for x in TRANS) or t.startswith('v_permlane'): return 8
    if t.startswith('ds_write_b128'): return 12
    return 4


def mdur(o):
    t = _txt(o)
    if '32x32x16' in t: return 32
    if '32x32x2' in t: return 64
    return 16


def isds(o):
    return (not callable(o)) and (not isinstance(o, list)) and _txt(o).startswith('ds_')


def isvalu(o):
    return (not callable(o)) and (not isinstance(o, list)) and _txt(o).startswith('v_') and not _txt(o).startswith('v_mfma')


def flat(l):
    out = []
    for o in l:
        if isinstance(o, list): out.extend(flat(o))
        else: out.append(o)
    return out


def pace(main, groups, period=80, first=0):
    out = []; t = 0; nxt = first; k = 0
    for o in main:
        if k < len(groups) and t >= nxt:
            out.append(groups[k]); nxt = t + period; t += cost(groups[k]); k += 1
        out.append(o); t += cost(o)
    out.extend(groups[k:])
    return flat(out)


def spread(a, b):
    if not b: return list(a)
    out = []; k = 0
    n = max(len(a), 1)
    for i, o in enumerate(a):
        while k < len(b) and k * n <= i * len(b):
            out.append(b[k]); k += 1
        out.append(o)
    out.extend(b[k:])
    return out


def mweave(mf, fill, skip=0):
    tot = sum(cost(f) for f in fill)
    cap = sum(mdur(m) - 8 for m in mf[skip:])
    scale = max(1.0, tot / max(cap, 1))
    out = []; k = 0; budget = 0.0
    for i, m in enumerate(mf):
        out.append(m)
        if i < skip: continue
        budget = min(budget, 0.0) + (mdur(m) - 8) * scale
        seenv = False
        while k < len(fill) and budget >= min(cost(fill[k]), 8) - 0.01:
            f = fill[k]
            if isds(f) and seenv: break
            if isvalu(f): seenv = True
            out.append(f); budget -= cost(f); k += 1
    out.extend(fill[k:])
    return flat(out)
```

```python
import sys, struct
from asm import Asm, Ins, weave, pace, spread, mweave, flat

NAME = 'adaLN_cond__sliding_local_dilated__dense_activation_relu__prompt'
DEBUG = any(a.startswith('--ts') for a in sys.argv)
TSSEL = None
OPT = {}
for a in sys.argv:
    if a.startswith('--ts='): TSSEL = set(a[5:].split(',')) | {'start', 'end'}
    if a.startswith('--opt='):
        for kv in a[6:].split(','):
            k, _, val = kv.partition('=')
            OPT[k] = int(val) if val else 1
TSDEF = set('start,xiss,s3,mf0,qkv,opub,opoll,ypub,ypoll,hpub,hpoll,end'.split(','))
def opt(k, d=0): return OPT.get(k, d)

GRAN, HELLO, GEN, FLAGS, STATS = 0x0, 0x3000, 0x4000, 0x10000, 0x20000
OB, YB, HB, TSB = 0x100000, 0x300000, 0x500000, 0xB00000
WS_SIZE = 0x1000000
OOB = 0x40000000
K = 1024
RA, RB = 0, 64 * K
HF = 112 * K
GS = 152 * K
MV = 156 * K
MR = MV
UT = 60 * K
EX = RB
XT = RB + 48 * K
W2X = RB + 66 * K
sX, sWQ, sWO, sW1, sW2, sC, sWM, sOUT, sWS = [f's[{i}:{i+3}]' for i in range(8, 44, 4)]
TAG = 's[44:45]'
sW, sXG, sRK, sRB64, sHQ, sGRP, sR, sXCC, sFAST = [f's{i}' for i in range(46, 55)]
sT0, sT1, sT2, sT3, sT4 = [f's{i}' for i in range(55, 60)]
mP, mC0, mC1 = 's[60:61]', 's[62:63]', 's[64:65]'
sCNT, sD, sM3, sM1, sM2, sP, sLB, sLB2, sS0, sS1, sS2, sCBK = [f's{i}' for i in range(66, 78)]
sG0, sG1, sG2 = 's3', 's4', 's5'
TS0 = 78
SPIN = 20000
LOG2E = 1.4426950408889634

def f2u(x): return struct.unpack('<I', struct.pack('<f', x))[0]
def v(i, n=1): return f'v{i}' if n == 1 else f'v[{i}:{i+n-1}]'
def a_(i, n=1): return f'a{i}' if n == 1 else f'a[{i}:{i+n-1}]'
def smov(d, x): return f's_mov_b32 {d}, {x:#x}'

A = Asm()
I = A.I
R = lambda l: A.run(flat(l))
def cat(*ls): return [o for l in ls for o in l]
tsnames = []
def ts(name):
    if not DEBUG or name not in (TSSEL or TSDEF): return
    i = len(tsnames)
    assert i < 11
    tsnames.append(name)
    A._emit(Ins(f's_memtime s[{TS0+2*i}:{TS0+1+2*i}]'))

vL, vL16, vFO = 1, 2, 3
vWQ, vTR, vHW, vGSA, vHR, vWO, vT128, vW2, vW2R, vW1 = 6, 7, 9, 14, 15, 17, 18, 20, 21, 23
vFS, vTAG = 6, 8
XB = 96
def xr(rg, c): return XB + c * 40 + rg * 8
vXO = 88
GSR = 80
GA = 24
WM0, WMC, WMA = 40, 72, 80

def prologue():
    I('s_cmp_ge_u32 s2, 256')
    I('s_cbranch_scc1 L_end')
    if DEBUG: A._emit(Ins('s_memrealtime s[100:101]'))
    ts('start')
    order = [(32, 56), (28, 48), (8, 0), (40, 80), (12, 8), (16, 16), (20, 32), (24, 40), (36, 64)]
    for s, off in order[:4]:
        I(f's_load_dwordx2 s[{s}:{s+1}], s[0:1], {off}')
    I('s_getpc_b64 s[6:7]')
    I(f'v_lshlrev_b32 v{vT128}, 7, v0')
    I(f'v_lshrrev_b32 v4, 6, v0')
    if not opt('nocode'):
        I(f's_bfe_u32 {sT0}, s2, 0x20003')
        I(f'v_cmp_eq_u32 vcc, {sT0}, v4')
        I(f's_mov_b64 exec, vcc')
        A._emit_nodep(f'global_load_dword a247, v{vT128}, s[6:7]')
        I(f's_mov_b64 exec, -1')
    ts('pa')
    for s, off in order[4:]:
        I(f's_load_dwordx2 s[{s}:{s+1}], s[0:1], {off}')
    I(f'v_and_b32 v{vL}, 63, v0')
    I(f'v_readfirstlane_b32 {sW}, v4')
    sizes = {8: 2097152, 12: 1572864, 16: 524288, 20: 1409024, 24: 1409024, 28: 1024, 32: 3145728, 36: 2097152, 40: WS_SIZE}
    global late_srd
    late_srd = []
    for s, off in order:
        o = [smov(f's{s+2}', sizes[s]), smov(f's{s+3}', 0x20000)]
        if s in (32, 28, 8): R(o)
        else: late_srd += o
    I(f's_and_b32 {sXG}, s2, 7')
    I(f's_lshr_b32 {sRK}, s2, 3')
    I(f's_lshr_b32 {sT0}, {sRK}, 3')
    I(f's_lshl_b32 {sRB64}, {sXG}, 2')
    I(f's_add_u32 {sRB64}, {sRB64}, {sT0}')
    I(f's_and_b32 {sHQ}, {sRK}, 7')
    I(f's_lshr_b32 {sGRP}, {sRB64}, 1')
    I(f's_and_b32 {sR}, {sRK}, 15')
    I(f'v_lshlrev_b32 v{vL16}, 4, v{vL}')

vMA, vMC = 26, 27
def mod_setup():
    return [
        f's_lshr_b32 {sT1}, {sRK}, 1',
        f's_add_u32 {sT0}, {sT1}, {sXG}',
        f's_and_b32 {sT0}, {sT0}, 7',
        f's_lshl3_add_u32 {sT0}, {sT1}, {sT0}',
        f's_and_b32 {sT1}, {sRK}, 1',
        f's_lshl1_add_u32 {sCBK}, {sT0}, {sT1}',
        f'v_lshrrev_b32 v{vMA}, 2, v{vL}',
        f'v_mul_u32_u24 v{vMA}, {8*6144}, v{vMA}',
        f'v_and_b32 v{vMC}, 0x30, v{vL16}',
        f'v_add_u32 v{vMA}, v{vMC}, v{vMA}',
        f's_mul_i32 {sT0}, {sW}, {128*6144}',
        f's_lshl_b32 {sT1}, {sCBK}, 6',
        f's_add_u32 {sS0}, {sT0}, {sT1}',
        f's_bitcmp1_b32 {sRK}, 0',
        f's_cselect_b32 {sT0}, 8, 0',
        f's_cselect_b32 {sT1}, {4*6144}, 0',
        f's_cselect_b32 {sS1}, 0, {4*6144}',
        f'v_lshlrev_b32 v{vMC}, 2, v0',
        f'v_xor_b32 v{vMC}, {sT0}, v{vMC}',
        f's_add_u32 {sS1}, {sS0}, {sS1}',
        f's_add_u32 {sS0}, {sS0}, {sT1}',
    ]

def mod_issue():
    o = [[f'buffer_load_dword v{WMC}, v{vMC}, {sC}, 0 offen'], []]
    for j in range(8):
        sr = sS0 if j < 4 else sS1
        o[j>>2].append(f'buffer_load_dwordx4 {v(WM0+4*j,4)}, v{vMA}, {sWM}, {sr} offen')
        if j & 3 != 3: o[j>>2].append(f's_add_u32 {sr}, {sr}, 6144')
    return o

def mod_compute():
    o = []
    I = o.append
    c = WMC
    for i in range(8): I(f'v_mov_b32 v{WMA+i}, 0')
    I(f'v_and_b32 v4, 3, v{vL}')
    I(f'v_lshlrev_b32 v4, 5, v4')
    I(f'v_lshrrev_b32 v5, 4, v{vL}')
    I(f'v_lshl_add_u32 v4, v5, 3, v4')
    I(f's_lshl_b32 {sT2}, {sW}, 7')
    I(f's_add_u32 {sT2}, {sT2}, {MR}')
    I(f'v_add_u32 v4, {sT2}, v4')
    I(f'v_and_b32 v24, 0x70, v{vL16}')
    I(f'v_add_u32 v5, {MR}, v24')
    I(f'v_cmp_gt_u32 vcc, 8, v0')
    I(f'v_mov_b32 v25, {OOB:#x}')
    I(f's_lshr_b32 {sT2}, {sCBK}, 4')
    I(f'v_cndmask_b32 v24, v25, v24, vcc')
    I(f's_lshr_b32 {sT3}, 0x12, {sT2}')
    I(f's_and_b32 {sT3}, {sT3}, 1')
    I(f's_mul_i32 {sT3}, {sT3}, {f2u(1.0):#x}')
    I(f's_lshl_b32 {sT2}, {sCBK}, 7')
    I(f'v_lshlrev_b32 v{c+4}, 16, v{c}')
    I(lambda: ts('mc'))
    I(f'v_and_b32 v{c+5}, 0xffff0000, v{c}')
    for k in (4, 5): I(f'v_mul_f32 v{c+k+2}, {-LOG2E!r}, v{c+k}')
    for k in (4, 5): I(f'v_exp_f32 v{c+k+2}, v{c+k+2}')
    for k in (4, 5): I(f'v_add_f32 v{c+k+2}, 1.0, v{c+k+2}')
    for k in (4, 5): I(f'v_rcp_f32 v{c+k+2}, v{c+k+2}')
    for k in (4, 5): I(f'v_mul_f32 v{c+k}, v{c+k}, v{c+k+2}')
    I(f'v_cvt_pk_bf16_f32 v{c+4}, v{c+4}, v{c+5}')
    I(smov(sT0, 0x05040100)); I(smov(sT1, 0x07060302))
    for j in range(4):
        I(f'v_mov_b32_dpp v{c+j}, v{c+4} quad_perm:[{j},{j},{j},{j}] row_mask:0xf bank_mask:0xf')
    for j in range(4):
        r0, r1 = WM0 + 8*j, WM0 + 8*j + 4
        for d in range(4):
            I(f'v_perm_b32 v{c+4+(d&1)*2}, v{r1+d}, v{r0+d}, {sT0}')
            if d == 0: I(lambda j=j: ts(f'mw{j}'))
            I(f'v_perm_b32 v{c+5+(d&1)*2}, v{r1+d}, v{r0+d}, {sT1}')
            I(f'v_dot2c_f32_bf16 v{WMA+2*d}, v{c+4+(d&1)*2}, v{c+j}')
            I(f'v_dot2c_f32_bf16 v{WMA+2*d+1}, v{c+5+(d&1)*2}, v{c+j}')
    m = WMA
    for i in range(4): I(f'v_permlane32_swap_b32 v{m+i}, v{m+i+4}')
    for i in range(4): I(f'v_add_f32 v{m+i}, v{m+i}, v{m+i+4}')
    for i in range(2): I(f'v_permlane16_swap_b32 v{m+i}, v{m+i+2}')
    for i in range(2): I(f'v_add_f32 v{m+i}, v{m+i}, v{m+i+2}')
    for rot in (8, 4):
        for i in range(2): I(f'v_add_f32_dpp v{m+i}, v{m+i}, v{m+i} row_ror:{rot} row_mask:0xf bank_mask:0xf')
    I(f'ds_write_b64 v4, {v(m,2)}')
    I(f'v_mov_b32 v30, s44')
    I(f'v_mov_b32 v31, s45')
    I(lambda: ts('mb0'))
    I(A.barrier)
    I(lambda: ts('mb1'))
    for w in range(4): I(f'ds_read_b128 {v(WM0+4*w,4)}, v5 offset:{128*w}')
    for i in (0, 2): I(f'v_pk_add_f32 {v(WM0+i,2)}, {v(WM0+i,2)}, {v(WM0+4+i,2)}')
    for i in (0, 2): I(f'v_pk_add_f32 {v(WM0+8+i,2)}, {v(WM0+8+i,2)}, {v(WM0+12+i,2)}')
    for i in (0, 2): I(f'v_pk_add_f32 {v(WM0+i,2)}, {v(WM0+i,2)}, {v(WM0+8+i,2)}')
    I(f'v_cvt_pk_bf16_f32 v{WM0+4}, v{WM0}, v{WM0+1}')
    I(f'v_cvt_pk_bf16_f32 v{WM0+5}, v{WM0+2}, v{WM0+3}')
    for i in range(2):
        I(f'v_lshlrev_b32 v{WM0+2*i}, 16, v{WM0+4+i}')
        I(f'v_and_b32 v{WM0+2*i+1}, 0xffff0000, v{WM0+4+i}')
    for i in range(4): I(f'v_add_f32 v{WM0+i}, {sT3}, v{WM0+i}')
    I(f'v_cvt_pk_bf16_f32 v28, v{WM0}, v{WM0+1}')
    I(f'v_cvt_pk_bf16_f32 v29, v{WM0+2}, v{WM0+3}')
    I(f'buffer_store_dwordx4 v[28:31], v24, {sWS}, {sT2} offen sc1')
    return o

def pf(srd, base_ops, wlo=0, whi=4):
    o = list(base_ops)
    if wlo: o.append(f's_sub_u32 {sP}, {sP}, {wlo*8192}')
    if wlo:
        o += [f's_cmp_lt_u32 {sW}, {wlo}', f's_cselect_b32 {sP}, {OOB:#x}, {sP}']
    if whi < 4:
        o += [f's_cmp_ge_u32 {sW}, {whi}', f's_cselect_b32 {sP}, {OOB:#x}, {sP}']
    o.append(lambda: A._emit_nodep(f'buffer_load_dword a247, v{vT128}, {srd}, {sP} offen'))
    return o

def _emit_nodep(text):
    ins = Ins(text); ins.w = set()
    A._emit(ins); A.vm.append((set(), None, A.cond, set()))
A._emit_nodep = _emit_nodep

vPF = 19
def pfm_setup():
    return [f's_lshl_b32 {sT0}, s2, 2', f's_add_u32 {sT0}, {sT0}, {sW}', f's_mul_i32 {sT0}, {sT0}, {12*128}', f'v_lshl_add_u32 v{vPF}, v{vL}, 7, {sT0}',
            f's_lshl_b32 {sT0}, {sRK}, 2', f's_add_u32 {sT0}, {sT0}, {sW}', f's_mul_i32 {sT0}, {sT0}, {12*1024}', f's_add_u32 {sT0}, {sT0}, {(384 - 12*1024) & 0xffffffff:#x}',
            f'v_lshl_add_u32 v4, v{vL}, 10, {sT0}', f'v_cmp_gt_u32 vcc, 12, v{vL}', f'v_mov_b32 v5, {OOB:#x}',
            f'v_cndmask_b32 v{vPF}, v4, ' + ('v5' if opt('nopfm') else f'v{vPF}') + ', vcc', f'v_cmp_gt_u32 vcc, ' + ('12' if opt('nopf3') else '24') + f', v{vL}', f'v_cndmask_b32 v{vPF}, v5, v{vPF}, vcc']
def pfm(srd): return [lambda: A._emit_nodep(f'buffer_load_dword a247, v{vPF}, {srd}, 0 offen')]
def pf_mod3():
    return [f's_sub_u32 {sT0}, 3, {sXG}', f's_and_b32 {sT0}, {sT0}, 7', f's_lshl_b32 {sT1}, {sT0}, 10', f's_add_u32 {sT1}, {sT1}, 384',
            f's_cmp_ge_u32 {sT0}, 6', f's_cselect_b32 {sT1}, {OOB:#x}, {sT1}',
            f's_lshl_b32 {sT0}, {sR}, 2', f's_add_u32 {sT0}, {sT0}, {sW}', f's_mul_i32 {sT0}, {sT0}, {8*6144}', f's_add_u32 {sT1}, {sT1}, {sT0}',
            f's_cmp_lt_u32 {sRK}, 16', f's_cselect_b32 {sT1}, {OOB:#x}, {sT1}',
            f'v_and_b32 v4, 7, v{vL}', f'v_mul_u32_u24 v4, 6144, v4',
            lambda: A._emit_nodep(f'buffer_load_dword a247, v4, {sWM}, {sT1} offen')]
def pf_h():
    return pf(sWS, [f's_lshr_b32 {sP}, {sR}, 2', f's_lshl_b32 {sD}, {sGRP}, 2', f's_add_u32 {sP}, {sP}, {sD}', f's_mul_i32 {sP}, {sP}, {86*1024}',
                    f's_and_b32 {sD}, {sR}, 3', f's_mul_i32 {sD}, {sD}, {108*128}', f's_add_u32 {sP}, {sP}, {sD}', f's_add_u32 {sP}, {sP}, {HB + 32768}'], 0, 2)
def pf_misc():
    return [f's_lshr_b32 {sP}, {sR}, 2', f's_lshl_b32 {sD}, {sGRP}, 2', f's_add_u32 {sP}, {sP}, {sD}', f's_mul_i32 {sP}, {sP}, {86*1024}',
            f's_and_b32 {sD}, {sR}, 3', f's_lshl_b32 {sD}, {sD}, 13', f's_add_u32 {sP}, {sP}, {sD}', f's_add_u32 {sP}, {sP}, {HB}',
            f's_cmp_eq_u32 {sW}, 1', f's_cselect_b32 {sP}, {OOB:#x}, {sP}',
            f's_lshl_b32 {sD}, {sGRP}, 13', f's_add_u32 {sD}, {sD}, {STATS - 2*8192}',
            f's_cmp_eq_u32 {sW}, 2', f's_cselect_b32 {sP}, {sD}, {sP}',
            f's_lshl_b32 {sD}, {sGRP}, 11', f's_add_u32 {sD}, {sD}, {FLAGS - 3*8192}',
            f's_cmp_eq_u32 {sW}, 3', f's_cselect_b32 {sP}, {sD}, {sP}',
            lambda: A._emit_nodep(f'buffer_load_dword a247, v{vT128}, {sWS}, {sP} offen')]
def pf_y():
    return pf(sOUT, [f's_lshl_b32 {sP}, {sRB64}, 3', f's_add_u32 {sP}, {sP}, {sHQ}', f's_lshl_b32 {sP}, {sP}, 13'], 0, 1)

def x_setup():
    o = [smov('s62', 0x21043210), smov('s63', 0x1043), f's_lshl_b32 {sT0}, {sHQ}, 2', f's_lshr_b64 s[62:63], s[62:63], {sT0}',
         f's_mul_i32 {sT1}, {sW}, 20', f'v_lshrrev_b32 v94, 4, v{vL}', f'v_add_u32 v94, {sT1}, v94',
         f's_lshl_b32 {sT0}, {sRB64}, 6', f's_sub_u32 {sT0}, {sT0}, 16', f'v_and_b32 v95, 0xf0, v{vL16}']
    for rg in range(5):
        o += [f's_bfe_u32 {sT1}, s62, {(4*rg) | (4 << 16):#x}', f'v_lshl_add_u32 v{vHW+rg}, {sT1}, 2, v94',
              f'v_add_u32 v{vXO+rg}, {sT0}, v{vHW+rg}', f'v_max_i32 v{vXO+rg}, 0, v{vXO+rg}', f'v_lshl_add_u32 v{vXO+rg}, v{vXO+rg}, 10, v95']
    return o
def x_load(i):
    rg, c = divmod(i, 4)
    return f'buffer_load_dwordx4 {v(xr(rg,c)+4,4)}, v{vXO+rg}, {sX}, 0 offen offset:{256*c}'

XS = 40
def x_proc(i):
    rg, c = divmod(i, 4)
    b = xr(rg, c); s = XS + 4 * rg; q = s + 2
    o = []
    for d in range(4):
        o.append(f'v_lshlrev_b32 v{b+2*d}, 16, v{b+4+d}')
        o.append(f'v_and_b32 v{b+2*d+1}, 0xffff0000, v{b+4+d}')
    for d in range(4):
        x = v(b + 2*d, 2)
        if c == 0 and d == 0: o.append(f'v_pk_mul_f32 {v(q,2)}, {x}, {x}')
        else:
            o.append(f'v_pk_add_f32 {v(s,2)}, ' + (v(b, 2) if (c == 0 and d == 1) else v(s, 2)) + f', {x}')
            o.append(f'v_pk_fma_f32 {v(q,2)}, {x}, {x}, {v(q,2)}')
    return o
def x_fin(rg):
    s = XS + 4 * rg; q = s + 2
    o = [f'v_add_f32 v{s}, v{s}, v{s+1}', f'v_add_f32 v{q}, v{q}, v{q+1}']
    for rot in (8, 4, 2, 1):
        o += [f'v_add_f32_dpp v{r}, v{r}, v{r} row_ror:{rot} row_mask:0xf bank_mask:0xf' for r in (s, q)]
    o += [f'v_mul_f32 v{s+1}, {f2u(-1.0/512):#x}, v{s}', f'v_fmamk_f32 v{q}, v{q}, {f2u(1.0/512):#x}, v95',
          f'v_fma_f32 v{q}, -v{s+1}, v{s+1}, v{q}', f'v_max_f32 v{q}, v95, v{q}', f'v_rsq_f32 v{s}, v{q}', f'v_mul_f32 v{s+1}, v{s+1}, v{s}']
    n = []
    for c in range(4):
        for d in range(4):
            x = v(xr(rg, c) + 2*d, 2)
            n.append(f'v_pk_fma_f32 {x}, {x}, {v(s,2)}, {v(s,2)} op_sel:[0,0,1] op_sel_hi:[1,0,1]')
    return o, n

def dma_setup():
    return [
        f'v_and_b32 v4, 16, v{vL}', f'v_lshlrev_b32 v4, 1, v4', f'v_xor_b32 v4, v4, v{vL16}',
        f's_and_b32 {sT0}, {sW}, 1', f's_lshl_b32 {sT0}, {sT0}, 6', f'v_xor_b32 v4, {sT0}, v4', f'v_and_b32 v4, 0x70, v4',
        f's_lshl_b32 {sT1}, {sHQ}, 7', f'v_add_u32 v4, {sT1}, v4',
        f'v_lshrrev_b32 v5, 3, v0',
        f'v_mul_u32_u24 v{vWQ}, 3072, v5', f'v_add_u32 v{vWQ}, v{vWQ}, v4',
        f'v_lshl_add_u32 v{vWO}, v5, 10, v4',
        f's_mul_i32 {sM3}, {sW}, 3072', f's_lshl_b32 {sM1}, {sW}, 10',
    ]

def wq_issue(ks):
    g = []
    for p in range(3):
        ld = (f'buffer_load_dwordx4 v{vWQ}, {sWQ}, {sD} offen offset:{1024*p} lds', f'ks{ks}')
        g.append([f's_add_u32 m0, {sM3}, {(ks&7)*12288}', smov(sD, ks*32*3072), ld] if p == 0 else [ld])
    return g

def tr_base(dst, piece, gstride, tmp=4):
    return [
        f'v_lshrrev_b32 v{tmp}, 4, v{vL}', f'v_mul_u32_u24 v{dst}, {gstride}, v{tmp}',
        f'v_bfe_u32 v{tmp}, v{vL}, 2, 2', f'v_lshl_add_u32 v{dst}, v{tmp}, 7, v{dst}',
        f'v_bfe_u32 v{tmp}, v{vL}, 3, 2', f'v_xor_b32 v{tmp}, {piece}, v{tmp}', f'v_lshl_add_u32 v{dst}, v{tmp}, 5, v{dst}',
        f'v_and_b32 v{tmp}, 3, v{vL}', f'v_lshl_add_u32 v{dst}, v{tmp}, 3, v{dst}']

def wq_read(ks):
    sl = ks & 7
    return [f'ds_read_b64_tr_b16 {a_(12*ks+4*p+2*hr,2)}, v{vTR+(sl>>2)} offset:{(sl&3)*12288 + p*1024 + hr*512}' for p in range(3) for hr in range(2)]

def wo_issue(i):
    return [f's_add_u32 m0, {sM1}, {RA + i*4096}', smov(sD, i*32768), (f'buffer_load_dwordx4 v{vWO}, {sWO}, {sD} offen lds', 'wo')]

def b_setup():
    o = tr_base(vTR, sW, 3072) + [f'v_add_u32 v{vTR+1}, {48*K}, v{vTR}']
    o += [f'v_bfe_u32 v4, v{vL}, 2, 2', f'v_mul_u32_u24 v5, {5*1024}, v4', f'v_and_b32 v4, 1, v4', f'v_mul_u32_u24 v4, 12, v4',
          f'v_and_b32 v14, 3, v{vL}', f'v_xor_b32 v4, v4, v14', f'v_lshl_add_u32 v5, v14, 8, v5', f'v_add_u32 v5, {HF}, v5',
          ]
    for rg in range(5):
        d = vHW + rg
        o += [f'v_lshrrev_b32 v15, 4, v{d}', f'v_and_b32 v{d}, 15, v{d}', f'v_xor_b32 v{d}, v{d}, v4',
              f'v_lshl_add_u32 v{d}, v{d}, 4, v5', f'v_lshl_add_u32 v{d}, v15, 10, v{d}']
    o += [f'v_and_b32 v{vGSA}, 0xf0, v{vL16}', f'v_add_u32 v{vGSA}, {GS}, v{vGSA}']
    o += [f'v_lshrrev_b32 v4, 4, v{vL}', f'v_xor_b32 v5, v4, v{vL}', f'v_and_b32 v5, 15, v5', f'v_lshlrev_b32 v5, 4, v5',
          f'v_lshl_add_u32 v5, v4, 8, v5', f'v_add_u32 v{vHR}, {HF}, v5', f'v_xor_b32 v{vHR+1}, {12*16}, v{vHR}']
    o += [f'v_lshrrev_b32 v4, 3, v{vL}', f'v_lshlrev_b32 v{vW2}, 10, v4', f'v_and_b32 v4, 16, v{vL}', f'v_lshlrev_b32 v4, 2, v4',
          f'v_xor_b32 v4, v4, v{vL16}', f'v_and_b32 v4, 0x70, v4', f's_lshl_b32 {sT0}, {sHQ}, 7', f's_mul_i32 {sT1}, {sW}, {352*1024}',
          f's_add_u32 {sT0}, {sT0}, {sT1}', f'v_add3_u32 v{vW2}, v{vW2}, v4, {sT0}',
          f's_mul_i32 {sM2}, {sW}, {15*K}']
    o += [f'v_lshrrev_b32 v4, 5, v{vL}', f'v_lshlrev_b32 v{vW2R}, 9, v4', f'v_bfe_u32 v4, v{vL}, 2, 2', f'v_lshl_add_u32 v{vW2R}, v4, 7, v{vW2R}',
          f'v_bfe_u32 v4, v{vL}, 3, 1', f's_and_b32 {sT0}, {sW}, 1', f'v_xor_b32 v4, {sT0}, v4', f'v_lshl_add_u32 v{vW2R}, v4, 6, v{vW2R}',
          f'v_bfe_u32 v4, v{vL}, 4, 1', f'v_lshl_add_u32 v{vW2R}, v4, 5, v{vW2R}', f'v_and_b32 v4, 3, v{vL}', f'v_lshl_add_u32 v{vW2R}, v4, 3, v{vW2R}',
          f'v_add_u32 v{vW2R}, {sM2}, v{vW2R}', f'v_xor_b32 v{vW2R+1}, 64, v{vW2R}']
    o += [f'v_lshrrev_b32 v4, 2, v0', f'v_mul_u32_u24 v{vW1}, 2752, v4', f'v_and_b32 v4, 0x30, v{vL16}', f's_mul_i32 {sT0}, {sR}, 192',
          f'v_add3_u32 v{vW1}, v{vW1}, v4, {sT0}']
    o += [f's_lshl_b32 {sT0}, {sGRP}, 11', f's_add_u32 {sT0}, {sT0}, {FLAGS}', f'v_lshl_add_u32 v{vFO}, v{vL}, 3, {sT0}']
    return o

def tag_fix(): return [f's_add_u32 s44, s44, 0x7f4a7c15', f's_addc_u32 s45, s45, 0x9e3779b9']
def hello():
    return [f's_getreg_b32 {sXCC}, hwreg(HW_REG_XCC_ID)', f's_and_b32 {sXCC}, {sXCC}, 15',
            f's_lshl_b32 {sT0}, {sGRP}, 4', f's_add_u32 {sT0}, {sT0}, {sR}', f's_lshl_b32 {sT0}, {sT0}, 4', f's_add_u32 {sT0}, {sT0}, {HELLO}',
            f'v_mov_b32 v32, {sXCC}', f'v_mov_b32 v33, 0', f'v_mov_b32 v34, s44', f'v_mov_b32 v35, s45',
            f'v_lshlrev_b32 v36, 24, v0',
            f'buffer_store_dwordx4 v[32:35], v36, {sWS}, {sT0} offen sc1']

def check_loop(loads, cmps):
    L, D = A.uniq('chk'), A.uniq('ok')
    I(smov(sCNT, SPIN))
    A.waitvm('poll')
    A.settle()
    A.label(L)
    R(cmps)
    I(f's_cbranch_scc0 {D}')
    A.cond = L
    I(f's_sub_u32 {sCNT}, {sCNT}, 1')
    I(f's_cbranch_scc1 {D}')
    R(loads)
    A.vm0()
    I(f's_branch {L}')
    A.cond = None
    A.label(D)

vPD = 4
def poll_load(phase): return (f'buffer_load_dwordx2 v[4:5], v{vFO}, {sWS}, 0 offen offset:{phase*512} sc1', 'poll')
def poll_check(phase, mask):
    check_loop([poll_load(phase)], [f'v_cmp_ne_u64 vcc, {TAG}, v[4:5]', f's_and_b64 vcc, vcc, {mask}'])

def pub_setup():
    return [f's_lshl_b32 {sT0}, {sR}, 2', f's_add_u32 {sT0}, {sT0}, {sW}', f'v_cmp_eq_u32 vcc, {sT0}, v{vL}',
            f'v_mov_b32 v{vFS}, {OOB:#x}', f'v_mov_b32 v{vTAG}, s44', f'v_cndmask_b32 v{vFS}, v{vFS}, v{vFO}, vcc', f'v_mov_b32 v{vTAG+1}, s45']

slow_blocks = []
def publish(body, phase, bg=()):
    S, J = A.uniq('slow'), A.uniq('join')
    I(f's_cmp_eq_u32 {sFAST}, 0')
    A.settle()
    I(f's_cbranch_scc1 {S}')
    def emit(bits):
        R([((o.replace('@', bits), 'pub') if '@' in o else o) for o in body])
        R(list(bg))
        A.waitvm('pub')
        I(f'buffer_store_dwordx2 {v(vTAG,2)}, v{vFS}, {sWS}, 0 offen offset:{phase*512}{bits}')
    emit('')
    A.label(J)
    def slow():
        A.label(S)
        A.vm0(); A.lg0(force=True)
        emit(' sc1')
        A.settle()
        I(f's_branch {J}')
    slow_blocks.append(slow)

def g1_load(): return [(f'buffer_load_dwordx4 {v(GA,4)}, v94, {sWS}, 0 offen sc1', 'poll')]
def g1_setup():
    return [f'v_lshrrev_b32 v93, 5, v0', f'v_lshlrev_b32 v93, 9, v93', f'v_and_b32 v94, 1, v0', f'v_lshl_add_u32 v93, v94, 8, v93',
            f'v_bfe_u32 v94, v0, 1, 4', f'v_lshl_add_u32 v93, v94, 4, v93', f'v_add_u32 v93, {GS}, v93',
            f'v_lshlrev_b32 v94, 4, v0', f'v_mov_b32 v95, {f2u(1e-5):#x}']
def g1_check():
    g = GA
    check_loop(g1_load(), [f'v_cmp_ne_u64 vcc, {TAG}, {v(g+2,2)}', f's_and_b64 vcc, vcc, vcc'])
    R([f'v_and_b32 v{g+3}, 0xffff0000, v{g+1}', f'v_lshlrev_b32 v{g+2}, 16, v{g+1}',
       f'v_and_b32 v{g+1}, 0xffff0000, v{g}', f'v_lshlrev_b32 v{g}, 16, v{g}',
       f'ds_write_b128 v93, {v(g,4)}'])
G2 = 136
def g2_setup():
    return [f'v_lshlrev_b32 v{G2+12}, 4, v0', f'v_and_b32 v{G2+13}, 0xf0, v{vL16}', f's_lshl_b32 {sG0}, {sGRP}, 8', f's_add_u32 {sG0}, {sG0}, {HELLO}',
            f'v_add_u32 v{G2+12}, 4096, v{G2+12}', smov(sG1, 4096),
            f'v_lshlrev_b32 v{G2+14}, 3, v0', f'v_add_u32 v{G2+14}, {MV}, v{G2+14}']
def g2_loads():
    g = G2
    return [(f'buffer_load_dwordx4 {v(g,4)}, v{g+12}, {sWS}, 0 offen sc1', 'poll'),
            (f'buffer_load_dwordx4 {v(g+4,4)}, v{g+12}, {sWS}, {sG1} offen sc1', 'poll'),
            (f'buffer_load_dwordx4 {v(g+8,4)}, v{g+13}, {sWS}, {sG0} offen sc1', 'poll')]
def g2_check():
    g = G2
    check_loop(g2_loads(), [
        f'v_cmp_ne_u64 vcc, {TAG}, {v(g+2,2)}', f'v_cmp_ne_u64 {mP}, {TAG}, {v(g+6,2)}', f'v_cmp_ne_u64 {mC0}, {TAG}, {v(g+10,2)}',
        f's_or_b64 vcc, vcc, {mP}', f's_or_b64 vcc, vcc, {mC0}'])
    R([f'ds_write_b64 v{g+14}, {v(g,2)}', f'ds_write_b64 v{g+14}, {v(g+4,2)} offset:2048',
       f'v_cmp_ne_u32 vcc, {sXCC}, v{g+8}', f's_cmp_eq_u64 vcc, 0',
       f's_cselect_b32 {sFAST}, ' + ('0' if opt('slow') else '1') + ', 0'])

def h_gsread(c):
    return [f'ds_read_b128 {v(GSR+8*sec+4*half,4)}, v{vGSA} offset:{sec*2048+c*512+half*256}' for half in range(2) for sec in range(2)]
def h_conv(c, pk):
    o = []
    for rg in range(5):
        b = xr(rg, c)
        for d in range(4):
            if pk:
                o.append(f'v_pk_fma_f32 {v(b+2*d,2)}, {v(b+2*d,2)}, {v(GSR+8+2*d,2)}, {v(GSR+2*d,2)}')
            else:
                for e in range(2): o.append(f'v_fma_f32 v{b+2*d+e}, v{b+2*d+e}, v{GSR+8+2*d+e}, v{GSR+2*d+e}')
        for d in range(4):
            o.append(f'v_cvt_pk_bf16_f32 v{b+d}, v{b+2*d}, v{b+2*d+1}')
        o.append(f'ds_write_b128 v{vHW+rg}, {v(b,4)} offset:{(c&1)*20480}')
    return o

ACC = 24
def accQ(T): return ACC + 4 * (T - 1)
def accK(T): return ACC + 16 + 4 * T
def accV(T): return ACC + 36 + 4 * T
HFR = 96
def h_read(ks):
    return [f'ds_read_b128 {v(HFR+20*(ks&1)+4*T,4)}, v{vHR+(ks&1)} offset:{((ks&7)*5+T)*1024}' for T in range(5)]
def qkv_mfma(ks):
    o = []
    for T in range(5):
        h = v(HFR + 20 * (ks & 1) + 4 * T, 4)
        def m(d, x, y): o.append(f'v_mfma_f32_16x16x32_bf16 {v(d,4)}, {x}, {y}, ' + ('0' if ks == 0 else v(d, 4)))
        m(accK(T), a_(12*ks+4, 4), h)
        m(accV(T), h, a_(12*ks+8, 4))
        if T: m(accQ(T), a_(12*ks, 4), h)
    return o

AUA, AGA, AG2, AGB = 192, 224, 232, 248
def modvec_read():
    o = [f's_lshl_b32 {sT0}, {sHQ}, 7', f's_add_u32 {sT0}, {sT0}, {MV}', f'v_lshrrev_b32 v4, 4, v{vL}', f'v_lshl_add_u32 v4, v4, 3, {sT0}']
    for j in range(4):
        o.append(f'ds_read_b64 {a_(AGA+2*j,2)}, v4 offset:{32*j}')
        o.append(f'ds_read_b64 {a_(AG2+2*j,2)}, v4 offset:{2048+32*j}')
    o += [f's_and_b32 {sT1}, {sW}, 1', f's_lshl_b32 {sT1}, {sT1}, 6', f's_add_u32 {sT0}, {sT0}, {sT1}',
          f'v_lshrrev_b32 v5, 5, v{vL}', f'v_lshl_add_u32 v4, v5, 3, {sT0}']
    for q in range(4):
        o.append(f'ds_read_b64 {a_(AGB+2*q,2)}, v4 offset:{3072+16*q}')
    o += [f's_lshl_b32 {sT0}, {sW}, 8', f's_add_u32 {sT0}, {sT0}, {MV+1024}', f'v_lshl_add_u32 v5, v5, 3, {sT0}',
          f'v_and_b32 v4, 4, v{vL}', f'v_lshl_add_u32 v4, v4, 8, v5']
    for i in range(8):
        for hr in range(2):
            o.append(f'ds_read_b64 {a_(AUA+4*i+2*hr,2)}, v4 offset:{(i>>1)*64+(i&1)*16+hr*32}')
    return o

MK, ONE, BIAS = 216, 220, 224
vOA = 7
def att_setup():
    o = [f'v_and_b32 v4, 1, v{vL}', f'v_cmp_eq_u32 {mP}, 1, v4', f'v_lshrrev_b32 v5, 4, v{vL}', f'v_lshl_add_u32 v5, v5, 2, v4',
         f'v_and_b32 v4, 15, v{vL}', f'v_cmp_le_u32 {mC0}, v5, v4', f'v_add_u32 v5, 2, v5', f'v_cmp_le_u32 {mC1}, v5, v4',
         f'v_mov_b32 v4, 0xffff', f'v_mov_b32 v5, 0xffff0000', f'v_cndmask_b32 v4, v4, v5, {mP}',
         f'v_cndmask_b32 v{MK+0}, v4, 0, {mC0}', f'v_cndmask_b32 v{MK+1}, v4, 0, {mC1}',
         f'v_cndmask_b32 v{MK+2}, 0, v4, {mC0}', f'v_cndmask_b32 v{MK+3}, 0, v4, {mC1}']
    o += [f'v_mov_b32 v{ONE+i}, 0x3f803f80' for i in range(4)]
    o += [[f's_cmp_eq_u32 {sRB64}, 0', f's_cselect_b32 {sT0}, {f2u(-4e9):#x}, 0']]
    o += [f'v_mov_b32 v{BIAS+i}, {sT0}' for i in range(4)]
    o += [f's_mul_i32 {sT0}, {sRB64}, {2*86*1024}', f's_lshl_b32 {sT1}, {sHQ}, 11', f's_add_u32 {sT0}, {sT0}, {sT1}', f's_lshl_b32 {sT1}, {sW}, 9',
          f's_add_u32 {sT0}, {sT0}, {sT1}', f's_add_u32 {sS0}, {sT0}, {HB}', f's_add_u32 {sS1}, {sS0}, {86*1024}',
          f'v_bfe_u32 v5, v{vL}, 4, 1', f'v_lshlrev_b32 v5, 14, v5', f'v_lshrrev_b32 v4, 5, v{vL}', f'v_lshl_add_u32 v5, v4, 8, v5',
          f'v_and_b32 v4, 0xf0, v{vL16}', f'v_add_u32 v{vOA}, v5, v4', smov(sS2, f2u(0.25 * LOG2E))]
    return o

def attention():
    QB, KB, VB = 136, 144, 154
    SC, SP = 164, 180
    LG, MX = 196, 204
    PB, OA, SM = 164, 180, 228
    OS = 208
    o = []
    def cvt(d, s): return [f'v_cvt_pk_bf16_f32 v{d}, v{s}, v{s+1}', f'v_cvt_pk_bf16_f32 v{d+1}, v{s+2}, v{s+3}']
    o += cvt(KB, accK(0))
    for T in range(1, 5): o += cvt(KB + 2*T, accK(T)) + cvt(QB + 2*(T-1), accQ(T))
    for T in range(1, 5):
        t = T - 1
        o.append(f'v_mfma_f32_16x16x16_bf16 {v(SC+4*t,4)}, {v(KB+2*T,2)}, {v(QB+2*t,2)}, 0')
        if T == 1: o += cvt(VB, accV(0))
        o.append(f'v_mfma_f32_16x16x16_bf16 {v(SP+4*t,4)}, {v(KB+2*t,2)}, {v(QB+2*t,2)}, ' + (v(BIAS, 4) if T == 1 else '0'))
        o += cvt(VB + 2*T, accV(T))
    for t in range(4):
        for e in range(2):
            o.append(f'v_cndmask_b32 v{SC+4*t+2*e}, v{SC+4*t+2*e}, v{SC+4*t+2*e+1}, {mP}')
            o.append(f'v_cndmask_b32 v{SP+4*t+2*e}, v{SP+4*t+2*e}, v{SP+4*t+2*e+1}, {mP}')
            o.append(f'v_cndmask_b32 v{LG+2*t+e}, v{SP+4*t+2*e}, v{SC+4*t+2*e}, {mC1 if e else mC0}')
        o.append(f'v_max_f32 v{MX+t}, v{LG+2*t}, v{LG+2*t+1}')
    cs = 0.25 * LOG2E
    o += [f'v_permlane16_swap_b32 v{MX}, v{MX+1}', f'v_permlane16_swap_b32 v{MX+2}, v{MX+3}',
          f'v_max_f32 v{MX}, v{MX}, v{MX+1}', f'v_max_f32 v{MX+2}, v{MX+2}, v{MX+3}',
          f'v_permlane32_swap_b32 v{MX}, v{MX+2}', f'v_max_f32 v{MX}, v{MX}, v{MX+2}',
          f'v_mul_f32 v{MX+2}, {f2u(-cs):#x}, v{MX}', f'v_mul_f32 v{MX}, {f2u(-cs):#x}, v{MX}',
          f'v_permlane32_swap_b32 v{MX}, v{MX+2}', f'v_mov_b32 v{MX+1}, v{MX}', f'v_mov_b32 v{MX+3}, v{MX+2}',
          f'v_permlane16_swap_b32 v{MX}, v{MX+1}', f'v_permlane16_swap_b32 v{MX+2}, v{MX+3}']
    for t in range(4):
        for e in range(2): o.append(f'v_fma_f32 v{LG+2*t+e}, v{LG+2*t+e}, {sS2}, v{MX+t}')
    for t in range(4):
        for e in range(2): o.append(f'v_exp_f32 v{LG+2*t+e}, v{LG+2*t+e}')
    def pv(u): return [f'v_mfma_f32_16x16x32_bf16 {v(SM+4*u,4)}, {v(ONE,4)}, {v(PB+4*u,4)}, 0',
                       f'v_mfma_f32_16x16x32_bf16 {v(OA+4*u,4)}, {v(VB+2*u,4)}, {v(PB+4*u,4)}, 0']
    for t in range(4):
        p = [f'v_cvt_pk_bf16_f32 v{LG+2*t+e}, v{LG+2*t+e}, v{LG+2*t+e}' for e in range(2)]
        p += [f'v_and_b32 v{PB+4*t+i}, v{MK+i}, v{LG+2*t+(i&1)}' for i in range(4)]
        if t:
            m = pv(t - 1)
            p = p[:2] + [m[0]] + p[2:4] + [m[1]] + p[4:]
        o += p
    def fin(t): return [f'v_rcp_f32 v{SM+4*t}, v{SM+4*t}'] + [f'v_mul_f32 v{OA+4*t+i}, v{OA+4*t+i}, v{SM+4*t}' for i in range(4)] + cvt(OS + 2*t, OA + 4*t)
    m = pv(3)
    f0 = fin(0)
    o += f0[:2] + [m[0]] + f0[2:4] + [m[1]] + f0[4:] + fin(1)
    tail = [f'v_permlane16_swap_b32 v{OS+i}, v{OS+2+i}' for i in range(2)]
    tail += [f'buffer_store_dwordx4 {v(OS,4)}, v{vOA}, {sWS}, {sS0} offen@']
    tail += fin(2) + fin(3)
    tail += [f'v_permlane16_swap_b32 v{OS+4+i}, v{OS+6+i}' for i in range(2)]
    tail += [f'buffer_store_dwordx4 {v(OS+4,4)}, v{vOA}, {sWS}, {sS1} offen@']
    return o, tail

def w1_issue(i):
    return [[f's_add_u32 m0, {sM1}, {RB + i*12288 + t*4096 - 64*t}'] + ([smov(sD, i*64*2752)] if t == 0 else []) +
            [(f'buffer_load_dwordx4 v{vW1}, {sW1}, {sD} offen offset:{64*t} lds', 'w1')] for t in range(3)]

X1 = 24
CG = 40
CAC = 72
CO = 96
CW = 160
vC = 10
vYA, vSA = 14, 15
XC = 88
def c_xload():
    o = [f's_lshl_b32 {sT2}, {sRB64}, 16', f's_lshl_b32 {sT3}, {sW}, 14', f's_add_u32 {sT2}, {sT2}, {sT3}',
         f's_lshl_b32 {sLB}, {sRB64}, 1', f's_lshr_b32 {sT3}, {sW}, 1', f's_add_u32 {sLB}, {sLB}, {sT3}', f's_mul_i32 {sLB}, {sLB}, {86*1024}',
         f's_and_b32 {sT3}, {sW}, 1', f's_lshl_b32 {sT3}, {sT3}, 14', f's_add_u32 {sLB}, {sLB}, {sT3}', f's_add_u32 {sLB}, {sLB}, {HB}',
         f's_lshl_b32 {sT3}, {sHQ}, 7', f's_add_u32 {sT2}, {sT2}, {sT3}',
         f'v_and_b32 v80, 15, v{vL}', f'v_lshlrev_b32 v80, 10, v80', f'v_lshrrev_b32 v81, 4, v{vL}', f'v_lshl_add_u32 v80, v81, 3, v80']
    o += [f'buffer_load_dwordx2 {v(XC+2*j,2)}, v80, {sX}, {sT2} offen offset:{32*j}' for j in range(4)]
    return o

def c_pre():
    o = tr_base(vC, 0, 1024, tmp=16)
    o += [f'v_xor_b32 v{vC+j}, {32*j}, v{vC}' for j in range(1, 4)]
    o += cat(*[c_rd(k) for k in range(NCW-1)])
    for k in range(16):
        o += [f'v_accvgpr_read_b32 v{CG+2*k+1}, a{AGA+k}', f'v_lshlrev_b32 v{CG+2*k}, 16, v{CG+2*k+1}', f'v_and_b32 v{CG+2*k+1}, 0xffff0000, v{CG+2*k+1}']
    for k in range(8):
        o += [f'v_lshlrev_b32 v{X1+2*k}, 16, v{XC+k}', f'v_and_b32 v{X1+2*k+1}, 0xffff0000, v{XC+k}']
    o += [f's_lshl_b32 {sT0}, {sRB64}, 16', f's_lshr_b32 {sT1}, {sW}, 1', f's_lshl_b32 {sT1}, {sT1}, 15', f's_add_u32 {sT0}, {sT0}, {sT1}',
          f's_lshl_b32 {sT1}, {sHQ}, 12', f's_add_u32 {sT0}, {sT0}, {sT1}', f's_and_b32 {sT1}, {sW}, 1', f's_lshl_b32 {sT1}, {sT1}, 8',
          f's_add_u32 {sS0}, {sT0}, {sT1}',
          f'v_lshrrev_b32 v16, 4, v{vL}', f'v_and_b32 v{vYA}, 0xf0, v{vL16}', f'v_lshl_add_u32 v{vYA}, v16, 9, v{vYA}',
          f's_lshl_b32 {sT0}, {sRB64}, 12', f's_lshl_b32 {sT1}, {sW}, 10', f's_add_u32 {sT0}, {sT0}, {sT1}', f's_lshl_b32 {sT1}, {sHQ}, 3',
          f's_add_u32 {sT0}, {sT0}, {sT1}', f's_add_u32 {sS1}, {sT0}, {STATS}',
          f'v_and_b32 v{vSA}, 15, v{vL}', f'v_lshlrev_b32 v{vSA}, 6, v{vSA}', f'v_and_b32 v16, 1, v16', f'v_lshl_add_u32 v{vSA}, v16, 2, v{vSA}',
          [f's_bitcmp1_b32 {sRB64}, 0', f's_cselect_b32 s62, 0, -1', f's_cselect_b32 s63, -1, 0']]
    return o

def frag_loads(dst, n, sreg, bump=None, srd=sWS):
    g = []
    for i in range(n):
        o = []
        if i and i % 4 == 0: o.append(f's_add_u32 {sreg}, {sreg}, ' + (bump if (bump and i == 20) else '4096'))
        o.append(f'buffer_load_dwordx4 {v(dst+4*i,4)}, v{vL16}, {srd}, {sreg} offen offset:{(i&3)*1024} sc1')
        g.append(o)
    return g

NCW = 4
def c_rd(ks):
    return [f'ds_read_b64_tr_b16 {v(CW+16*(ks%NCW)+4*j+2*hr,2)}, v{vC+j} offset:{RA+ks*4096+hr*512}' for j in range(4) for hr in range(2)]
def c_main(bg):
    ld = frag_loads(CO, 16, sLB) + bg
    LA = opt('cla', 8)
    R(ld[:LA])
    for ks in range(16):
        mm = [f'v_mfma_f32_16x16x32_bf16 {v(CAC+4*j,4)}, {v(CW+16*(ks%NCW)+4*j,4)}, {v(CO+4*ks,4)}, ' + ('0' if ks == 0 else v(CAC+4*j,4)) for j in range(4)]
        fill = (c_rd(ks+NCW-1) if ks + NCW - 1 < 16 else [])
        R(mm[:1])
        if ks + LA < len(ld): R(ld[ks+LA])
        R(fill[:2]); R(weave(mm[1:], fill[2:]))
    assert len(ld) <= 16 + LA

def c_epi():
    YT, YP = 96, 112
    o = []
    for h in range(2):
        ks = range(4*h, 4*h+4)
        o += [f'v_pk_fma_f32 {v(X1+2*k,2)}, {v(CAC+2*k,2)}, {v(CG+2*k,2)}, {v(X1+2*k,2)}' for k in ks]
        o += [f'v_pk_mul_f32 {v(YT+2*k,2)}, {v(X1+2*k,2)}, {v(CG+16+2*k,2)}' for k in ks]
        o += [f'v_cvt_pk_bf16_f32 v{YP+k}, v{YT+2*k}, v{YT+2*k+1}' for k in ks]
        o += [f'buffer_store_dwordx4 {v(YP+4*h,4)}, v{vYA}, {sOUT}, {sS0} offen offset:{2048*h}@']
    o += [f'v_pk_add_f32 v[120:121], {v(X1,2)}, {v(X1+2,2)}', f'v_pk_mul_f32 v[122:123], {v(X1,2)}, {v(X1,2)}']
    for k in range(1, 8):
        if k > 1: o.append(f'v_pk_add_f32 v[120:121], v[120:121], {v(X1+2*k,2)}')
        o.append(f'v_pk_fma_f32 v[122:123], {v(X1+2*k,2)}, {v(X1+2*k,2)}, v[122:123]')
    o += ['v_add_f32 v120, v120, v121', 'v_add_f32 v122, v122, v123', 'v_permlane16_swap_b32 v120, v122', 'v_add_f32 v120, v120, v122',
          'v_mov_b32 v122, v120', 'v_permlane32_swap_b32 v120, v122', 'v_add_f32 v120, v120, v122',
          f'buffer_store_dword v120, v{vSA}, {sWS}, {sS1} offen@']
    return o

W2R = [(0, 15), (15, 15), (30, 12), (42, 2)]
def w2_rebase(mul, add):
    return [[f's_mul_i32 {sT0}, {sW}, {mul}', f's_add_u32 {sT0}, {sT0}, {add}', f's_sub_u32 {sT1}, {sT0}, {sM2}', f's_mov_b32 {sM2}, {sT0}',
            f'v_add_u32 v{vW2R}, {sT1}, v{vW2R}', f'v_add_u32 v{vW2R+1}, {sT1}, v{vW2R+1}']]
def w2_issue(rnd, base=None):
    b0, n = W2R[rnd]
    return [[f's_add_u32 m0, {base or sM2}, {i*1024}', smov(sD, (b0+i)*8192), (f'buffer_load_dwordx4 v{vW2}, {sW2}, {sD} offen lds', f'w2_{rnd}')] for i in range(n)]
def w2_read(rnd):
    o = []
    b0, n = W2R[rnd]
    for i in range(n):
        s, hr = divmod(b0 + i, 2)
        for slot in range(2):
            o.append(f'ds_read_b64_tr_b16 {a_(8*s+4*slot+2*hr,2)}, v{vW2R+slot} offset:{i*1024}')
    return o

DAC, DW, DST, DY = 40, 88, 112, 128
vD = 10
vUT, vSB = 120, 123
vST = 16
def d_setup():
    o = [f'v_lshrrev_b32 v16, 5, v{vL}', f'v_lshlrev_b32 v{vD}, 8, v16', f'v_bfe_u32 v16, v{vL}, 2, 2', f'v_lshl_add_u32 v{vD}, v16, 6, v{vD}',
         f'v_bfe_u32 v16, v{vL}, 4, 1', f'v_lshl_add_u32 v{vD}, v16, 5, v{vD}', f'v_and_b32 v16, 3, v{vL}', f'v_lshl_add_u32 v{vD}, v16, 3, v{vD}',
         f'v_add_u32 v{vD}, {RB}, v{vD}', f'v_add_u32 v{vD+1}, {4*12288}, v{vD}',
         f's_mul_i32 {sT0}, {sW}, {2*12288}', f'v_add_u32 v13, {sT0}, v{vD}']
    return o
def d_setup2():
    return [
        f'v_and_b32 v{vST}, 31, v{vL}', f'v_lshlrev_b32 v{vST}, 6, v{vST}', f'v_and_b32 v17, 32, v{vL}', f'v_add_u32 v{vST}, v{vST}, v17',
        f's_lshl_b32 {sT0}, {sGRP}, 2', f's_add_u32 {sT0}, {sT0}, {sW}',
        f's_lshl_b32 {sLB2}, {sT0}, 11', f's_add_u32 {sLB2}, {sLB2}, {STATS}',
        f's_lshl_b32 {sLB}, {sT0}, 15',
        f's_mul_i32 {sT0}, {sT0}, {86*1024}', f's_mul_i32 {sT1}, {sR}, {6*1024}', f's_add_u32 {sT0}, {sT0}, {sT1}',
        f's_add_u32 {sS0}, {sT0}, {HB}', f's_add_u32 {sS1}, {sS0}, 2048', f's_add_u32 {sS2}, {sS0}, 4096',
        [f's_cmp_ge_u32 {sR}, 14', f's_cselect_b32 {sS1}, {OOB:#x}, {sS1}', f's_cselect_b32 {sS2}, {OOB:#x}, {sS2}'],
        [f's_cmp_eq_u32 {sR}, 15', f's_cselect_b32 {sS0}, {OOB:#x}, {sS0}'],
        smov(sT1, 0xcccccccc),
        [f's_bitcmp1_b32 {sW}, 0', f's_cselect_b32 {sT0}, {sT1}, 0x33333333'],
        [f's_bitcmp1_b32 {sW}, 1', f's_cselect_b32 s62, 0, {sT0}', f's_cselect_b32 s63, {sT0}, 0'],
        f's_mul_i32 {sT0}, {sW}, 768', f's_add_u32 {sT0}, {sT0}, {UT}', f'v_lshl_add_u32 v17, v{vL}, 2, {sT0}',
        f'v_lshlrev_b32 v7, 2, v{vL}', f'v_add_u32 v7, {UT}, v7',
    ]

def w1_rd(k16, buf, base=vD):
    return [f'ds_read_b64_tr_b16 {v(DW+12*buf+4*t+2*hr,2)}, v{base+(k16>>4)} offset:{((k16>>2)&3)*12288+t*4096+((k16>>1)&1)*2048+hr*1024+(k16&1)*512}' for t in range(3) for hr in range(2)]

def d_ut(extra):
    R(w1_rd(0, 0, 13))
    per = -(-len(extra) // 8)
    for i in range(8):
        mm = [f'v_mfma_f32_32x32x16_bf16 {v(DAC+16*t,16)}, {a_(AUA+4*i,4)}, {v(DW+12*(i&1)+4*t,4)}, ' + ('0' if i == 0 else v(DAC+16*t,16)) for t in range(3)]
        R(mweave(mm, (w1_rd(i+1, (i+1)&1, 13) if i < 7 else []) + extra[per*i:per*(i+1)]))
    R([f'ds_write_b32 v17, v{DAC+16*t} offset:{256*t}' for t in range(3)])
def d_ut2():
    o = [f'ds_read_b32 v{DAC+3*w+t}, v7 offset:{768*w+256*t}' for w in range(4) for t in range(3)]
    for t in range(3):
        o += [f'v_add_f32 v{DAC+t}, v{DAC+t}, v{DAC+3+t}', f'v_add_f32 v{DAC+6+t}, v{DAC+6+t}, v{DAC+9+t}', f'v_add_f32 v{vUT+t}, v{DAC+t}, v{DAC+6+t}']
    return o

def stats_load(dst, sreg):
    return [f'buffer_load_dwordx4 {v(dst,4)}, v{vST}, {sWS}, {sreg} offen sc1', f'buffer_load_dwordx4 {v(dst+4,4)}, v{vST}, {sWS}, {sreg} offen offset:16 sc1']

def stats_ops(d):
    o = []
    for e in range(2):
        o.append(f'v_add_f32 v{d+e}, v{d+e}, v{d+2+e}')
        o.append(f'v_add_f32 v{d+4+e}, v{d+4+e}, v{d+6+e}')
    for e in range(2): o.append(f'v_add_f32 v{d+2+e}, v{d+e}, v{d+4+e}')
    for e in range(2): o.append(f'v_add_f32 v{d+e}, v{d+e}, v{d+4+e}')
    o.append(f'v_mov_b32 v{d+4}, {f2u(1e-5):#x}')
    for e in range(2): o.append(f'v_permlane32_swap_b32 v{d+e}, v{d+2+e}')
    for e in range(2): o.append(f'v_add_f32 v{d+e}, v{d+e}, v{d+2+e}')
    o.append(f'v_mul_f32 v{d}, {f2u(1/512):#x}, v{d}')
    o.append(f'v_fmac_f32 v{d+4}, {f2u(1/512):#x}, v{d+1}')
    o.append(f'v_fma_f32 v{d+1}, -v{d}, v{d}, v{d+4}')
    o.append(f'v_max_f32 v{d+1}, {f2u(1e-5):#x}, v{d+1}')
    return o

def d_main():
    ld = frag_loads(DY, 32, sLB, srd=sOUT)
    LA = opt('dla', 7)
    R(ld[:2]); R(stats_load(DST, sLB2)); R(ld[2:LA])
    R(w1_rd(0, 0))
    w2r = w2_read(0)
    A.waitvm('w2_0')
    R(w2r[:opt('dpre', 16)]); w2r = w2r[opt('dpre', 16):]
    so = stats_ops(DST) + [f'v_sqrt_f32 v{DST+1}, v{DST+1}', f'v_cmp_gt_u32 vcc, 32, v{vL}', f'v_sub_f32 v{DST}, 0, v{DST}',
                           f'v_cndmask_b32 v{vSB}, v{DST}, v{DST+1}, vcc']
    extra = {0: w2r[:7], 1: w2r[7:], 2: so[:10], 3: so[10:], 4: [f's_mul_i32 {sP}, {sW}, {12*K}', f's_add_u32 {sP}, {sP}, {RB}']}
    bg = w2_issue(1) + w2_issue(2, sP)
    q = ld[LA:] + bg[:opt('nd', 10)]
    rest = bg[opt('nd', 10):]
    PER = opt('dper', 75)
    t = 0; nxt = 0
    for k in range(32):
        mm = [f'v_mfma_f32_32x32x16_bf16 {v(DAC+16*t,16)}, {v(DW+12*(k&1)+4*t,4)}, {v(DY+4*k,4)}, ' + ('0' if k == 0 else v(DAC+16*t,16)) for t in range(3)]
        fill = (w1_rd(k+1, (k+1)&1) if k < 31 else []) + extra.get(k, [])
        t += 96
        lds = []
        while q and nxt < t:
            lds.append(q.pop(0)); nxt += PER
        fill = lds[:1] + fill + lds[1:]
        R(mweave(mm, fill))
        if k == 18: I('s_barrier')
    assert not q
    for t in range(3):
        I(f'v_mfma_f32_32x32x2_f32 {v(DAC+16*t,16)}, v{vUT+t}, v{vSB}, {v(DAC+16*t,16)}')
    return rest

def d_epi():
    HP = 128
    o = []
    for t in range(3):
        for s in range(2):
            ks = range(4*s, 4*s+4)
            o += [f'v_cvt_pk_bf16_f32 v{HP+8*t+k}, v{DAC+16*t+2*k}, v{DAC+16*t+2*k+1}' for k in ks]
            o += [f'v_pk_max_i16 v{HP+8*t+k}, v{HP+8*t+k}, 0' for k in ks]
            o.append(f'buffer_store_dwordx4 {v(HP+8*t+4*s,4)}, v{vL16}, {sWS}, {[sS0,sS1,sS2][t]} offen offset:{1024*s}@')
    return o

EH, EAC, XE, EST, EG = 80, 176, 40, 56, 64
def e_pre1():
    o = [f's_lshl_b32 {sT0}, {sRB64}, 1', f's_lshr_b32 {sT1}, {sW}, 1', f's_add_u32 {sT0}, {sT0}, {sT1}',
         f's_lshl_b32 {sT2}, {sT0}, 11', f's_add_u32 {sT2}, {sT2}, {STATS}'] + stats_load(EST, sT2)
    o += [f's_xor_b32 {sT1}, {sT0}, 1', f's_mul_i32 {sLB}, {sT1}, {86*1024}', f's_mul_i32 {sLB2}, {sT0}, {86*1024}',
          f's_mul_i32 {sT1}, {sW}, {22*1024}', f's_add_u32 {sT1}, {sT1}, {HB}', f's_add_u32 {sLB}, {sLB}, {sT1}', f's_add_u32 {sLB2}, {sLB2}, {sT1}',
          smov(sS2, 4096), [f's_cmp_eq_u32 {sW}, 3', f's_cselect_b32 {sS2}, {OOB:#x}, {sS2}']]
    o += [f's_lshl_b32 {sT0}, {sW}, 4', f'v_and_b32 v10, 15, v{vL}', f'v_add_u32 v10, {sT0}, v10', f'v_mul_u32_u24 v10, 272, v10',
          f'v_and_b32 v11, 0x30, v{vL}', f'v_add_u32 v10, v10, v11', f'v_add_u32 v10, {XT}, v10']
    o += [f'ds_write_b128 v10, {v(X1+4*j,4)} offset:{64*j}' for j in range(4)]
    o += [f's_lshr_b32 {sT0}, {sW}, 1', f's_mul_i32 {sT0}, {sT0}, {32*272}', f's_and_b32 {sT1}, {sW}, 1', f's_lshl_b32 {sT1}, {sT1}, 7',
          f's_add_u32 {sT0}, {sT0}, {sT1}', f's_add_u32 {sT0}, {sT0}, {XT}',
          f'v_and_b32 v10, 31, v{vL}', f'v_mul_u32_u24 v10, 272, v10', f'v_lshrrev_b32 v11, 5, v{vL}', f'v_lshlrev_b32 v11, 4, v11',
          f'v_add3_u32 v10, v10, v11, {sT0}']
    o += [f's_mul_i32 {sT0}, {sW}, 11', f'v_lshrrev_b32 v12, 2, v{vL}', f'v_mul_u32_u24 v12, 3, v12', f'v_add_u32 v13, 2, v12',
          f'v_cmp_le_u32 {mC0}, {sT0}, v13', f's_add_u32 {sT0}, {sT0}, 10', f's_min_u32 {sT0}, {sT0}, 42', f'v_cmp_ge_u32 {mC1}, {sT0}, v12',
          f'v_bfe_u32 v12, v{vL}, 1, 1', f's_and_b32 {sT0}, {sRB64}, 1', f'v_cmp_eq_u32 {mP}, {sT0}, v12',
          f's_and_b64 {mC0}, {mC0}, {mC1}', f's_and_b64 {mC0}, {mC0}, {mP}']
    return o
def e_pre2():
    o = [f'ds_read_b128 {v(XE+4*q,4)}, v10 offset:{32*q}' for q in range(4)]
    for k in range(8):
        o += [f'v_accvgpr_read_b32 v{EG+2*k+1}, a{AGB+k}', f'v_lshlrev_b32 v{EG+2*k}, 16, v{EG+2*k+1}', f'v_and_b32 v{EG+2*k+1}, 0xffff0000, v{EG+2*k+1}']
    o += stats_ops(EST) + [f'v_rsq_f32 v{EST}, v{EST+1}']
    for rel in (1, 2, 3):
        o += [f's_xor_b32 {sT0}, {sW}, {rel}', f's_mul_i32 {sT0}, {sT0}, 12288', f's_add_u32 {sT0}, {sT0}, {EX + (rel-1)*4096}', f'v_add_u32 v{10+rel}, {sT0}, v{vL16}']
    o += [f'v_mul_f32 v{EG+k}, v{EST}, v{EG+k}' for k in range(16)]
    o += [f's_mul_i32 {sT0}, {sW}, 12288', f's_add_u32 {sT0}, {sT0}, {EX}', f'v_add_u32 v14, {sT0}, v{vL16}']
    o += [f's_lshl_b32 {sT0}, {sRB64}, 16', f's_lshr_b32 {sT1}, {sW}, 1', f's_lshl_b32 {sT1}, {sT1}, 15', f's_add_u32 {sT0}, {sT0}, {sT1}',
          f's_lshl_b32 {sT1}, {sHQ}, 7', f's_add_u32 {sT0}, {sT0}, {sT1}', f's_and_b32 {sT1}, {sW}, 1', f's_lshl_b32 {sT1}, {sT1}, 6',
          f's_add_u32 {sS0}, {sT0}, {sT1}',
          f'v_and_b32 v15, 31, v{vL}', f'v_lshlrev_b32 v15, 10, v15', f'v_lshrrev_b32 v16, 5, v{vL}', f'v_lshl_add_u32 v15, v16, 4, v15']
    return o

def e_main(pre):
    ld = frag_loads(EH, 22, sLB, sS2) + frag_loads(EH + 88, 22, sLB2, sS2)
    LA = opt('ela', 8)
    R(ld[:LA])
    R(pre)
    def mm(tile, slot, rel, i):
        d = a_(EAC + 16*tile, 16) if tile else v(X1, 16)
        return f'v_mfma_f32_32x32x16_bf16 {d}, {a_(8*i+4*slot,4)}, {v(EH+88*rel+4*i,4)}, ' + ('0' if i == 0 else d)
    def wr(tile): return [f'ds_write_b128 v{10+tile}, {a_(EAC+16*tile+4*q,4)} offset:{1024*q}' for q in range(4)]
    w23 = wr(2) + wr(3)
    for j in range(44):
        rel, i = divmod(j, 22)
        if j + LA < 44: R(ld[j+LA])
        m = [mm(2, 0, 0, i), mm(3, 1, 0, i)] if rel == 0 else [mm(1, 1, 1, i), mm(0, 0, 1, i)]
        if rel == 1 and i == 2: m.append('s_barrier')
        if rel == 1 and i >= 6 and w23: m.insert(1, w23.pop(0))
        R(m)
    R(wr(1))
    A.barrier()
    for rel in range(3):
        for q in range(4): I(f'ds_read_b128 {v(EH+16+16*rel+4*q,4)}, v14 offset:{4096*rel+1024*q}')
    for rel in range(3):
        for k in range(8): I(f'v_pk_add_f32 {v(X1+2*k,2)}, {v(X1+2*k,2)}, {v(EH+16+16*rel+2*k,2)}')
    for pr in range(2):
        ks = range(4*pr, 4*pr+4)
        for k in ks: I(f'v_pk_fma_f32 {v(X1+2*k,2)}, {v(X1+2*k,2)}, {v(EG+2*k,2)}, {v(XE+2*k,2)}')
        for k in ks: I(f'v_cvt_pk_bf16_f32 v{EH+k}, v{X1+2*k}, v{X1+2*k+1}')
    for pr in range(2):
        for i in range(2): I(f'v_permlane32_swap_b32 v{EH+4*pr+i}, v{EH+4*pr+2+i}')
        I(f'buffer_store_dwordx4 {v(EH+4*pr,4)}, v15, {sOUT}, {sS0} offen offset:{32*pr}')

def gen_update():
    I(f's_lshl_b32 {sT0}, s2, 2')
    I(f's_add_u32 {sT0}, {sT0}, {sW}')
    I(f's_cmp_lg_u32 {sT0}, {120*4}')
    A.settle()
    I('s_cbranch_scc1 L_nogen')
    A.cond = 'gen'
    I(smov(sCNT, SPIN)); I(smov(sT0, HELLO))
    A.label('L_gen')
    for i in range(4): I(f'buffer_load_dwordx4 {v(128+4*i,4)}, v{vL16}, {sWS}, {sT0} offen offset:{1024*i} sc1')
    A.vm0()
    R([f'v_cmp_ne_u64 vcc, {TAG}, v[130:131]', f'v_cmp_ne_u64 s[4:5], {TAG}, v[134:135]', f's_or_b64 vcc, vcc, s[4:5]',
       f'v_cmp_ne_u64 s[4:5], {TAG}, v[138:139]', f's_or_b64 vcc, vcc, s[4:5]', f'v_cmp_ne_u64 s[4:5], {TAG}, v[142:143]', f's_or_b64 vcc, vcc, s[4:5]',
       's_cbranch_scc0 L_gend', f's_sub_u32 {sCNT}, {sCNT}, 1', 's_cbranch_scc0 L_gen'])
    A.label('L_gend')
    I(f'v_lshlrev_b32 v128, 24, v{vL}')
    I(smov(sT0, GEN))
    I(f'buffer_store_dwordx2 {v(vTAG,2)}, v128, {sWS}, {sT0} offen sc1')
    A.settle()
    A.cond = None
    A.label('L_nogen')

def finish():
    if DEBUG:
        A.vm0()
        ts('end')
        A._emit(Ins('s_memrealtime s[6:7]'))
        A.lg0(force=True)
        for i in range(22): I(f'v_writelane_b32 v4, s{TS0+i}, {i}')
        I('s_getpc_b64 s[4:5]'); A.label('L_pc'); I(f's_sub_u32 s4, s4, L_pc-{NAME}_kernel'); I('s_subb_u32 s5, s5, 0'); I('v_writelane_b32 v4, s4, 36'); I('v_writelane_b32 v4, s5, 37')
        I('v_writelane_b32 v4, s100, 30'); I('v_writelane_b32 v4, s101, 31')
        I('v_writelane_b32 v4, s6, 32'); I('v_writelane_b32 v4, s7, 33'); I(f'v_writelane_b32 v4, {sFAST}, 34'); I(f'v_writelane_b32 v4, {sXCC}, 35')
        R([f's_lshl_b32 {sT0}, s2, 2', f's_add_u32 {sT0}, {sT0}, {sW}', f's_lshl_b32 {sT0}, {sT0}, 8', f's_add_u32 {sT0}, {sT0}, {TSB}',
           f'v_lshlrev_b32 v5, 2, v{vL}', f'buffer_store_dword v4, v5, {sWS}, {sT0} offen'])
    A.label('L_end')
    I('s_endpgm')
    for s in slow_blocks: s()

def stage(tok):
    A.waitvm(tok, 3); A.barrier()

def main():
    prologue()
    ts('p0')
    pp = mod_setup() + x_setup()
    for j in range(0, len(pp), 10):
        R(pp[j:j+10]); ts(f'p{j//10+1}')
    post = late_srd + g1_setup() + dma_setup() + pfm_setup() + b_setup()
    npre = opt('npre', 0)
    R(post[:npre])
    ts('pre')
    I(f's_load_dwordx2 {TAG}, s[40:41], {GEN}')
    ts('karg')
    post = post[npre:]
    X1N = opt('x1', 10)
    W = lambda a, b: [g for ks in range(a, b) for g in wq_issue(ks)]
    RD = lambda a, b: [o for ks in range(a, b) for o in wq_read(ks)]
    q = [x_load(i) for i in range(20)]
    q.insert(opt('pfq', 10), pfm(sWQ))
    q += W(0, 8)
    q.insert(opt('g1pos', 38), g1_load())
    DLY = opt('dly', 60)
    I(f's_cmp_ge_u32 {sRK}, 12')
    I('s_cbranch_scc1 L_nomod2')
    A.cond = 'mod'
    I(f's_cmp_ge_u32 {sRK}, 4')
    I('s_cbranch_scc1 L_m1')
    m1, m2 = mod_issue()
    R(m1)
    A.label('L_m1')
    A.vm = [e for e in A.vm if e[2] != 'mod']
    R(post[:DLY])
    I(f's_cmp_lt_u32 {sRK}, 4')
    A.settle()
    I('s_cbranch_scc1 L_m2')
    R(m1)
    A.label('L_m2')
    R(post[DLY:]); ts('mi0'); R(m2); ts('mi1')
    R(tag_fix()); ts('mtag')
    R(pace(mod_compute(), q[:X1N], period=opt('mper', 50), first=opt('mfirst', 200)))
    ts('modpub')
    A.settle(); I('s_branch L_mod3')
    A.cond = None
    A.label('L_nomod2')
    A.sm |= {('s', 44), ('s', 45)}
    A.vm = [e for e in A.vm if e[2] != 'mod']
    if not opt('nopf3'): R(pf_mod3())
    R(post[:max(DLY-15, 0)]); R(q[:8]); R(post[max(DLY-15, 0):]); R(tag_fix()); R(q[8:X1N])
    A.settle()
    A.label('L_mod3')
    q = q[X1N:]
    ts('xiss')
    pend = []
    ln = []
    for i in range(20):
        p = x_proc(i)
        k = (len(pend) + (3 - (i & 3))) // (4 - (i & 3))
        p = p[:1] + spread(p[1:], pend[:k]); pend = pend[k:]
        ln += p
        if i & 3 == 3:
            f, n = x_fin(i >> 2)
            pend = f + n
        if i in (3, 11, 19): ln.append(lambda i=i: ts(f'x{i}'))
    ln += pend + [lambda: ts('ln')]
    NL = opt('nl', 0)
    R(pace(ln, q[:len(q)-NL], period=opt('lper', 60), first=opt('lfirst', 130))); q = q[len(q)-NL:]
    ts('wiss')
    assert A.tokc.get('poll') == 1
    g1_check()
    ts('gath')
    stage('ks3')
    ts('s4')
    R(h_gsread(0))
    R(pace(RD(0, 4) + h_conv(0, True), q + [pf_misc(), pfm(sWO), pfm(sW1)], period=60))
    R(hello())
    A.barrier()
    ts('mf0')
    R(h_read(0))
    w1 = [g for i in range(8) for g in w1_issue(i)]
    wo = [wo_issue(i) for i in range(16)]
    vm = {0: (W(8, 10), W(10, 12)),
          1: ([], W(12, 16)),
          2: (g2_loads() + [pf_y()], wo[:12]),
          3: ([c_xload()], wo[12:] + w1[:opt('w1a', 6)])}
    w1 = w1[opt('w1a', 6):]
    for c in range(4):
        hc = (h_gsread(c+1) + h_conv(c+1, False)) if c < 3 else modvec_read() + att_setup() + pub_setup()
        if c == 1: hc = hc + g2_setup()
        rd = RD(4*c+1, 4*c+4) if c else []
        n1 = len(hc) * (opt('hs0', 55) if c == 0 else opt('hs', 40)) // 100
        f1 = spread(rd + hc[:n1], vm[c][0]); f2 = spread(hc[n1:], vm[c][1])
        parts = [f1[:len(f1)//2], f1[len(f1)//2:], f2[:len(f2)*2//3], f2[len(f2)*2//3:]]
        if c == 3:
            f1 = spread(rd + att_setup() + pub_setup(), vm[c][0]); f2 = spread(modvec_read(), vm[c][1])
            parts = [f1[:len(f1)//2], f1[len(f1)//2:], f2[:len(f2)//2], f2[len(f2)//2:]]
        for kl in range(4):
            ks = 4*c + kl
            f = parts[kl]
            mm = qkv_mfma(ks)
            if kl < 3:
                R(mweave(mm, h_read(ks+1) + f))
                if kl == 1 and c:
                    A.barrier()
            elif c < 3:
                R(mweave(mm[:7], f))
                if c == 2: g2_check()
                A.waitvm(f'ks{4*c+7}', 3)
                A.barrier()
                ts(f'c{c}')
                R(mweave(mm[7:], RD(ks+1, ks+2) + h_read(ks+1)))
            else:
                R(mweave(mm, f))
    A.waitvm('wo', 16)
    A.barrier()
    ts('qkv')
    att, tail = attention()
    NW1, NW1b = opt('nw1', 6), opt('nw1b', 6)
    R(pace(att, w1[:NW1], period=opt('aper', 100))); w1 = w1[NW1:]
    publish(tail, 0, w1[:NW1b]); w1 = w1[NW1b:]
    ts('opub')
    R(c_pre())
    R([poll_load(0)])
    poll_check(0, mC0)
    ts('opoll')
    c_main(w1 + [pfm(sW2), pf_h()])
    publish(c_epi(), 1)
    ts('ypub')
    R(d_setup())
    A.waitvm('w1', 24)
    A.barrier()
    d_ut(spread(d_setup2(), w2_issue(0)))
    R([poll_load(1)])
    A.barrier()
    R(d_ut2())
    gen_update()
    poll_check(1, mC0)
    ts('ypoll')
    rest = d_main()
    NR = opt('nr', 6)
    publish(d_epi(), 2, rest[:NR]); rest = rest[NR:]
    ts('hpub')
    A.barrier()
    R(pace(e_pre1(), rest + [[f's_lshl_b32 {sP}, {sW}, 11', f's_add_u32 {sP}, {sP}, {W2X}']] + w2_issue(3, sP), period=30))
    R([poll_load(2)])
    A.barrier()
    R(e_pre2())
    poll_check(2, mC0)
    ts('hpoll')
    e_main(w2_read(1) + w2_rebase(12*K, RB) + w2_read(2) + w2_rebase(2*K, W2X) + w2_read(3))
    finish()

main()
hdr = open(f'cdna_kernels/{NAME}.s.ref').read().split('\n')
head = [l for l in hdr if l.startswith(';') and '@launch' not in l]
out = '\n'.join(head) + '\n; @launch grid=(256,1,1) block=(256,1,1) lds=163840\n'
out += f'''.amdgcn_target "amdgcn-amd-amdhsa--gfx950"
.text
.globl {NAME}_kernel
.p2align 8
.type {NAME}_kernel,@function
{NAME}_kernel:
'''
out += A.text()
out += f'''.fill @PAD@, 4, 0xbf810000
.section .rodata,"a"
.p2align 6
.amdhsa_kernel {NAME}_kernel
  .amdhsa_next_free_vgpr 512
  .amdhsa_next_free_sgpr 102
  .amdhsa_accum_offset 256
  .amdhsa_group_segment_fixed_size 0
  .amdhsa_kernarg_size 88
  .amdhsa_user_sgpr_count 2
  .amdhsa_user_sgpr_kernarg_segment_ptr 1
  .amdhsa_system_sgpr_workgroup_id_x 1
.end_amdhsa_kernel
'''
dst = sys.argv[1]
import subprocess, re
def textsize(t):
    open('_sz.s', 'w').write(t)
    subprocess.run(['clang', '-x', 'assembler', '-target', 'amdgcn-amd-amdhsa', '-mcpu=gfx950', '-c', '_sz.s', '-o', '_sz.o'], check=True)
    h = subprocess.run(['llvm-objdump', '-h', '_sz.o'], capture_output=True, text=True).stdout
    return int(re.search(r'\.text\s+([0-9a-f]+)', h).group(1), 16)
sz = textsize(out.replace('@PAD@', '1'))
out = out.replace('@PAD@', str(max(1, (33024 - sz) // 4 + 2)))
assert textsize(out) >= 33024
print('code bytes', sz, file=sys.stderr)
open(dst, 'w').write(out)
if DEBUG: open(dst + '.ts', 'w').write(','.join(tsnames))
print(A.stats, 'nops', A.nnop, 'waits', A.nwait, file=sys.stderr)
```

```python
import sys, struct
from asm import Asm, Ins, weave, pace, spread, mweave, flat

NAME = 'adaLN_cond__sliding_local_dilated__dense_activation_relu__prompt'
DEBUG = any(a.startswith('--ts') for a in sys.argv)
TSSEL = None
OPT = {}
for a in sys.argv:
    if a.startswith('--ts='): TSSEL = set(a[5:].split(',')) | {'start', 'end'}
    if a.startswith('--opt='):
        for kv in a[6:].split(','):
            k, _, val = kv.partition('=')
            OPT[k] = int(val) if val else 1
TSDEF = set('start,xiss,s3,mf0,qkv,opub,opoll,ypub,ypoll,hpub,hpoll,end'.split(','))
def opt(k, d=0): return OPT.get(k, d)

GRAN, HELLO, GEN, FLAGS, STATS = 0x0, 0x3000, 0x4000, 0x10000, 0x20000
OB, YB, HB, TSB = 0x100000, 0x300000, 0x500000, 0xB00000
WS_SIZE = 0x1000000
OOB = 0x40000000
K = 1024
RA, RB = 0, 64 * K
HF = 112 * K
GS = 152 * K
MV = 156 * K
MR = MV
UT = 60 * K
EX = RB
XT = RB + 48 * K
W2X = RB + 66 * K
sX, sWQ, sWO, sW1, sW2, sC, sWM, sOUT, sWS = [f's[{i}:{i+3}]' for i in range(8, 44, 4)]
TAG = 's[44:45]'
sW, sXG, sRK, sRB64, sHQ, sGRP, sR, sXCC, sFAST = [f's{i}' for i in range(46, 55)]
sT0, sT1, sT2, sT3, sT4 = [f's{i}' for i in range(55, 60)]
mP, mC0, mC1 = 's[60:61]', 's[62:63]', 's[64:65]'
sCNT, sD, sM3, sM1, sM2, sP, sLB, sLB2, sS0, sS1, sS2, sCBK = [f's{i}' for i in range(66, 78)]
sG0, sG1, sG2 = 's3', 's4', 's5'
TS0 = 78
SPIN = 20000
LOG2E = 1.4426950408889634

def f2u(x): return struct.unpack('<I', struct.pack('<f', x))[0]
def v(i, n=1): return f'v{i}' if n == 1 else f'v[{i}:{i+n-1}]'
def a_(i, n=1): return f'a{i}' if n == 1 else f'a[{i}:{i+n-1}]'
def smov(d, x): return f's_mov_b32 {d}, {x:#x}'

A = Asm()
I = A.I
R = lambda l: A.run(flat(l))
def cat(*ls): return [o for l in ls for o in l]
tsnames = []
def ts(name):
    if not DEBUG or name not in (TSSEL or TSDEF): return
    i = len(tsnames)
    assert i < 11
    tsnames.append(name)
    A._emit(Ins(f's_memtime s[{TS0+2*i}:{TS0+1+2*i}]'))

vL, vL16, vFO = 1, 2, 3
vWQ, vTR, vHW, vGSA, vHR, vWO, vT128, vW2, vW2R, vW1 = 6, 7, 9, 14, 15, 17, 18, 20, 21, 23
vFS, vTAG = 6, 8
XB = 96
def xr(rg, c): return XB + c * 40 + rg * 8
vXO = 88
GSR = 80
GA = 24
WM0, WMC, WMA = 40, 72, 80

def prologue():
    I('s_cmp_ge_u32 s2, 256')
    I('s_cbranch_scc1 L_end')
    if DEBUG: A._emit(Ins('s_memrealtime s[100:101]'))
    ts('start')
    order = [(32, 56), (28, 48), (8, 0), (40, 80), (12, 8), (16, 16), (20, 32), (24, 40), (36, 64)]
    for s, off in order[:4]:
        I(f's_load_dwordx2 s[{s}:{s+1}], s[0:1], {off}')
    I('s_getpc_b64 s[6:7]')
    I(f'v_lshlrev_b32 v{vT128}, 7, v0')
    I(f'v_lshrrev_b32 v4, 6, v0')
    if not opt('nocode'):
        I(f's_bfe_u32 {sT0}, s2, 0x20003')
        I(f'v_cmp_eq_u32 vcc, {sT0}, v4')
        I(f's_mov_b64 exec, vcc')
        A._emit_nodep(f'global_load_dword a247, v{vT128}, s[6:7]')
        I(f's_mov_b64 exec, -1')
    ts('pa')
    for s, off in order[4:]:
        I(f's_load_dwordx2 s[{s}:{s+1}], s[0:1], {off}')
    I(f'v_and_b32 v{vL}, 63, v0')
    I(f'v_readfirstlane_b32 {sW}, v4')
    sizes = {8: 2097152, 12: 1572864, 16: 524288, 20: 1409024, 24: 1409024, 28: 1024, 32: 3145728, 36: 2097152, 40: WS_SIZE}
    global late_srd
    late_srd = []
    for s, off in order:
        o = [smov(f's{s+2}', sizes[s]), smov(f's{s+3}', 0x20000)]
        if s in (32, 28, 8): R(o)
        else: late_srd += o
    I(f's_and_b32 {sXG}, s2, 7')
    I(f's_lshr_b32 {sRK}, s2, 3')
    I(f's_lshr_b32 {sT0}, {sRK}, 3')
    I(f's_lshl_b32 {sRB64}, {sXG}, 2')
    I(f's_add_u32 {sRB64}, {sRB64}, {sT0}')
    I(f's_and_b32 {sHQ}, {sRK}, 7')
    I(f's_lshr_b32 {sGRP}, {sRB64}, 1')
    I(f's_and_b32 {sR}, {sRK}, 15')
    I(f'v_lshlrev_b32 v{vL16}, 4, v{vL}')

vMA, vMC = 26, 27
sORD = sG2
def mod_setup():
    return [
        f's_lshr_b32 {sT1}, {sRK}, 3',
        f's_cmp_lt_u32 {sHQ}, 5',
        f's_cselect_b32 {sT0}, 5, 3',
        f's_cselect_b32 {sORD}, 0, 15',
        f's_mul_i32 {sT0}, {sT0}, {sT1}',
        f's_add_u32 {sORD}, {sORD}, {sHQ}',
        f's_add_u32 {sORD}, {sORD}, {sT0}',
        f's_lshr_b32 {sT1}, {sORD}, 1',
        f's_sub_u32 {sT1}, {sT1}, 10',
        f's_add_u32 {sT0}, {sT1}, {sXG}',
        f's_and_b32 {sT0}, {sT0}, 7',
        f's_lshl3_add_u32 {sT0}, {sT1}, {sT0}',
        f's_and_b32 {sT1}, {sORD}, 1',
        f's_lshl1_add_u32 {sCBK}, {sT0}, {sT1}',
        f'v_lshrrev_b32 v{vMA}, 2, v{vL}',
        f'v_mul_u32_u24 v{vMA}, {8*6144}, v{vMA}',
        f'v_and_b32 v{vMC}, 0x30, v{vL16}',
        f'v_add_u32 v{vMA}, v{vMC}, v{vMA}',
        f's_mul_i32 {sT0}, {sW}, {128*6144}',
        f's_lshl_b32 {sT1}, {sCBK}, 6',
        f's_add_u32 {sS0}, {sT0}, {sT1}',
        f's_bitcmp1_b32 {sORD}, 0',
        f's_cselect_b32 {sT0}, 8, 0',
        f's_cselect_b32 {sT1}, {4*6144}, 0',
        f's_cselect_b32 {sS1}, 0, {4*6144}',
        f'v_lshlrev_b32 v{vMC}, 2, v0',
        f'v_xor_b32 v{vMC}, {sT0}, v{vMC}',
        f's_add_u32 {sS1}, {sS0}, {sS1}',
        f's_add_u32 {sS0}, {sS0}, {sT1}',
    ]

def mod_issue():
    o = [[f'buffer_load_dword v{WMC}, v{vMC}, {sC}, 0 offen'], []]
    for j in range(8):
        sr = sS0 if j < 4 else sS1
        o[j>>2].append(f'buffer_load_dwordx4 {v(WM0+4*j,4)}, v{vMA}, {sWM}, {sr} offen')
        if j & 3 != 3: o[j>>2].append(f's_add_u32 {sr}, {sr}, 6144')
    return o

def mod_compute():
    o = []
    I = o.append
    c = WMC
    for i in range(8): I(f'v_mov_b32 v{WMA+i}, 0')
    I(f'v_and_b32 v4, 3, v{vL}')
    I(f'v_lshlrev_b32 v4, 5, v4')
    I(f'v_lshrrev_b32 v5, 4, v{vL}')
    I(f'v_lshl_add_u32 v4, v5, 3, v4')
    I(f's_lshl_b32 {sT2}, {sW}, 7')
    I(f's_add_u32 {sT2}, {sT2}, {MR}')
    I(f'v_add_u32 v4, {sT2}, v4')
    I(f'v_and_b32 v24, 0x70, v{vL16}')
    I(f'v_add_u32 v5, {MR}, v24')
    I(f'v_cmp_gt_u32 vcc, 8, v0')
    I(f'v_mov_b32 v25, {OOB:#x}')
    I(f's_lshr_b32 {sT2}, {sCBK}, 4')
    I(f'v_cndmask_b32 v24, v25, v24, vcc')
    I(f's_lshr_b32 {sT3}, 0x12, {sT2}')
    I(f's_and_b32 {sT3}, {sT3}, 1')
    I(f's_mul_i32 {sT3}, {sT3}, {f2u(1.0):#x}')
    I(f's_lshl_b32 {sT2}, {sCBK}, 7')
    I(f'v_lshlrev_b32 v{c+4}, 16, v{c}')
    I(lambda: ts('mc'))
    I(f'v_and_b32 v{c+5}, 0xffff0000, v{c}')
    for k in (4, 5): I(f'v_mul_f32 v{c+k+2}, {-LOG2E!r}, v{c+k}')
    for k in (4, 5): I(f'v_exp_f32 v{c+k+2}, v{c+k+2}')
    for k in (4, 5): I(f'v_add_f32 v{c+k+2}, 1.0, v{c+k+2}')
    for k in (4, 5): I(f'v_rcp_f32 v{c+k+2}, v{c+k+2}')
    for k in (4, 5): I(f'v_mul_f32 v{c+k}, v{c+k}, v{c+k+2}')
    I(f'v_cvt_pk_bf16_f32 v{c+4}, v{c+4}, v{c+5}')
    I(smov(sT0, 0x05040100)); I(smov(sT1, 0x07060302))
    for j in range(4):
        I(f'v_mov_b32_dpp v{c+j}, v{c+4} quad_perm:[{j},{j},{j},{j}] row_mask:0xf bank_mask:0xf')
    for j in range(4):
        r0, r1 = WM0 + 8*j, WM0 + 8*j + 4
        for d in range(4):
            I(f'v_perm_b32 v{c+4+(d&1)*2}, v{r1+d}, v{r0+d}, {sT0}')
            if d == 0: I(lambda j=j: ts(f'mw{j}'))
            I(f'v_perm_b32 v{c+5+(d&1)*2}, v{r1+d}, v{r0+d}, {sT1}')
            I(f'v_dot2c_f32_bf16 v{WMA+2*d}, v{c+4+(d&1)*2}, v{c+j}')
            I(f'v_dot2c_f32_bf16 v{WMA+2*d+1}, v{c+5+(d&1)*2}, v{c+j}')
    m = WMA
    for i in range(4): I(f'v_permlane32_swap_b32 v{m+i}, v{m+i+4}')
    for i in range(4): I(f'v_add_f32 v{m+i}, v{m+i}, v{m+i+4}')
    for i in range(2): I(f'v_permlane16_swap_b32 v{m+i}, v{m+i+2}')
    for i in range(2): I(f'v_add_f32 v{m+i}, v{m+i}, v{m+i+2}')
    for rot in (8, 4):
        for i in range(2): I(f'v_add_f32_dpp v{m+i}, v{m+i}, v{m+i} row_ror:{rot} row_mask:0xf bank_mask:0xf')
    I(f'ds_write_b64 v4, {v(m,2)}')
    I(f'v_mov_b32 v30, s44')
    I(f'v_mov_b32 v31, s45')
    I(lambda: ts('mb0'))
    I(A.barrier)
    I(lambda: ts('mb1'))
    for w in range(4): I(f'ds_read_b128 {v(WM0+4*w,4)}, v5 offset:{128*w}')
    for i in (0, 2): I(f'v_pk_add_f32 {v(WM0+i,2)}, {v(WM0+i,2)}, {v(WM0+4+i,2)}')
    for i in (0, 2): I(f'v_pk_add_f32 {v(WM0+8+i,2)}, {v(WM0+8+i,2)}, {v(WM0+12+i,2)}')
    for i in (0, 2): I(f'v_pk_add_f32 {v(WM0+i,2)}, {v(WM0+i,2)}, {v(WM0+8+i,2)}')
    I(f'v_cvt_pk_bf16_f32 v{WM0+4}, v{WM0}, v{WM0+1}')
    I(f'v_cvt_pk_bf16_f32 v{WM0+5}, v{WM0+2}, v{WM0+3}')
    for i in range(2):
        I(f'v_lshlrev_b32 v{WM0+2*i}, 16, v{WM0+4+i}')
        I(f'v_and_b32 v{WM0+2*i+1}, 0xffff0000, v{WM0+4+i}')
    for i in range(4): I(f'v_add_f32 v{WM0+i}, {sT3}, v{WM0+i}')
    I(f'v_cvt_pk_bf16_f32 v28, v{WM0}, v{WM0+1}')
    I(f'v_cvt_pk_bf16_f32 v29, v{WM0+2}, v{WM0+3}')
    I(f'buffer_store_dwordx4 v[28:31], v24, {sWS}, {sT2} offen sc1')
    return o

def pf(srd, base_ops, wlo=0, whi=4):
    o = list(base_ops)
    if wlo: o.append(f's_sub_u32 {sP}, {sP}, {wlo*8192}')
    if wlo:
        o += [f's_cmp_lt_u32 {sW}, {wlo}', f's_cselect_b32 {sP}, {OOB:#x}, {sP}']
    if whi < 4:
        o += [f's_cmp_ge_u32 {sW}, {whi}', f's_cselect_b32 {sP}, {OOB:#x}, {sP}']
    o.append(lambda: A._emit_nodep(f'buffer_load_dword a247, v{vT128}, {srd}, {sP} offen'))
    return o

def _emit_nodep(text):
    ins = Ins(text); ins.w = set()
    A._emit(ins); A.vm.append((set(), None, A.cond, set()))
A._emit_nodep = _emit_nodep

vPF = 19
def pfm_setup():
    return [f's_lshl3_add_u32 {sT0}, {sORD}, {sXG}', f's_lshl2_add_u32 {sT0}, {sT0}, {sW}', f's_mul_i32 {sT0}, {sT0}, {12*128}', f'v_lshl_add_u32 v{vPF}, v{vL}, 7, {sT0}',
            f's_lshl2_add_u32 {sT0}, {sORD}, {sW}', f's_mul_i32 {sT0}, {sT0}, {12*1024}', f's_add_u32 {sT0}, {sT0}, {(384 - 12*1024) & 0xffffffff:#x}',
            f'v_lshl_add_u32 v4, v{vL}, 10, {sT0}', f'v_cmp_gt_u32 vcc, 12, v{vL}', f'v_mov_b32 v5, {OOB:#x}',
            f'v_cndmask_b32 v{vPF}, v4, ' + ('v5' if opt('nopfm') else f'v{vPF}') + ', vcc', f'v_cmp_gt_u32 vcc, ' + ('12' if opt('nopf3') else '24') + f', v{vL}', f'v_cndmask_b32 v{vPF}, v5, v{vPF}, vcc']
def pfm(srd): return [lambda: A._emit_nodep(f'buffer_load_dword a247, v{vPF}, {srd}, 0 offen')]
def pf_mod3():
    return [f's_sub_u32 {sT0}, 3, {sXG}', f's_and_b32 {sT0}, {sT0}, 7', f's_lshl_b32 {sT1}, {sT0}, 10', f's_add_u32 {sT1}, {sT1}, 384',
            f's_cmp_ge_u32 {sT0}, 6', f's_cselect_b32 {sT1}, {OOB:#x}, {sT1}',
            f's_lshl2_add_u32 {sT0}, {sORD}, {sW}', f's_mul_i32 {sT0}, {sT0}, {8*6144}', f's_add_u32 {sT1}, {sT1}, {sT0}',
            f'v_and_b32 v4, 7, v{vL}', f'v_mul_u32_u24 v4, 6144, v4',
            lambda: A._emit_nodep(f'buffer_load_dword a247, v4, {sWM}, {sT1} offen')]
def tile_base(d):
    return [f's_lshr_b32 {d}, {sR}, 2', f's_lshl2_add_u32 {d}, {sGRP}, {d}', f's_mul_i32 {d}, {d}, {86*1024}']
def pf_lines(srd, n, base_ops, tmp):
    return base_ops + [f's_mov_b64 exec, {(1 << n) - 1:#x}', f'v_lshlrev_b32 v{tmp}, 7, v{vL}',
                       lambda: A._emit_nodep(f'buffer_load_dword a247, v{tmp}, {srd}, {sP} offen'), 's_mov_b64 exec, -1']
def pf_o(tmp):
    return pf_lines(sWS, 16, tile_base(sP) + [f's_and_b32 {sD}, {sR}, 3', f's_lshl2_add_u32 {sD}, {sD}, {sW}', f's_lshl_b32 {sD}, {sD}, 11',
                                             f's_add_u32 {sP}, {sP}, {sD}', f's_add_u32 {sP}, {sP}, {HB}'], tmp)
def pf_h(tmp):
    return pf_lines(sWS, 27, tile_base(sP) + [f's_and_b32 {sD}, {sR}, 3', f's_lshl2_add_u32 {sD}, {sD}, {sW}', f's_mul_i32 {sD}, {sD}, {27*128}',
                                             f's_add_u32 {sP}, {sP}, {sD}', f's_add_u32 {sP}, {sP}, {HB+32768}'], tmp)
def pf_y(tmp):
    return pf_lines(sOUT, 16, [f's_lshl3_add_u32 {sP}, {sRB64}, {sHQ}', f's_lshl2_add_u32 {sP}, {sP}, {sW}', f's_lshl_b32 {sP}, {sP}, 11'], tmp)
def pf_sf(tmp):
    return [f's_lshl2_add_u32 {sD}, {sR}, {sW}', f's_and_b32 {sP}, {sD}, 15', f's_lshl4_add_u32 {sP}, {sGRP}, {sP}', f's_lshl_b32 {sP}, {sP}, 7',
            f's_add_u32 {sP}, {sP}, {FLAGS}', f's_lshl_b32 {sD}, {sD}, 7', f's_sub_u32 {sD}, {sD}, {sP}', f's_add_u32 {sD}, {sD}, {STATS}',
            f's_lshl_b32 {sCNT}, {sGRP}, 13', f's_add_u32 {sD}, {sD}, {sCNT}',
            f's_mov_b64 exec, 3', f'v_mul_u32_u24 v{tmp}, {sD}, v{vL}',
            lambda: A._emit_nodep(f'buffer_load_dword a247, v{tmp}, {sWS}, {sP} offen'), 's_mov_b64 exec, -1']

def x_setup():
    o = [smov('s62', 0x21043210), smov('s63', 0x1043), f's_lshl_b32 {sT0}, {sHQ}, 2', f's_lshr_b64 s[62:63], s[62:63], {sT0}',
         f's_mul_i32 {sT1}, {sW}, 20', f'v_lshrrev_b32 v94, 4, v{vL}', f'v_add_u32 v94, {sT1}, v94',
         f's_lshl_b32 {sT0}, {sRB64}, 6', f's_sub_u32 {sT0}, {sT0}, 16', f'v_and_b32 v95, 0xf0, v{vL16}']
    for rg in range(5):
        o += [f's_bfe_u32 {sT1}, s62, {(4*rg) | (4 << 16):#x}', f'v_lshl_add_u32 v{vHW+rg}, {sT1}, 2, v94',
              f'v_add_u32 v{vXO+rg}, {sT0}, v{vHW+rg}', f'v_max_i32 v{vXO+rg}, 0, v{vXO+rg}', f'v_lshl_add_u32 v{vXO+rg}, v{vXO+rg}, 10, v95']
    return o
def x_load(i):
    rg, c = divmod(i, 4)
    return f'buffer_load_dwordx4 {v(xr(rg,c)+4,4)}, v{vXO+rg}, {sX}, 0 offen offset:{256*c}'

XS = 40
def x_proc(i):
    rg, c = divmod(i, 4)
    b = xr(rg, c); s = XS + 4 * rg; q = s + 2
    o = []
    for d in range(4):
        o.append(f'v_lshlrev_b32 v{b+2*d}, 16, v{b+4+d}')
        o.append(f'v_and_b32 v{b+2*d+1}, 0xffff0000, v{b+4+d}')
    for d in range(4):
        x = v(b + 2*d, 2)
        if c == 0 and d == 0: o.append(f'v_pk_mul_f32 {v(q,2)}, {x}, {x}')
        else:
            o.append(f'v_pk_add_f32 {v(s,2)}, ' + (v(b, 2) if (c == 0 and d == 1) else v(s, 2)) + f', {x}')
            o.append(f'v_pk_fma_f32 {v(q,2)}, {x}, {x}, {v(q,2)}')
    return o
def x_fin(rg):
    s = XS + 4 * rg; q = s + 2
    o = [f'v_add_f32 v{s}, v{s}, v{s+1}', f'v_add_f32 v{q}, v{q}, v{q+1}']
    for rot in (8, 4, 2, 1):
        o += [f'v_add_f32_dpp v{r}, v{r}, v{r} row_ror:{rot} row_mask:0xf bank_mask:0xf' for r in (s, q)]
    o += [f'v_mul_f32 v{s+1}, {f2u(-1.0/512):#x}, v{s}', f'v_fmamk_f32 v{q}, v{q}, {f2u(1.0/512):#x}, v95',
          f'v_fma_f32 v{q}, -v{s+1}, v{s+1}, v{q}', f'v_max_f32 v{q}, v95, v{q}', f'v_rsq_f32 v{s}, v{q}', f'v_mul_f32 v{s+1}, v{s+1}, v{s}']
    n = []
    for c in range(4):
        for d in range(4):
            x = v(xr(rg, c) + 2*d, 2)
            n.append(f'v_pk_fma_f32 {x}, {x}, {v(s,2)}, {v(s,2)} op_sel:[0,0,1] op_sel_hi:[1,0,1]')
    return o, n

def dma_setup():
    return [
        f'v_and_b32 v4, 16, v{vL}', f'v_lshlrev_b32 v4, 1, v4', f'v_xor_b32 v4, v4, v{vL16}',
        f's_and_b32 {sT0}, {sW}, 1', f's_lshl_b32 {sT0}, {sT0}, 6', f'v_xor_b32 v4, {sT0}, v4', f'v_and_b32 v4, 0x70, v4',
        f's_lshl_b32 {sT1}, {sHQ}, 7', f'v_add_u32 v4, {sT1}, v4',
        f'v_lshrrev_b32 v5, 3, v0',
        f'v_mul_u32_u24 v{vWQ}, 3072, v5', f'v_add_u32 v{vWQ}, v{vWQ}, v4',
        f'v_lshl_add_u32 v{vWO}, v5, 10, v4',
        f's_mul_i32 {sM3}, {sW}, 3072', f's_lshl_b32 {sM1}, {sW}, 10',
    ]

def wq_issue(ks):
    g = []
    for p in range(3):
        ld = (f'buffer_load_dwordx4 v{vWQ}, {sWQ}, {sD} offen offset:{1024*p} lds', f'ks{ks}')
        g.append([f's_add_u32 m0, {sM3}, {(ks&7)*12288}', smov(sD, ks*32*3072), ld] if p == 0 else [ld])
    return g

def tr_base(dst, piece, gstride, tmp=4):
    return [
        f'v_lshrrev_b32 v{tmp}, 4, v{vL}', f'v_mul_u32_u24 v{dst}, {gstride}, v{tmp}',
        f'v_bfe_u32 v{tmp}, v{vL}, 2, 2', f'v_lshl_add_u32 v{dst}, v{tmp}, 7, v{dst}',
        f'v_bfe_u32 v{tmp}, v{vL}, 3, 2', f'v_xor_b32 v{tmp}, {piece}, v{tmp}', f'v_lshl_add_u32 v{dst}, v{tmp}, 5, v{dst}',
        f'v_and_b32 v{tmp}, 3, v{vL}', f'v_lshl_add_u32 v{dst}, v{tmp}, 3, v{dst}']

def wq_read(ks):
    sl = ks & 7
    return [f'ds_read_b64_tr_b16 {a_(12*ks+4*p+2*hr,2)}, v{vTR+(sl>>2)} offset:{(sl&3)*12288 + p*1024 + hr*512}' for p in range(3) for hr in range(2)]

def wo_issue(i):
    return [f's_add_u32 m0, {sM1}, {RA + i*4096}', smov(sD, i*32768), (f'buffer_load_dwordx4 v{vWO}, {sWO}, {sD} offen lds', 'wo')]

def b_setup():
    o = tr_base(vTR, sW, 3072) + [f'v_add_u32 v{vTR+1}, {48*K}, v{vTR}']
    o += [f'v_bfe_u32 v4, v{vL}, 2, 2', f'v_mul_u32_u24 v5, {5*1024}, v4', f'v_and_b32 v4, 1, v4', f'v_mul_u32_u24 v4, 12, v4',
          f'v_and_b32 v14, 3, v{vL}', f'v_xor_b32 v4, v4, v14', f'v_lshl_add_u32 v5, v14, 8, v5', f'v_add_u32 v5, {HF}, v5',
          ]
    for rg in range(5):
        d = vHW + rg
        o += [f'v_lshrrev_b32 v15, 4, v{d}', f'v_and_b32 v{d}, 15, v{d}', f'v_xor_b32 v{d}, v{d}, v4',
              f'v_lshl_add_u32 v{d}, v{d}, 4, v5', f'v_lshl_add_u32 v{d}, v15, 10, v{d}']
    o += [f'v_and_b32 v{vGSA}, 0xf0, v{vL16}', f'v_add_u32 v{vGSA}, {GS}, v{vGSA}']
    o += [f'v_lshrrev_b32 v4, 4, v{vL}', f'v_xor_b32 v5, v4, v{vL}', f'v_and_b32 v5, 15, v5', f'v_lshlrev_b32 v5, 4, v5',
          f'v_lshl_add_u32 v5, v4, 8, v5', f'v_add_u32 v{vHR}, {HF}, v5', f'v_xor_b32 v{vHR+1}, {12*16}, v{vHR}']
    o += [f'v_lshrrev_b32 v4, 3, v{vL}', f'v_lshlrev_b32 v{vW2}, 10, v4', f'v_and_b32 v4, 16, v{vL}', f'v_lshlrev_b32 v4, 2, v4',
          f'v_xor_b32 v4, v4, v{vL16}', f'v_and_b32 v4, 0x70, v4', f's_lshl_b32 {sT0}, {sHQ}, 7', f's_mul_i32 {sT1}, {sW}, {352*1024}',
          f's_add_u32 {sT0}, {sT0}, {sT1}', f'v_add3_u32 v{vW2}, v{vW2}, v4, {sT0}',
          f's_mul_i32 {sM2}, {sW}, {15*K}']
    o += [f'v_lshrrev_b32 v4, 5, v{vL}', f'v_lshlrev_b32 v{vW2R}, 9, v4', f'v_bfe_u32 v4, v{vL}, 2, 2', f'v_lshl_add_u32 v{vW2R}, v4, 7, v{vW2R}',
          f'v_bfe_u32 v4, v{vL}, 3, 1', f's_and_b32 {sT0}, {sW}, 1', f'v_xor_b32 v4, {sT0}, v4', f'v_lshl_add_u32 v{vW2R}, v4, 6, v{vW2R}',
          f'v_bfe_u32 v4, v{vL}, 4, 1', f'v_lshl_add_u32 v{vW2R}, v4, 5, v{vW2R}', f'v_and_b32 v4, 3, v{vL}', f'v_lshl_add_u32 v{vW2R}, v4, 3, v{vW2R}',
          f'v_add_u32 v{vW2R}, {sM2}, v{vW2R}', f'v_xor_b32 v{vW2R+1}, 64, v{vW2R}']
    o += [f'v_lshrrev_b32 v4, 2, v0', f'v_mul_u32_u24 v{vW1}, 2752, v4', f'v_and_b32 v4, 0x30, v{vL16}', f's_mul_i32 {sT0}, {sR}, 192',
          f'v_add3_u32 v{vW1}, v{vW1}, v4, {sT0}']
    o += [f's_lshl_b32 {sT0}, {sGRP}, 11', f's_add_u32 {sT0}, {sT0}, {FLAGS}', f'v_lshl_add_u32 v{vFO}, v{vL}, 3, {sT0}']
    return o

def tag_fix(): return [f's_add_u32 s44, s44, 0x7f4a7c15', f's_addc_u32 s45, s45, 0x9e3779b9']
def hello():
    return [f's_getreg_b32 {sXCC}, hwreg(HW_REG_XCC_ID)', f's_and_b32 {sXCC}, {sXCC}, 15',
            f's_lshl_b32 {sT0}, {sGRP}, 4', f's_add_u32 {sT0}, {sT0}, {sR}', f's_lshl_b32 {sT0}, {sT0}, 4', f's_add_u32 {sT0}, {sT0}, {HELLO}',
            f'v_mov_b32 v32, {sXCC}', f'v_mov_b32 v33, 0', f'v_mov_b32 v34, s44', f'v_mov_b32 v35, s45',
            f'v_lshlrev_b32 v36, 24, v0',
            f'buffer_store_dwordx4 v[32:35], v36, {sWS}, {sT0} offen sc1']

def check_loop(loads, cmps):
    L, D = A.uniq('chk'), A.uniq('ok')
    I(smov(sCNT, SPIN))
    A.waitvm('poll')
    A.settle()
    A.label(L)
    R(cmps)
    I(f's_cbranch_scc0 {D}')
    A.cond = L
    I(f's_sub_u32 {sCNT}, {sCNT}, 1')
    I(f's_cbranch_scc1 {D}')
    R(loads)
    A.vm0()
    I(f's_branch {L}')
    A.cond = None
    A.label(D)

vPD = 4
def poll_load(phase): return (f'buffer_load_dwordx2 v[4:5], v{vFO}, {sWS}, 0 offen offset:{phase*512} sc1', 'poll')
def poll_check(phase, mask):
    check_loop([poll_load(phase)], [f'v_cmp_ne_u64 vcc, {TAG}, v[4:5]', f's_and_b64 vcc, vcc, {mask}'])

def pub_setup():
    return [f's_lshl_b32 {sT0}, {sR}, 2', f's_add_u32 {sT0}, {sT0}, {sW}', f'v_cmp_eq_u32 vcc, {sT0}, v{vL}',
            f'v_mov_b32 v{vFS}, {OOB:#x}', f'v_mov_b32 v{vTAG}, s44', f'v_cndmask_b32 v{vFS}, v{vFS}, v{vFO}, vcc', f'v_mov_b32 v{vTAG+1}, s45']

slow_blocks = []
def publish(body, phase, bg=()):
    S, J = A.uniq('slow'), A.uniq('join')
    I(f's_cmp_eq_u32 {sFAST}, 0')
    A.settle()
    I(f's_cbranch_scc1 {S}')
    def emit(bits):
        R([((o.replace('@', bits), 'pub') if '@' in o else o) for o in body])
        R(list(bg))
        A.waitvm('pub')
        I(f'buffer_store_dwordx2 {v(vTAG,2)}, v{vFS}, {sWS}, 0 offen offset:{phase*512}{bits}')
    emit('')
    A.label(J)
    def slow():
        A.label(S)
        A.vm0(); A.lg0(force=True)
        emit(' sc1')
        A.settle()
        I(f's_branch {J}')
    slow_blocks.append(slow)

def g1_load(): return [(f'buffer_load_dwordx4 {v(GA,4)}, v94, {sWS}, 0 offen sc1', 'poll')]
def g1_setup():
    return [f'v_lshrrev_b32 v93, 5, v0', f'v_lshlrev_b32 v93, 9, v93', f'v_and_b32 v94, 1, v0', f'v_lshl_add_u32 v93, v94, 8, v93',
            f'v_bfe_u32 v94, v0, 1, 4', f'v_lshl_add_u32 v93, v94, 4, v93', f'v_add_u32 v93, {GS}, v93',
            f'v_lshlrev_b32 v94, 4, v0', f'v_mov_b32 v95, {f2u(1e-5):#x}']
def g1_check():
    g = GA
    check_loop(g1_load(), [f'v_cmp_ne_u64 vcc, {TAG}, {v(g+2,2)}', f's_and_b64 vcc, vcc, vcc'])
    R([f'v_and_b32 v{g+3}, 0xffff0000, v{g+1}', f'v_lshlrev_b32 v{g+2}, 16, v{g+1}',
       f'v_and_b32 v{g+1}, 0xffff0000, v{g}', f'v_lshlrev_b32 v{g}, 16, v{g}',
       f'ds_write_b128 v93, {v(g,4)}'])
G2 = 136
def g2_setup():
    return [f'v_lshlrev_b32 v{G2+12}, 4, v0', f'v_and_b32 v{G2+13}, 0xf0, v{vL16}', f's_lshl_b32 {sG0}, {sGRP}, 8', f's_add_u32 {sG0}, {sG0}, {HELLO}',
            f'v_add_u32 v{G2+12}, 4096, v{G2+12}', smov(sG1, 4096),
            f'v_lshlrev_b32 v{G2+14}, 3, v0', f'v_add_u32 v{G2+14}, {MV}, v{G2+14}']
def g2_loads():
    g = G2
    return [(f'buffer_load_dwordx4 {v(g,4)}, v{g+12}, {sWS}, 0 offen sc1', 'poll'),
            (f'buffer_load_dwordx4 {v(g+4,4)}, v{g+12}, {sWS}, {sG1} offen sc1', 'poll'),
            (f'buffer_load_dwordx4 {v(g+8,4)}, v{g+13}, {sWS}, {sG0} offen sc1', 'poll')]
def g2_check():
    g = G2
    check_loop(g2_loads(), [
        f'v_cmp_ne_u64 vcc, {TAG}, {v(g+2,2)}', f'v_cmp_ne_u64 {mP}, {TAG}, {v(g+6,2)}', f'v_cmp_ne_u64 {mC0}, {TAG}, {v(g+10,2)}',
        f's_or_b64 vcc, vcc, {mP}', f's_or_b64 vcc, vcc, {mC0}'])
    R([f'ds_write_b64 v{g+14}, {v(g,2)}', f'ds_write_b64 v{g+14}, {v(g+4,2)} offset:2048',
       f'v_cmp_ne_u32 vcc, {sXCC}, v{g+8}', f's_cmp_eq_u64 vcc, 0',
       f's_cselect_b32 {sFAST}, ' + ('0' if opt('slow') else '1') + ', 0'])

def h_gsread(c):
    return [f'ds_read_b128 {v(GSR+8*sec+4*half,4)}, v{vGSA} offset:{sec*2048+c*512+half*256}' for half in range(2) for sec in range(2)]
def h_conv(c, pk):
    o = []
    for rg in range(5):
        b = xr(rg, c)
        for d in range(4):
            if pk:
                o.append(f'v_pk_fma_f32 {v(b+2*d,2)}, {v(b+2*d,2)}, {v(GSR+8+2*d,2)}, {v(GSR+2*d,2)}')
            else:
                for e in range(2): o.append(f'v_fma_f32 v{b+2*d+e}, v{b+2*d+e}, v{GSR+8+2*d+e}, v{GSR+2*d+e}')
        for d in range(4):
            o.append(f'v_cvt_pk_bf16_f32 v{b+d}, v{b+2*d}, v{b+2*d+1}')
        o.append(f'ds_write_b128 v{vHW+rg}, {v(b,4)} offset:{(c&1)*20480}')
    return o

ACC = 24
def accQ(T): return ACC + 4 * (T - 1)
def accK(T): return ACC + 16 + 4 * T
def accV(T): return ACC + 36 + 4 * T
HFR = 96
def h_read(ks):
    return [f'ds_read_b128 {v(HFR+20*(ks&1)+4*T,4)}, v{vHR+(ks&1)} offset:{((ks&7)*5+T)*1024}' for T in range(5)]
def qkv_mfma(ks):
    o = []
    for T in range(5):
        h = v(HFR + 20 * (ks & 1) + 4 * T, 4)
        def m(d, x, y): o.append(f'v_mfma_f32_16x16x32_bf16 {v(d,4)}, {x}, {y}, ' + ('0' if ks == 0 else v(d, 4)))
        m(accK(T), a_(12*ks+4, 4), h)
        m(accV(T), h, a_(12*ks+8, 4))
        if T: m(accQ(T), a_(12*ks, 4), h)
    return o

AUA, AGA, AG2, AGB = 192, 224, 232, 248
def modvec_read():
    o = [f's_lshl_b32 {sT0}, {sHQ}, 7', f's_add_u32 {sT0}, {sT0}, {MV}', f'v_lshrrev_b32 v4, 4, v{vL}', f'v_lshl_add_u32 v4, v4, 3, {sT0}']
    for j in range(4):
        o.append(f'ds_read_b64 {a_(AGA+2*j,2)}, v4 offset:{32*j}')
        o.append(f'ds_read_b64 {a_(AG2+2*j,2)}, v4 offset:{2048+32*j}')
    o += [f's_and_b32 {sT1}, {sW}, 1', f's_lshl_b32 {sT1}, {sT1}, 6', f's_add_u32 {sT0}, {sT0}, {sT1}',
          f'v_lshrrev_b32 v5, 5, v{vL}', f'v_lshl_add_u32 v4, v5, 3, {sT0}']
    for q in range(4):
        o.append(f'ds_read_b64 {a_(AGB+2*q,2)}, v4 offset:{3072+16*q}')
    o += [f's_lshl_b32 {sT0}, {sW}, 8', f's_add_u32 {sT0}, {sT0}, {MV+1024}', f'v_lshl_add_u32 v5, v5, 3, {sT0}',
          f'v_and_b32 v4, 4, v{vL}', f'v_lshl_add_u32 v4, v4, 8, v5']
    for i in range(8):
        for hr in range(2):
            o.append(f'ds_read_b64 {a_(AUA+4*i+2*hr,2)}, v4 offset:{(i>>1)*64+(i&1)*16+hr*32}')
    return o

MK, ONE, BIAS = 216, 220, 224
vOA = 7
def att_setup():
    o = [f'v_and_b32 v4, 1, v{vL}', f'v_cmp_eq_u32 {mP}, 1, v4', f'v_lshrrev_b32 v5, 4, v{vL}', f'v_lshl_add_u32 v5, v5, 2, v4',
         f'v_and_b32 v4, 15, v{vL}', f'v_cmp_le_u32 {mC0}, v5, v4', f'v_add_u32 v5, 2, v5', f'v_cmp_le_u32 {mC1}, v5, v4',
         f'v_mov_b32 v4, 0xffff', f'v_mov_b32 v5, 0xffff0000', f'v_cndmask_b32 v4, v4, v5, {mP}',
         f'v_cndmask_b32 v{MK+0}, v4, 0, {mC0}', f'v_cndmask_b32 v{MK+1}, v4, 0, {mC1}',
         f'v_cndmask_b32 v{MK+2}, 0, v4, {mC0}', f'v_cndmask_b32 v{MK+3}, 0, v4, {mC1}']
    o += [f'v_mov_b32 v{ONE+i}, 0x3f803f80' for i in range(4)]
    o += [[f's_cmp_eq_u32 {sRB64}, 0', f's_cselect_b32 {sT0}, {f2u(-4e9):#x}, 0']]
    o += [f'v_mov_b32 v{BIAS+i}, {sT0}' for i in range(4)]
    o += [f's_mul_i32 {sT0}, {sRB64}, {2*86*1024}', f's_lshl_b32 {sT1}, {sHQ}, 11', f's_add_u32 {sT0}, {sT0}, {sT1}', f's_lshl_b32 {sT1}, {sW}, 9',
          f's_add_u32 {sT0}, {sT0}, {sT1}', f's_add_u32 {sS0}, {sT0}, {HB}', f's_add_u32 {sS1}, {sS0}, {86*1024}',
          f'v_bfe_u32 v5, v{vL}, 4, 1', f'v_lshlrev_b32 v5, 14, v5', f'v_lshrrev_b32 v4, 5, v{vL}', f'v_lshl_add_u32 v5, v4, 8, v5',
          f'v_and_b32 v4, 0xf0, v{vL16}', f'v_add_u32 v{vOA}, v5, v4', smov(sS2, f2u(0.25 * LOG2E))]
    return o

def attention():
    QB, KB, VB = 136, 144, 154
    SC, SP = 164, 180
    LG, MX = 196, 204
    PB, OA, SM = 164, 180, 228
    OS = 208
    o = []
    def cvt(d, s): return [f'v_cvt_pk_bf16_f32 v{d}, v{s}, v{s+1}', f'v_cvt_pk_bf16_f32 v{d+1}, v{s+2}, v{s+3}']
    o += cvt(KB, accK(0))
    for T in range(1, 5): o += cvt(KB + 2*T, accK(T)) + cvt(QB + 2*(T-1), accQ(T))
    for T in range(1, 5):
        t = T - 1
        o.append(f'v_mfma_f32_16x16x16_bf16 {v(SC+4*t,4)}, {v(KB+2*T,2)}, {v(QB+2*t,2)}, 0')
        if T == 1: o += cvt(VB, accV(0))
        o.append(f'v_mfma_f32_16x16x16_bf16 {v(SP+4*t,4)}, {v(KB+2*t,2)}, {v(QB+2*t,2)}, ' + (v(BIAS, 4) if T == 1 else '0'))
        o += cvt(VB + 2*T, accV(T))
    for t in range(4):
        for e in range(2):
            o.append(f'v_cndmask_b32 v{SC+4*t+2*e}, v{SC+4*t+2*e}, v{SC+4*t+2*e+1}, {mP}')
            o.append(f'v_cndmask_b32 v{SP+4*t+2*e}, v{SP+4*t+2*e}, v{SP+4*t+2*e+1}, {mP}')
            o.append(f'v_cndmask_b32 v{LG+2*t+e}, v{SP+4*t+2*e}, v{SC+4*t+2*e}, {mC1 if e else mC0}')
        o.append(f'v_max_f32 v{MX+t}, v{LG+2*t}, v{LG+2*t+1}')
    cs = 0.25 * LOG2E
    o += [f'v_permlane16_swap_b32 v{MX}, v{MX+1}', f'v_permlane16_swap_b32 v{MX+2}, v{MX+3}',
          f'v_max_f32 v{MX}, v{MX}, v{MX+1}', f'v_max_f32 v{MX+2}, v{MX+2}, v{MX+3}',
          f'v_permlane32_swap_b32 v{MX}, v{MX+2}', f'v_max_f32 v{MX}, v{MX}, v{MX+2}',
          f'v_mul_f32 v{MX+2}, {f2u(-cs):#x}, v{MX}', f'v_mul_f32 v{MX}, {f2u(-cs):#x}, v{MX}',
          f'v_permlane32_swap_b32 v{MX}, v{MX+2}', f'v_mov_b32 v{MX+1}, v{MX}', f'v_mov_b32 v{MX+3}, v{MX+2}',
          f'v_permlane16_swap_b32 v{MX}, v{MX+1}', f'v_permlane16_swap_b32 v{MX+2}, v{MX+3}']
    for t in range(4):
        for e in range(2): o.append(f'v_fma_f32 v{LG+2*t+e}, v{LG+2*t+e}, {sS2}, v{MX+t}')
    for t in range(4):
        for e in range(2): o.append(f'v_exp_f32 v{LG+2*t+e}, v{LG+2*t+e}')
    def pv(u): return [f'v_mfma_f32_16x16x32_bf16 {v(SM+4*u,4)}, {v(ONE,4)}, {v(PB+4*u,4)}, 0',
                       f'v_mfma_f32_16x16x32_bf16 {v(OA+4*u,4)}, {v(VB+2*u,4)}, {v(PB+4*u,4)}, 0']
    for t in range(4):
        p = [f'v_cvt_pk_bf16_f32 v{LG+2*t+e}, v{LG+2*t+e}, v{LG+2*t+e}' for e in range(2)]
        p += [f'v_and_b32 v{PB+4*t+i}, v{MK+i}, v{LG+2*t+(i&1)}' for i in range(4)]
        if t:
            m = pv(t - 1)
            p = p[:2] + [m[0]] + p[2:4] + [m[1]] + p[4:]
        o += p
    def fin(t): return [f'v_rcp_f32 v{SM+4*t}, v{SM+4*t}'] + [f'v_mul_f32 v{OA+4*t+i}, v{OA+4*t+i}, v{SM+4*t}' for i in range(4)] + cvt(OS + 2*t, OA + 4*t)
    m = pv(3)
    f0 = fin(0)
    o += f0[:2] + [m[0]] + f0[2:4] + [m[1]] + f0[4:] + fin(1)
    tail = [f'v_permlane16_swap_b32 v{OS+i}, v{OS+2+i}' for i in range(2)]
    tail += [f'buffer_store_dwordx4 {v(OS,4)}, v{vOA}, {sWS}, {sS0} offen@']
    tail += fin(2) + fin(3)
    tail += [f'v_permlane16_swap_b32 v{OS+4+i}, v{OS+6+i}' for i in range(2)]
    tail += [f'buffer_store_dwordx4 {v(OS+4,4)}, v{vOA}, {sWS}, {sS1} offen@']
    return o, tail

def w1_issue(i):
    return [[f's_add_u32 m0, {sM1}, {RB + i*12288 + t*4096 - 64*t}'] + ([smov(sD, i*64*2752)] if t == 0 else []) +
            [(f'buffer_load_dwordx4 v{vW1}, {sW1}, {sD} offen offset:{64*t} lds', 'w1')] for t in range(3)]

X1 = 24
CG = 40
CAC = 72
CO = 96
CW = 160
vC = 10
vYA, vSA = 14, 15
XC = 88
def c_xload():
    o = [f's_lshl_b32 {sT2}, {sRB64}, 16', f's_lshl_b32 {sT3}, {sW}, 14', f's_add_u32 {sT2}, {sT2}, {sT3}',
         f's_lshl_b32 {sLB}, {sRB64}, 1', f's_lshr_b32 {sT3}, {sW}, 1', f's_add_u32 {sLB}, {sLB}, {sT3}', f's_mul_i32 {sLB}, {sLB}, {86*1024}',
         f's_and_b32 {sT3}, {sW}, 1', f's_lshl_b32 {sT3}, {sT3}, 14', f's_add_u32 {sLB}, {sLB}, {sT3}', f's_add_u32 {sLB}, {sLB}, {HB}',
         f's_lshl_b32 {sT3}, {sHQ}, 7', f's_add_u32 {sT2}, {sT2}, {sT3}',
         f'v_and_b32 v80, 15, v{vL}', f'v_lshlrev_b32 v80, 10, v80', f'v_lshrrev_b32 v81, 4, v{vL}', f'v_lshl_add_u32 v80, v81, 3, v80']
    o += [f'buffer_load_dwordx2 {v(XC+2*j,2)}, v80, {sX}, {sT2} offen offset:{32*j}' for j in range(4)]
    return o

def c_pre():
    o = tr_base(vC, 0, 1024, tmp=16)
    o += [f'v_xor_b32 v{vC+j}, {32*j}, v{vC}' for j in range(1, 4)]
    o += cat(*[c_rd(k) for k in range(NCW-1)])
    for k in range(16):
        o += [f'v_accvgpr_read_b32 v{CG+2*k+1}, a{AGA+k}', f'v_lshlrev_b32 v{CG+2*k}, 16, v{CG+2*k+1}', f'v_and_b32 v{CG+2*k+1}, 0xffff0000, v{CG+2*k+1}']
    for k in range(8):
        o += [f'v_lshlrev_b32 v{X1+2*k}, 16, v{XC+k}', f'v_and_b32 v{X1+2*k+1}, 0xffff0000, v{XC+k}']
    o += [f's_lshl_b32 {sT0}, {sRB64}, 16', f's_lshr_b32 {sT1}, {sW}, 1', f's_lshl_b32 {sT1}, {sT1}, 15', f's_add_u32 {sT0}, {sT0}, {sT1}',
          f's_lshl_b32 {sT1}, {sHQ}, 12', f's_add_u32 {sT0}, {sT0}, {sT1}', f's_and_b32 {sT1}, {sW}, 1', f's_lshl_b32 {sT1}, {sT1}, 8',
          f's_add_u32 {sS0}, {sT0}, {sT1}',
          f'v_lshrrev_b32 v16, 4, v{vL}', f'v_and_b32 v{vYA}, 0xf0, v{vL16}', f'v_lshl_add_u32 v{vYA}, v16, 9, v{vYA}',
          f's_lshl_b32 {sT0}, {sRB64}, 12', f's_lshl_b32 {sT1}, {sW}, 10', f's_add_u32 {sT0}, {sT0}, {sT1}', f's_lshl_b32 {sT1}, {sHQ}, 3',
          f's_add_u32 {sT0}, {sT0}, {sT1}', f's_add_u32 {sS1}, {sT0}, {STATS}',
          f'v_and_b32 v{vSA}, 15, v{vL}', f'v_lshlrev_b32 v{vSA}, 6, v{vSA}', f'v_and_b32 v16, 1, v16', f'v_lshl_add_u32 v{vSA}, v16, 2, v{vSA}',
          [f's_bitcmp1_b32 {sRB64}, 0', f's_cselect_b32 s62, 0, -1', f's_cselect_b32 s63, -1, 0']]
    return o

def frag_loads(dst, n, sreg, bump=None, srd=sWS):
    g = []
    for i in range(n):
        o = []
        if i and i % 4 == 0: o.append(f's_add_u32 {sreg}, {sreg}, ' + (bump if (bump and i == 20) else '4096'))
        o.append(f'buffer_load_dwordx4 {v(dst+4*i,4)}, v{vL16}, {srd}, {sreg} offen offset:{(i&3)*1024} sc1')
        g.append(o)
    return g

NCW = 4
def c_rd(ks):
    return [f'ds_read_b64_tr_b16 {v(CW+16*(ks%NCW)+4*j+2*hr,2)}, v{vC+j} offset:{RA+ks*4096+hr*512}' for j in range(4) for hr in range(2)]
def c_main(bg):
    ld = frag_loads(CO, 16, sLB) + bg
    LA = opt('cla', 8)
    R(ld[:LA])
    for ks in range(16):
        mm = [f'v_mfma_f32_16x16x32_bf16 {v(CAC+4*j,4)}, {v(CW+16*(ks%NCW)+4*j,4)}, {v(CO+4*ks,4)}, ' + ('0' if ks == 0 else v(CAC+4*j,4)) for j in range(4)]
        fill = (c_rd(ks+NCW-1) if ks + NCW - 1 < 16 else [])
        R(mm[:1])
        if ks + LA < len(ld): R(ld[ks+LA])
        R(fill[:2]); R(weave(mm[1:], fill[2:]))
    assert len(ld) <= 16 + LA

def c_epi():
    YT, YP = 96, 112
    o = []
    for h in range(2):
        ks = range(4*h, 4*h+4)
        o += [f'v_pk_fma_f32 {v(X1+2*k,2)}, {v(CAC+2*k,2)}, {v(CG+2*k,2)}, {v(X1+2*k,2)}' for k in ks]
        o += [f'v_pk_mul_f32 {v(YT+2*k,2)}, {v(X1+2*k,2)}, {v(CG+16+2*k,2)}' for k in ks]
        o += [f'v_cvt_pk_bf16_f32 v{YP+k}, v{YT+2*k}, v{YT+2*k+1}' for k in ks]
        o += [f'buffer_store_dwordx4 {v(YP+4*h,4)}, v{vYA}, {sOUT}, {sS0} offen offset:{2048*h}@']
    o += [f'v_pk_add_f32 v[120:121], {v(X1,2)}, {v(X1+2,2)}', f'v_pk_mul_f32 v[122:123], {v(X1,2)}, {v(X1,2)}']
    for k in range(1, 8):
        if k > 1: o.append(f'v_pk_add_f32 v[120:121], v[120:121], {v(X1+2*k,2)}')
        o.append(f'v_pk_fma_f32 v[122:123], {v(X1+2*k,2)}, {v(X1+2*k,2)}, v[122:123]')
    o += ['v_add_f32 v120, v120, v121', 'v_add_f32 v122, v122, v123', 'v_permlane16_swap_b32 v120, v122', 'v_add_f32 v120, v120, v122',
          'v_mov_b32 v122, v120', 'v_permlane32_swap_b32 v120, v122', 'v_add_f32 v120, v120, v122',
          f'buffer_store_dword v120, v{vSA}, {sWS}, {sS1} offen@']
    return o

W2R = [(0, 15), (15, 15), (30, 12), (42, 2)]
def w2_rebase(mul, add):
    return [[f's_mul_i32 {sT0}, {sW}, {mul}', f's_add_u32 {sT0}, {sT0}, {add}', f's_sub_u32 {sT1}, {sT0}, {sM2}', f's_mov_b32 {sM2}, {sT0}',
            f'v_add_u32 v{vW2R}, {sT1}, v{vW2R}', f'v_add_u32 v{vW2R+1}, {sT1}, v{vW2R+1}']]
def w2_issue(rnd, base=None):
    b0, n = W2R[rnd]
    return [[f's_add_u32 m0, {base or sM2}, {i*1024}', smov(sD, (b0+i)*8192), (f'buffer_load_dwordx4 v{vW2}, {sW2}, {sD} offen lds', f'w2_{rnd}')] for i in range(n)]
def w2_read(rnd):
    o = []
    b0, n = W2R[rnd]
    for i in range(n):
        s, hr = divmod(b0 + i, 2)
        for slot in range(2):
            o.append(f'ds_read_b64_tr_b16 {a_(8*s+4*slot+2*hr,2)}, v{vW2R+slot} offset:{i*1024}')
    return o

DAC, DW, DST, DY = 40, 88, 112, 128
vD = 10
vUT, vSB = 120, 123
vST = 16
def d_setup():
    o = [f'v_lshrrev_b32 v16, 5, v{vL}', f'v_lshlrev_b32 v{vD}, 8, v16', f'v_bfe_u32 v16, v{vL}, 2, 2', f'v_lshl_add_u32 v{vD}, v16, 6, v{vD}',
         f'v_bfe_u32 v16, v{vL}, 4, 1', f'v_lshl_add_u32 v{vD}, v16, 5, v{vD}', f'v_and_b32 v16, 3, v{vL}', f'v_lshl_add_u32 v{vD}, v16, 3, v{vD}',
         f'v_add_u32 v{vD}, {RB}, v{vD}', f'v_add_u32 v{vD+1}, {4*12288}, v{vD}',
         f's_mul_i32 {sT0}, {sW}, {2*12288}', f'v_add_u32 v13, {sT0}, v{vD}']
    return o
def d_setup2():
    return [
        f'v_and_b32 v{vST}, 31, v{vL}', f'v_lshlrev_b32 v{vST}, 6, v{vST}', f'v_and_b32 v17, 32, v{vL}', f'v_add_u32 v{vST}, v{vST}, v17',
        f's_lshl_b32 {sT0}, {sGRP}, 2', f's_add_u32 {sT0}, {sT0}, {sW}',
        f's_lshl_b32 {sLB2}, {sT0}, 11', f's_add_u32 {sLB2}, {sLB2}, {STATS}',
        f's_lshl_b32 {sLB}, {sT0}, 15',
        f's_mul_i32 {sT0}, {sT0}, {86*1024}', f's_mul_i32 {sT1}, {sR}, {6*1024}', f's_add_u32 {sT0}, {sT0}, {sT1}',
        f's_add_u32 {sS0}, {sT0}, {HB}', f's_add_u32 {sS1}, {sS0}, 2048', f's_add_u32 {sS2}, {sS0}, 4096',
        [f's_cmp_ge_u32 {sR}, 14', f's_cselect_b32 {sS1}, {OOB:#x}, {sS1}', f's_cselect_b32 {sS2}, {OOB:#x}, {sS2}'],
        [f's_cmp_eq_u32 {sR}, 15', f's_cselect_b32 {sS0}, {OOB:#x}, {sS0}'],
        smov(sT1, 0xcccccccc),
        [f's_bitcmp1_b32 {sW}, 0', f's_cselect_b32 {sT0}, {sT1}, 0x33333333'],
        [f's_bitcmp1_b32 {sW}, 1', f's_cselect_b32 s62, 0, {sT0}', f's_cselect_b32 s63, {sT0}, 0'],
        f's_mul_i32 {sT0}, {sW}, 768', f's_add_u32 {sT0}, {sT0}, {UT}', f'v_lshl_add_u32 v17, v{vL}, 2, {sT0}',
        f'v_lshlrev_b32 v7, 2, v{vL}', f'v_add_u32 v7, {UT}, v7',
    ]

def w1_rd(k16, buf, base=vD):
    return [f'ds_read_b64_tr_b16 {v(DW+12*buf+4*t+2*hr,2)}, v{base+(k16>>4)} offset:{((k16>>2)&3)*12288+t*4096+((k16>>1)&1)*2048+hr*1024+(k16&1)*512}' for t in range(3) for hr in range(2)]

def d_ut(extra):
    R(w1_rd(0, 0, 13))
    per = -(-len(extra) // 8)
    for i in range(8):
        mm = [f'v_mfma_f32_32x32x16_bf16 {v(DAC+16*t,16)}, {a_(AUA+4*i,4)}, {v(DW+12*(i&1)+4*t,4)}, ' + ('0' if i == 0 else v(DAC+16*t,16)) for t in range(3)]
        R(mweave(mm, (w1_rd(i+1, (i+1)&1, 13) if i < 7 else []) + extra[per*i:per*(i+1)]))
    R([f'ds_write_b32 v17, v{DAC+16*t} offset:{256*t}' for t in range(3)])
def d_ut2():
    o = [f'ds_read_b32 v{DAC+3*w+t}, v7 offset:{768*w+256*t}' for w in range(4) for t in range(3)]
    for t in range(3):
        o += [f'v_add_f32 v{DAC+t}, v{DAC+t}, v{DAC+3+t}', f'v_add_f32 v{DAC+6+t}, v{DAC+6+t}, v{DAC+9+t}', f'v_add_f32 v{vUT+t}, v{DAC+t}, v{DAC+6+t}']
    return o

def stats_load(dst, sreg):
    return [f'buffer_load_dwordx4 {v(dst,4)}, v{vST}, {sWS}, {sreg} offen sc1', f'buffer_load_dwordx4 {v(dst+4,4)}, v{vST}, {sWS}, {sreg} offen offset:16 sc1']

def stats_ops(d):
    o = []
    for e in range(2):
        o.append(f'v_add_f32 v{d+e}, v{d+e}, v{d+2+e}')
        o.append(f'v_add_f32 v{d+4+e}, v{d+4+e}, v{d+6+e}')
    for e in range(2): o.append(f'v_add_f32 v{d+2+e}, v{d+e}, v{d+4+e}')
    for e in range(2): o.append(f'v_add_f32 v{d+e}, v{d+e}, v{d+4+e}')
    o.append(f'v_mov_b32 v{d+4}, {f2u(1e-5):#x}')
    for e in range(2): o.append(f'v_permlane32_swap_b32 v{d+e}, v{d+2+e}')
    for e in range(2): o.append(f'v_add_f32 v{d+e}, v{d+e}, v{d+2+e}')
    o.append(f'v_mul_f32 v{d}, {f2u(1/512):#x}, v{d}')
    o.append(f'v_fmac_f32 v{d+4}, {f2u(1/512):#x}, v{d+1}')
    o.append(f'v_fma_f32 v{d+1}, -v{d}, v{d}, v{d+4}')
    o.append(f'v_max_f32 v{d+1}, {f2u(1e-5):#x}, v{d+1}')
    return o

def d_main():
    ld = frag_loads(DY, 32, sLB, srd=sOUT)
    LA = opt('dla', 7)
    R(ld[:2]); R(stats_load(DST, sLB2)); R(ld[2:LA])
    R(w1_rd(0, 0))
    w2r = w2_read(0)
    A.waitvm('w2_0')
    R(w2r[:opt('dpre', 16)]); w2r = w2r[opt('dpre', 16):]
    so = stats_ops(DST) + [f'v_sqrt_f32 v{DST+1}, v{DST+1}', f'v_cmp_gt_u32 vcc, 32, v{vL}', f'v_sub_f32 v{DST}, 0, v{DST}',
                           f'v_cndmask_b32 v{vSB}, v{DST}, v{DST+1}, vcc']
    extra = {0: w2r[:7], 1: w2r[7:], 2: so[:10], 3: so[10:], 4: [f's_mul_i32 {sP}, {sW}, {12*K}', f's_add_u32 {sP}, {sP}, {RB}']}
    bg = w2_issue(1) + w2_issue(2, sP)
    q = ld[LA:] + bg[:opt('nd', 10)]
    rest = bg[opt('nd', 10):]
    PER = opt('dper', 75)
    t = 0; nxt = 0
    for k in range(32):
        mm = [f'v_mfma_f32_32x32x16_bf16 {v(DAC+16*t,16)}, {v(DW+12*(k&1)+4*t,4)}, {v(DY+4*k,4)}, ' + ('0' if k == 0 else v(DAC+16*t,16)) for t in range(3)]
        fill = (w1_rd(k+1, (k+1)&1) if k < 31 else []) + extra.get(k, [])
        t += 96
        lds = []
        while q and nxt < t:
            lds.append(q.pop(0)); nxt += PER
        fill = lds[:1] + fill + lds[1:]
        R(mweave(mm, fill))
        if k == 18: I('s_barrier')
    assert not q
    for t in range(3):
        I(f'v_mfma_f32_32x32x2_f32 {v(DAC+16*t,16)}, v{vUT+t}, v{vSB}, {v(DAC+16*t,16)}')
    return rest

def d_epi():
    HP = 128
    o = []
    for t in range(3):
        for s in range(2):
            ks = range(4*s, 4*s+4)
            o += [f'v_cvt_pk_bf16_f32 v{HP+8*t+k}, v{DAC+16*t+2*k}, v{DAC+16*t+2*k+1}' for k in ks]
            o += [f'v_pk_max_i16 v{HP+8*t+k}, v{HP+8*t+k}, 0' for k in ks]
            o.append(f'buffer_store_dwordx4 {v(HP+8*t+4*s,4)}, v{vL16}, {sWS}, {[sS0,sS1,sS2][t]} offen offset:{1024*s}@')
    return o

EH, EAC, XE, EST, EG = 80, 176, 40, 56, 64
def e_pre1():
    o = [f's_lshl_b32 {sT0}, {sRB64}, 1', f's_lshr_b32 {sT1}, {sW}, 1', f's_add_u32 {sT0}, {sT0}, {sT1}',
         f's_lshl_b32 {sT2}, {sT0}, 11', f's_add_u32 {sT2}, {sT2}, {STATS}'] + stats_load(EST, sT2)
    o += [f's_xor_b32 {sT1}, {sT0}, 1', f's_mul_i32 {sLB}, {sT1}, {86*1024}', f's_mul_i32 {sLB2}, {sT0}, {86*1024}',
          f's_mul_i32 {sT1}, {sW}, {22*1024}', f's_add_u32 {sT1}, {sT1}, {HB}', f's_add_u32 {sLB}, {sLB}, {sT1}', f's_add_u32 {sLB2}, {sLB2}, {sT1}',
          smov(sS2, 4096), [f's_cmp_eq_u32 {sW}, 3', f's_cselect_b32 {sS2}, {OOB:#x}, {sS2}']]
    o += [f's_lshl_b32 {sT0}, {sW}, 4', f'v_and_b32 v10, 15, v{vL}', f'v_add_u32 v10, {sT0}, v10', f'v_mul_u32_u24 v10, 272, v10',
          f'v_and_b32 v11, 0x30, v{vL}', f'v_add_u32 v10, v10, v11', f'v_add_u32 v10, {XT}, v10']
    o += [f'ds_write_b128 v10, {v(X1+4*j,4)} offset:{64*j}' for j in range(4)]
    o += [f's_lshr_b32 {sT0}, {sW}, 1', f's_mul_i32 {sT0}, {sT0}, {32*272}', f's_and_b32 {sT1}, {sW}, 1', f's_lshl_b32 {sT1}, {sT1}, 7',
          f's_add_u32 {sT0}, {sT0}, {sT1}', f's_add_u32 {sT0}, {sT0}, {XT}',
          f'v_and_b32 v10, 31, v{vL}', f'v_mul_u32_u24 v10, 272, v10', f'v_lshrrev_b32 v11, 5, v{vL}', f'v_lshlrev_b32 v11, 4, v11',
          f'v_add3_u32 v10, v10, v11, {sT0}']
    o += [f's_mul_i32 {sT0}, {sW}, 11', f'v_lshrrev_b32 v12, 2, v{vL}', f'v_mul_u32_u24 v12, 3, v12', f'v_add_u32 v13, 2, v12',
          f'v_cmp_le_u32 {mC0}, {sT0}, v13', f's_add_u32 {sT0}, {sT0}, 10', f's_min_u32 {sT0}, {sT0}, 42', f'v_cmp_ge_u32 {mC1}, {sT0}, v12',
          f'v_bfe_u32 v12, v{vL}, 1, 1', f's_and_b32 {sT0}, {sRB64}, 1', f'v_cmp_eq_u32 {mP}, {sT0}, v12',
          f's_and_b64 {mC0}, {mC0}, {mC1}', f's_and_b64 {mC0}, {mC0}, {mP}']
    return o
def e_pre2():
    o = [f'ds_read_b128 {v(XE+4*q,4)}, v10 offset:{32*q}' for q in range(4)]
    for k in range(8):
        o += [f'v_accvgpr_read_b32 v{EG+2*k+1}, a{AGB+k}', f'v_lshlrev_b32 v{EG+2*k}, 16, v{EG+2*k+1}', f'v_and_b32 v{EG+2*k+1}, 0xffff0000, v{EG+2*k+1}']
    o += stats_ops(EST) + [f'v_rsq_f32 v{EST}, v{EST+1}']
    for rel in (1, 2, 3):
        o += [f's_xor_b32 {sT0}, {sW}, {rel}', f's_mul_i32 {sT0}, {sT0}, 12288', f's_add_u32 {sT0}, {sT0}, {EX + (rel-1)*4096}', f'v_add_u32 v{10+rel}, {sT0}, v{vL16}']
    o += [f'v_mul_f32 v{EG+k}, v{EST}, v{EG+k}' for k in range(16)]
    o += [f's_mul_i32 {sT0}, {sW}, 12288', f's_add_u32 {sT0}, {sT0}, {EX}', f'v_add_u32 v14, {sT0}, v{vL16}']
    o += [f's_lshl_b32 {sT0}, {sRB64}, 16', f's_lshr_b32 {sT1}, {sW}, 1', f's_lshl_b32 {sT1}, {sT1}, 15', f's_add_u32 {sT0}, {sT0}, {sT1}',
          f's_lshl_b32 {sT1}, {sHQ}, 7', f's_add_u32 {sT0}, {sT0}, {sT1}', f's_and_b32 {sT1}, {sW}, 1', f's_lshl_b32 {sT1}, {sT1}, 6',
          f's_add_u32 {sS0}, {sT0}, {sT1}',
          f'v_and_b32 v15, 31, v{vL}', f'v_lshlrev_b32 v15, 10, v15', f'v_lshrrev_b32 v16, 5, v{vL}', f'v_lshl_add_u32 v15, v16, 4, v15']
    return o

def e_main(pre):
    ld = frag_loads(EH, 22, sLB, sS2) + frag_loads(EH + 88, 22, sLB2, sS2)
    LA = opt('ela', 8)
    R(ld[:LA])
    R(pre)
    def mm(tile, slot, rel, i):
        d = a_(EAC + 16*tile, 16) if tile else v(X1, 16)
        return f'v_mfma_f32_32x32x16_bf16 {d}, {a_(8*i+4*slot,4)}, {v(EH+88*rel+4*i,4)}, ' + ('0' if i == 0 else d)
    def wr(tile): return [f'ds_write_b128 v{10+tile}, {a_(EAC+16*tile+4*q,4)} offset:{1024*q}' for q in range(4)]
    w23 = wr(2) + wr(3)
    for j in range(44):
        rel, i = divmod(j, 22)
        if j + LA < 44: R(ld[j+LA])
        m = [mm(2, 0, 0, i), mm(3, 1, 0, i)] if rel == 0 else [mm(1, 1, 1, i), mm(0, 0, 1, i)]
        if rel == 1 and i == 2: m.append('s_barrier')
        if rel == 1 and i >= 6 and w23: m.insert(1, w23.pop(0))
        R(m)
    R(wr(1))
    A.barrier()
    for rel in range(3):
        for q in range(4): I(f'ds_read_b128 {v(EH+16+16*rel+4*q,4)}, v14 offset:{4096*rel+1024*q}')
    for rel in range(3):
        for k in range(8): I(f'v_pk_add_f32 {v(X1+2*k,2)}, {v(X1+2*k,2)}, {v(EH+16+16*rel+2*k,2)}')
    for pr in range(2):
        ks = range(4*pr, 4*pr+4)
        for k in ks: I(f'v_pk_fma_f32 {v(X1+2*k,2)}, {v(X1+2*k,2)}, {v(EG+2*k,2)}, {v(XE+2*k,2)}')
        for k in ks: I(f'v_cvt_pk_bf16_f32 v{EH+k}, v{X1+2*k}, v{X1+2*k+1}')
    for pr in range(2):
        for i in range(2): I(f'v_permlane32_swap_b32 v{EH+4*pr+i}, v{EH+4*pr+2+i}')
        I(f'buffer_store_dwordx4 {v(EH+4*pr,4)}, v15, {sOUT}, {sS0} offen offset:{32*pr}')

def gen_update():
    I(f's_lshl_b32 {sT0}, s2, 2')
    I(f's_add_u32 {sT0}, {sT0}, {sW}')
    I(f's_cmp_lg_u32 {sT0}, {120*4}')
    A.settle()
    I('s_cbranch_scc1 L_nogen')
    A.cond = 'gen'
    I(smov(sCNT, SPIN)); I(smov(sT0, HELLO))
    A.label('L_gen')
    for i in range(4): I(f'buffer_load_dwordx4 {v(128+4*i,4)}, v{vL16}, {sWS}, {sT0} offen offset:{1024*i} sc1')
    A.vm0()
    R([f'v_cmp_ne_u64 vcc, {TAG}, v[130:131]', f'v_cmp_ne_u64 s[4:5], {TAG}, v[134:135]', f's_or_b64 vcc, vcc, s[4:5]',
       f'v_cmp_ne_u64 s[4:5], {TAG}, v[138:139]', f's_or_b64 vcc, vcc, s[4:5]', f'v_cmp_ne_u64 s[4:5], {TAG}, v[142:143]', f's_or_b64 vcc, vcc, s[4:5]',
       's_cbranch_scc0 L_gend', f's_sub_u32 {sCNT}, {sCNT}, 1', 's_cbranch_scc0 L_gen'])
    A.label('L_gend')
    I(f'v_lshlrev_b32 v128, 24, v{vL}')
    I(smov(sT0, GEN))
    I(f'buffer_store_dwordx2 {v(vTAG,2)}, v128, {sWS}, {sT0} offen sc1')
    A.settle()
    A.cond = None
    A.label('L_nogen')

def finish():
    if DEBUG:
        A.vm0()
        ts('end')
        A._emit(Ins('s_memrealtime s[6:7]'))
        A.lg0(force=True)
        for i in range(22): I(f'v_writelane_b32 v4, s{TS0+i}, {i}')
        I('s_getpc_b64 s[4:5]'); A.label('L_pc'); I(f's_sub_u32 s4, s4, L_pc-{NAME}_kernel'); I('s_subb_u32 s5, s5, 0'); I('v_writelane_b32 v4, s4, 36'); I('v_writelane_b32 v4, s5, 37')
        I('v_writelane_b32 v4, s100, 30'); I('v_writelane_b32 v4, s101, 31')
        I('v_writelane_b32 v4, s6, 32'); I('v_writelane_b32 v4, s7, 33'); I(f'v_writelane_b32 v4, {sFAST}, 34'); I(f'v_writelane_b32 v4, {sXCC}, 35')
        R([f's_lshl_b32 {sT0}, s2, 2', f's_add_u32 {sT0}, {sT0}, {sW}', f's_lshl_b32 {sT0}, {sT0}, 8', f's_add_u32 {sT0}, {sT0}, {TSB}',
           f'v_lshlrev_b32 v5, 2, v{vL}', f'buffer_store_dword v4, v5, {sWS}, {sT0} offen'])
    A.label('L_end')
    I('s_endpgm')
    for s in slow_blocks: s()

def stage(tok):
    A.waitvm(tok, 3); A.barrier()

def main():
    prologue()
    ts('p0')
    pp = mod_setup() + x_setup()
    for j in range(0, len(pp), 10):
        R(pp[j:j+10]); ts(f'p{j//10+1}')
    post = late_srd[:4] + pfm_setup() + late_srd[4:] + g1_setup() + dma_setup() + b_setup()
    NPF = 4 + len(pfm_setup())
    npre = opt('npre', 0)
    R(post[:npre])
    ts('pre')
    if opt('wsoff'):
        I(f's_add_u32 s40, s40, {opt("wsoff")<<20:#x}'); I('s_addc_u32 s41, s41, 0')
    I(f's_load_dwordx2 {TAG}, s[40:41], {GEN}')
    ts('karg')
    post = post[npre:]
    X1N = opt('x1', 10)
    W = lambda a, b: [g for ks in range(a, b) for g in wq_issue(ks)]
    RD = lambda a, b: [o for ks in range(a, b) for o in wq_read(ks)]
    q = [x_load(i) for i in range(20)]
    q.insert(opt('pfq', 4), pfm(sWQ))
    q += W(0, 8)
    q.insert(opt('g1pos', 38), g1_load())
    DLY = opt('dly', 0)
    I(f's_cmp_lt_u32 {sORD}, 20')
    I('s_cbranch_scc1 L_nomod2')
    A.cond = 'mod'
    I(f's_cmp_ge_u32 {sORD}, 24')
    I('s_cbranch_scc1 L_m1')
    m1, m2 = mod_issue()
    R(m1)
    A.label('L_m1')
    A.vm = [e for e in A.vm if e[2] != 'mod']
    R(post[:DLY])
    I(f's_cmp_lt_u32 {sORD}, 24')
    A.settle()
    I('s_cbranch_scc1 L_m2')
    R(m1)
    A.label('L_m2')
    R(post[DLY:]); ts('mi0'); R(m2); ts('mi1')
    R(tag_fix()); ts('mtag')
    R(pace(mod_compute(), q[:X1N], period=opt('mper', 50), first=opt('mfirst', 200)))
    ts('modpub')
    A.settle(); I('s_branch L_mod3')
    A.cond = None
    A.label('L_nomod2')
    A.sm |= {('s', 44), ('s', 45)}
    A.vm = [e for e in A.vm if e[2] != 'mod']
    R(q[:4])
    if not opt('nopf3'): R(pf_mod3())
    R(post[:NPF]); R(q[4:8]); R(post[NPF:]); R(tag_fix()); R(q[8:X1N])
    A.settle()
    A.label('L_mod3')
    q = q[X1N:]
    ts('xiss')
    pend = []
    ln = []
    for i in range(20):
        p = x_proc(i)
        k = (len(pend) + (3 - (i & 3))) // (4 - (i & 3))
        p = p[:1] + spread(p[1:], pend[:k]); pend = pend[k:]
        ln += p
        if i & 3 == 3:
            f, n = x_fin(i >> 2)
            pend = f + n
        if i in (3, 11, 19): ln.append(lambda i=i: ts(f'x{i}'))
    ln += pend + [lambda: ts('ln')]
    NL = opt('nl', 0)
    R(pace(ln, q[:len(q)-NL], period=opt('lper', 60), first=opt('lfirst', 130))); q = q[len(q)-NL:]
    ts('wiss')
    assert A.tokc.get('poll') == 1
    g1_check()
    ts('gath')
    stage('ks3')
    ts('s4')
    R(h_gsread(0))
    R(pace(RD(0, 4) + h_conv(0, True), q + [pf_sf(4), pfm(sWO), pfm(sW1), pf_o(4)][:opt('npa', 4)], period=60))
    R(hello())
    A.barrier()
    ts('mf0')
    R(h_read(0))
    w1 = [g for i in range(8) for g in w1_issue(i)]
    wo = [wo_issue(i) for i in range(16)]
    vm = {0: (W(8, 10), W(10, 12)),
          1: ([pf_sf(4), pfm(sWO), pfm(sW1), pf_o(4)][opt('npa', 4):], W(12, 16)),
          2: (g2_loads() + [pf_y(4)], wo[:12]),
          3: ([c_xload()], wo[12:] + w1[:opt('w1a', 6)])}
    w1 = w1[opt('w1a', 6):]
    for c in range(4):
        hc = (h_gsread(c+1) + h_conv(c+1, False)) if c < 3 else modvec_read() + att_setup() + pub_setup()
        if c == 1: hc = hc + g2_setup()
        rd = RD(4*c+1, 4*c+4) if c else []
        n1 = len(hc) * (opt('hs0', 55) if c == 0 else opt('hs', 40)) // 100
        f1 = spread(rd + hc[:n1], vm[c][0]); f2 = spread(hc[n1:], vm[c][1])
        parts = [f1[:len(f1)//2], f1[len(f1)//2:], f2[:len(f2)*2//3], f2[len(f2)*2//3:]]
        if c == 3:
            f1 = spread(rd + att_setup() + pub_setup(), vm[c][0]); f2 = spread(modvec_read(), vm[c][1])
            parts = [f1[:len(f1)//2], f1[len(f1)//2:], f2[:len(f2)//2], f2[len(f2)//2:]]
        for kl in range(4):
            ks = 4*c + kl
            f = parts[kl]
            mm = qkv_mfma(ks)
            if kl < 3:
                R(mweave(mm, h_read(ks+1) + f))
                if kl == 1 and c:
                    A.barrier()
            elif c < 3:
                R(mweave(mm[:7], f))
                if c == 2: g2_check()
                A.waitvm(f'ks{4*c+7}', 3)
                A.barrier()
                ts(f'c{c}')
                R(mweave(mm[7:], RD(ks+1, ks+2) + h_read(ks+1)))
            else:
                R(mweave(mm, f))
    A.waitvm('wo', 16)
    A.barrier()
    ts('qkv')
    att, tail = attention()
    NW1, NW1b = opt('nw1', 6), opt('nw1b', 6)
    R(pace(att, w1[:NW1], period=opt('aper', 100))); w1 = w1[NW1:]
    publish(tail, 0, w1[:NW1b]); w1 = w1[NW1b:]
    ts('opub')
    R(c_pre())
    R([poll_load(0)])
    poll_check(0, mC0)
    ts('opoll')
    c_main(w1 + [pfm(sW2), pf_h(4)])
    publish(c_epi(), 1)
    ts('ypub')
    R(d_setup())
    A.waitvm('w1', 24)
    A.barrier()
    d_ut(spread(d_setup2(), w2_issue(0)))
    R([poll_load(1)])
    A.barrier()
    R(d_ut2())
    gen_update()
    poll_check(1, mC0)
    ts('ypoll')
    rest = d_main()
    NR = opt('nr', 6)
    publish(d_epi(), 2, rest[:NR]); rest = rest[NR:]
    ts('hpub')
    A.barrier()
    R(pace(e_pre1(), rest + [[f's_lshl_b32 {sP}, {sW}, 11', f's_add_u32 {sP}, {sP}, {W2X}']] + w2_issue(3, sP), period=30))
    R([poll_load(2)])
    A.barrier()
    R(e_pre2())
    poll_check(2, mC0)
    ts('hpoll')
    e_main(w2_read(1) + w2_rebase(12*K, RB) + w2_read(2) + w2_rebase(2*K, W2X) + w2_read(3))
    finish()

main()
hdr = open(f'cdna_kernels/{NAME}.s.ref').read().split('\n')
head = [l for l in hdr if l.startswith(';') and '@launch' not in l]
out = '\n'.join(head) + '\n; @launch grid=(256,1,1) block=(256,1,1) lds=163840\n'
out += f'''.amdgcn_target "amdgcn-amd-amdhsa--gfx950"
.text
.globl {NAME}_kernel
.p2align 8
.type {NAME}_kernel,@function
{NAME}_kernel:
'''
out += A.text()
out += f'''.fill @PAD@, 4, 0xbf810000
.section .rodata,"a"
.p2align 6
.amdhsa_kernel {NAME}_kernel
  .amdhsa_next_free_vgpr 512
  .amdhsa_next_free_sgpr 102
  .amdhsa_accum_offset 256
  .amdhsa_group_segment_fixed_size 0
  .amdhsa_kernarg_size 88
  .amdhsa_user_sgpr_count 2
  .amdhsa_user_sgpr_kernarg_segment_ptr 1
  .amdhsa_system_sgpr_workgroup_id_x 1
.end_amdhsa_kernel
'''
dst = sys.argv[1]
import subprocess, re
def textsize(t):
    open('_sz.s', 'w').write(t)
    subprocess.run(['clang', '-x', 'assembler', '-target', 'amdgcn-amd-amdhsa', '-mcpu=gfx950', '-c', '_sz.s', '-o', '_sz.o'], check=True)
    h = subprocess.run(['llvm-objdump', '-h', '_sz.o'], capture_output=True, text=True).stdout
    return int(re.search(r'\.text\s+([0-9a-f]+)', h).group(1), 16)
sz = textsize(out.replace('@PAD@', '1'))
out = out.replace('@PAD@', str(max(1, (33024 - sz) // 4 + 2)))
assert textsize(out) >= 33024
print('code bytes', sz, file=sys.stderr)
open(dst, 'w').write(out)
if DEBUG: open(dst + '.ts', 'w').write(','.join(tsnames))
print(A.stats, 'nops', A.nnop, 'waits', A.nwait, file=sys.stderr)
```

```python
import re

REG_RE = re.compile(r'^(-|\|)?([vas])(?:(\d+)|\[(\d+):(\d+)\])\|?$')
TRANS = ('v_exp_f32', 'v_log_f32', 'v_rcp_f32', 'v_rsq_f32', 'v_sqrt_f32', 'v_sin_f32', 'v_cos_f32')


def regs_of(op):
    op = op.strip()
    if op == 'vcc':
        return {('s', 106), ('s', 107)}
    if op == 'vcc_lo':
        return {('s', 106)}
    if op == 'vcc_hi':
        return {('s', 107)}
    if op == 'exec':
        return {('s', 126), ('s', 127)}
    if op == 'exec_lo':
        return {('s', 126)}
    if op == 'exec_hi':
        return {('s', 127)}
    if op == 'm0':
        return {('s', 124)}
    m = REG_RE.match(op)
    if not m:
        return set()
    k = m.group(2)
    if m.group(3) is not None:
        return {(k, int(m.group(3)))}
    return {(k, i) for i in range(int(m.group(4)), int(m.group(5)) + 1)}


VCC = {('s', 106), ('s', 107)}
EXEC = {('s', 126), ('s', 127)}
M0 = {('s', 124)}


class Ins:
    __slots__ = ('text', 'mn', 'cls', 'w', 'r', 'states', 'A', 'B', 'C', 'passes', 'sgemm', 'dpp', 'wide', 'data', 'dma', 'dot')

    def __init__(self, text):
        self.text = text
        t = text.split(';')[0].strip()
        parts = t.split(None, 1)
        mn = parts[0]
        rest = parts[1] if len(parts) > 1 else ''
        ops, depth, cur = [], 0, ''
        for ch in rest:
            if ch == '[':
                depth += 1
            if ch == ']':
                depth -= 1
            if ch == ',' and depth == 0:
                ops.append(cur.strip()); cur = ''
            else:
                cur += ch
        if cur.strip():
            ops.append(cur.strip())
        mods = ''
        if ops:
            last = ops[-1].split(None, 1)
            ops[-1] = last[0]
            mods = last[1] if len(last) > 1 else ''
        self.mn = mn
        self.states = 1
        self.A = self.B = self.C = set()
        self.passes = 0
        self.sgemm = False
        self.dpp = False
        self.wide = False
        self.data = set()
        self.dma = False
        self.dot = False
        R = [regs_of(o) for o in ops]
        U = lambda l: set().union(*l) if l else set()
        base = re.sub(r'_(e32|e64|dpp|sdwa)$', '', mn)
        if mn.startswith('v_mfma'):
            self.cls = 'mfma'
            self.w = R[0]; self.A, self.B, self.C = R[1], R[2], R[3]
            self.r = R[1] | R[2] | R[3]
            if '32x32x16' in mn or '32x32x8' in mn: self.passes = 8
            elif '16x16x32' in mn or '16x16x16' in mn: self.passes = 4
            elif '32x32x2_f32' in mn: self.passes = 16; self.sgemm = True
            elif '16x16x4_f32' in mn: self.passes = 8; self.sgemm = True
            else: raise ValueError(mn)
        elif mn.startswith('v_'):
            self.cls = 'valu'
            self.dpp = ('dpp' in mn) or any(k in mods for k in ('row_', 'quad_perm', 'wave_'))
            if base.startswith('v_permlane') and 'swap' in base:
                self.w = R[0] | R[1]; self.r = R[0] | R[1]
            elif base.startswith('v_cmpx'):
                self.w = set(EXEC) | R[0]; self.r = U(R[1:])
            elif base in ('v_add_co_u32', 'v_sub_co_u32', 'v_addc_co_u32', 'v_subb_co_u32', 'v_mad_u64_u32'):
                self.w = R[0] | R[1]; self.r = U(R[2:])
            elif base == 'v_nop':
                self.w = set(); self.r = set()
            else:
                self.w = R[0]; self.r = U(R[1:])
                if base in ('v_fmac_f32', 'v_dot2c_f32_bf16', 'v_writelane_b32', 'v_pk_fmac_f16') or self.dpp:
                    self.r = self.r | R[0]
                if base == 'v_cndmask_b32' and len(ops) == 3:
                    self.r = self.r | VCC
            self.dot = base.startswith('v_dot')
        elif mn.startswith('ds_'):
            self.cls = 'ds'
            if mn.startswith('ds_read') or mn.startswith('ds_bpermute') or mn.startswith('ds_permute') or mn.startswith('ds_swizzle'):
                self.w = R[0]; self.r = U(R[1:])
            else:
                self.w = set(); self.r = U(R)
        elif mn.startswith('buffer_') or mn.startswith('global_'):
            self.cls = 'vmem'
            allm = ' ' + mods + ' '
            if mn in ('buffer_wbl2', 'buffer_inv'):
                self.w = set(); self.r = set()
            elif ' lds ' in allm:
                self.dma = True
                self.w = set(); self.r = U(R) | M0
            elif 'load' in mn:
                self.w = R[0]; self.r = U(R[1:])
            elif mn.startswith('buffer_atomic'):
                self.w = set(); self.r = U(R)
            elif mn.startswith('buffer_store'):
                self.w = set(); self.r = U(R); self.data = R[0]
                self.wide = mn.endswith('x4') or mn.endswith('x3')
            elif mn.startswith('global_store'):
                self.w = set(); self.r = U(R); self.data = R[1]
                self.wide = mn.endswith('x4') or mn.endswith('x3')
            else:
                raise ValueError(mn)
        elif mn.startswith('s_'):
            if mn.startswith('s_load') or mn.startswith('s_memtime') or mn.startswith('s_memrealtime'):
                self.cls = 'smem'; self.w = R[0]; self.r = U(R[1:])
            else:
                self.cls = 'salu'
                if mn == 's_nop':
                    self.states = int(ops[0]) + 1; self.w = set(); self.r = set()
                elif mn.startswith('s_cmp') or mn.startswith('s_cbranch') or mn.startswith('s_bitcmp') or mn in ('s_branch', 's_waitcnt', 's_barrier', 's_endpgm', 's_sleep', 's_setprio'):
                    self.w = set(); self.r = U(R)
                elif 'saveexec' in mn:
                    self.w = R[0] | EXEC; self.r = U(R[1:]) | EXEC
                else:
                    self.w = R[0]; self.r = U(R[1:])
        else:
            raise ValueError('unknown instr ' + text)


def isv(s):
    return {x for x in s if x[0] in 'va'}


def iss(s):
    return {x for x in s if x[0] == 's'}


def need(p, c):
    n = 0
    if p.cls == 'valu':
        wv = isv(p.w); ws = iss(p.w)
        if c.cls == 'mfma':
            if wv & c.r: n = max(n, 3 if p.dot else 2)
            if ws & EXEC: n = max(n, 4)
        if c.cls == 'valu':
            if c.dpp and (wv & c.r): n = max(n, 2)
            if c.dpp and (ws & EXEC): n = max(n, 5)
            if c.mn.startswith('v_permlane') and (wv & c.r): n = max(n, 2)
            if c.mn.startswith('v_permlane') and (ws & EXEC): n = max(n, 4)
            if (c.mn.startswith('v_readlane') or c.mn.startswith('v_readfirstlane')) and (wv & c.r): n = max(n, 1)
            if (c.mn.startswith('v_readlane') or c.mn.startswith('v_readfirstlane') or c.mn.startswith('v_writelane')):
                if ws & EXEC: n = max(n, 4)
                if ws & c.r: n = max(n, 4)
            if ws & c.r: n = max(n, 2)
            if any(p.mn.startswith(t) for t in TRANS) and (wv & c.r): n = max(n, 1)
            if ('op_sel' in p.text and not p.mn.startswith('v_pk')) or 'sdwa' in p.mn:
                if wv & (c.r | c.w): n = max(n, 1)
            if p.dot and (wv & (c.r | c.w)):
                same = re.sub(r'_(e32|e64|dpp)$', '', p.mn) == re.sub(r'_(e32|e64|dpp)$', '', c.mn)
                if not (same and c.w == p.w):
                    n = max(n, 3)
        if c.cls == 'vmem' and (ws & c.r): n = max(n, 5)
        if p.dot and c.cls in ('vmem', 'ds') and (wv & c.r): n = max(n, 3)
    elif p.cls == 'mfma':
        D = p.w
        idx = {4: 0, 8: 1, 16: 2}[p.passes]
        if c.cls == 'mfma':
            if D & (c.A | c.B):
                n = max(n, ([6, 10, 18] if p.sgemm else [8, 12, 20])[idx])
            if D & c.C:
                if p.sgemm:
                    if c.sgemm and not (c.C == D and c.passes == p.passes): n = max(n, [4, 8, 16][idx])
                else:
                    if c.sgemm or not (c.C == D and c.passes == p.passes): n = max(n, [6, 10, 18][idx])
            elif D & c.w:
                n = max(n, [8, 12, 20][idx])
        elif c.cls in ('valu', 'ds', 'vmem'):
            if D & (c.r | c.w):
                n = max(n, ([6, 10, 18] if p.sgemm else [8, 12, 20])[idx])
            if c.cls == 'valu' and not p.sgemm and (p.C & c.w):
                n = max(n, [3, 7, 15][idx])
    elif p.cls == 'vmem':
        if p.wide and (p.data & c.w):
            n = max(n, 2 if c.cls in ('valu', 'mfma') else 1)
    elif p.cls == 'salu':
        if (p.w & M0) and c.cls == 'vmem' and c.dma: n = max(n, 1)
    return n


class Asm:
    def __init__(self):
        self.lines = []
        self.hist = []
        self.vm = []
        self.lg = []
        self.sm = set()
        self.cond = None
        self.nuniq = 0
        self.stats = {}
        self.nnop = 0
        self.nwait = 0
        self.tokc = {}

    def uniq(self, p):
        self.nuniq += 1
        return f'L_{p}_{self.nuniq}'

    def raw(self, s):
        self.lines.append(s)

    def comment(self, s):
        self.lines.append('    ; ' + s)

    def _emit(self, ins):
        self.lines.append('    ' + ins.text)
        self.hist.append(ins)
        if len(self.hist) > 40:
            self.hist.pop(0)
        self.stats[ins.cls] = self.stats.get(ins.cls, 0) + 1

    def _after(self, q, i):
        return sum(1 for e in q[i + 1:] if e[2] is None or e[2] == self.cond)

    def _wait(self, vm=None, lg=None):
        s = []
        if vm is not None: s.append(f'vmcnt({min(vm, 63)})')
        if lg is not None: s.append(f'lgkmcnt({min(lg, 15)})')
        self._emit(Ins('s_waitcnt ' + ' '.join(s)))
        self.nwait += 1

    def _retire(self, q, i):
        if self.cond is None:
            del q[:i + 1]
        else:
            keep = [e for k, e in enumerate(q) if k > i or (e[2] != self.cond)]
            for k, e in enumerate(q):
                if k <= i and e[2] != self.cond:
                    e[3].add(self.cond)
            q[:] = keep

    def _find(self, q, regs):
        last = -1
        for i, e in enumerate(q):
            if (e[0] & regs) and self.cond not in e[3]:
                last = i
        return last

    def I(self, text, tok=None):
        ins = Ins(text)
        touch = ins.r | ins.w
        vm = lg = None
        i = self._find(self.vm, touch)
        if i >= 0:
            vm = self._after(self.vm, i); self._retire(self.vm, i)
        if self.sm & touch:
            lg = 0; self.sm = set()
            if self.lg: self._retire(self.lg, len(self.lg) - 1)
        else:
            j = self._find(self.lg, touch)
            if j >= 0:
                lg = self._after(self.lg, j); self._retire(self.lg, j)
        if vm is not None or lg is not None:
            self._wait(vm, lg)
        dist = 0
        req = 0
        for p in reversed(self.hist):
            n = need(p, ins)
            if n - dist > req: req = n - dist
            dist += p.states
            if dist >= 20: break
        while req > 0:
            k = min(req, 16)
            self._emit(Ins(f's_nop {k - 1}')); self.nnop += 1
            req -= k
        self._emit(ins)
        if tok: self.tokc[tok] = self.tokc.get(tok, 0) + 1
        if ins.cls == 'vmem':
            self.vm.append((ins.w, tok, self.cond, set()))
        elif ins.cls == 'ds':
            self.lg.append((ins.w, tok, self.cond, set()))
        elif ins.cls == 'smem':
            self.sm |= ins.w
        return ins

    def waitvm(self, tok, n=None):
        assert n is None or self.tokc.get(tok, 0) == n, (tok, self.tokc.get(tok, 0))
        last = -1
        for i, e in enumerate(self.vm):
            if e[1] == tok and self.cond not in e[3]: last = i
        if last >= 0:
            n = self._after(self.vm, last); self._retire(self.vm, last)
            self._wait(vm=n)

    def waitlg(self, tok):
        last = -1
        for i, e in enumerate(self.lg):
            if e[1] == tok and self.cond not in e[3]: last = i
        if last >= 0:
            n = self._after(self.lg, last); self._retire(self.lg, last)
            self._wait(lg=n)

    def vm0(self):
        self._wait(vm=0)
        if self.vm: self._retire(self.vm, len(self.vm) - 1)

    def lg0(self, force=False):
        if self.lg or self.sm or force:
            self._wait(lg=0)
            if self.lg: self._retire(self.lg, len(self.lg) - 1)
            self.sm = set()

    def barrier(self):
        self.lg0()
        self.I('s_barrier')

    def settle(self):
        dist = 0; req = 0
        for p in reversed(self.hist):
            n = 0
            if p.cls == 'mfma': n = {4: 8, 8: 12, 16: 20}[p.passes]
            elif p.cls == 'valu': n = 5 if iss(p.w) else (3 if p.dot else 2)
            elif p.cls == 'vmem' and p.wide: n = 2
            elif p.cls == 'salu' and (p.w & M0): n = 1
            req = max(req, n - dist)
            dist += p.states
            if dist >= 20: break
        req -= 1
        while req > 0:
            k = min(req, 16)
            self._emit(Ins(f's_nop {k - 1}')); self.nnop += 1
            req -= k

    def label(self, l):
        self.lines.append(l + ':')

    def run(self, ops):
        for o in ops:
            if callable(o): o()
            elif isinstance(o, tuple): self.I(o[0], tok=o[1])
            else: self.I(o)

    def text(self):
        return '\n'.join(self.lines) + '\n'


def weave(main, fill, per=2, start=0):
    out = []; k = 0
    for i, m in enumerate(main):
        out.append(m)
        if i >= start:
            for _ in range(per):
                if k < len(fill):
                    out.append(fill[k]); k += 1
    out.extend(fill[k:])
    return out


def _txt(o):
    return o[0] if isinstance(o, tuple) else o


def cost(o):
    if isinstance(o, list): return sum(cost(x) for x in o)
    if callable(o): return 4
    t = _txt(o)
    if t.startswith('v_mfma'): return 8
    if t.startswith('buffer_') or t.startswith('global_'): return 10
    if any(t.startswith(x) for x in TRANS) or t.startswith('v_permlane'): return 8
    if t.startswith('ds_write_b128'): return 12
    return 4


def mdur(o):
    t = _txt(o)
    if '32x32x16' in t: return 32
    if '32x32x2' in t: return 64
    return 16


def isds(o):
    return (not callable(o)) and (not isinstance(o, list)) and _txt(o).startswith('ds_')


def isvalu(o):
    return (not callable(o)) and (not isinstance(o, list)) and _txt(o).startswith('v_') and not _txt(o).startswith('v_mfma')


def flat(l):
    out = []
    for o in l:
        if isinstance(o, list): out.extend(flat(o))
        else: out.append(o)
    return out


def pace(main, groups, period=80, first=0):
    out = []; t = 0; nxt = first; k = 0
    for o in main:
        if k < len(groups) and t >= nxt:
            out.append(groups[k]); nxt = t + period; t += cost(groups[k]); k += 1
        out.append(o); t += cost(o)
    out.extend(groups[k:])
    return flat(out)


def spread(a, b):
    if not b: return list(a)
    out = []; k = 0
    n = max(len(a), 1)
    for i, o in enumerate(a):
        while k < len(b) and k * n <= i * len(b):
            out.append(b[k]); k += 1
        out.append(o)
    out.extend(b[k:])
    return out


def mweave(mf, fill, skip=0):
    tot = sum(cost(f) for f in fill)
    cap = sum(mdur(m) - 8 for m in mf[skip:])
    scale = max(1.0, tot / max(cap, 1))
    out = []; k = 0; budget = 0.0
    for i, m in enumerate(mf):
        out.append(m)
        if i < skip: continue
        budget = min(budget, 0.0) + (mdur(m) - 8) * scale
        seenv = False
        while k < len(fill) and budget >= min(cost(fill[k]), 8) - 0.01:
            f = fill[k]
            if isds(f) and seenv: break
            if isvalu(f): seenv = True
            out.append(f); budget -= cost(f); k += 1
    out.extend(fill[k:])
    return flat(out)


def scost(o):
    if isinstance(o, list): return sum(scost(x) for x in o)
    if callable(o): return getattr(o, 'slots', 1)
    t = _txt(o)
    if any(t.startswith(x) for x in TRANS) or t.startswith('v_permlane'): return 2
    if t.startswith('ds_write_b128'): return 2
    if t.startswith('buffer_') or t.startswith('global_'): return 2
    return 1


def isw(o):
    return (not callable(o)) and (not isinstance(o, list)) and _txt(o).startswith('ds_write_b128')


def gaps(mf, streams, pins=None, quiet=2):
    n = len(mf)
    pins = pins or {}
    Q = []
    for ops, a, b in streams:
        if b <= 0: b += n
        tot = sum(scost(o) for o in ops); acc = 0
        q = []
        for o in ops:
            q.append((a + (b - a) * acc / max(tot, 1), b, o)); acc += scost(o)
        Q.append(q)
    pc = [sum(scost(o) for o in pins.get(g, [])) for g in range(n)]
    pds = [any(isds(o) for o in pins.get(g, [])) for g in range(n + quiet + 1)]
    out = []
    rem = sum(scost(x[2]) for q in Q for x in q) + sum(pc)
    carry = 0.0
    nods = -1
    for g, m in enumerate(mf):
        out.append(m)
        base = (mdur(m) - 8) / 4
        cap = max(base, rem / (n - g)) + max(min(carry, 0.99), -2)
        use = pc[g]
        cur = []
        blocked = set()
        while True:
            cand = [(q[0][0], si) for si, q in enumerate(Q) if q and si not in blocked]
            if not cand: break
            pos, si = min(cand)
            _, b, o = Q[si][0]
            c = scost(o)
            must = g >= b - 1
            late = pos < g - 2.5 or must
            if pos > g + 1.5 and not late: break
            if use + min(c, 2) > cap + 0.01 and not late: break
            if not must:
                if isw(o):
                    if any(pds[g:g + quiet + 1]) and pos > g - 4 or any(isds(x) for _, x in cur) or any(s2 == si for s2, _ in cur):
                        blocked.add(si); continue
                elif isds(o) and g <= nods:
                    blocked.add(si); continue
            if isw(o): nods = g + quiet
            cur.append((si, o)); use += c; Q[si].pop(0)
        carry = cap - use
        rem -= use
        first = []; rest = []; seen = set()
        for si, o in cur:
            if isds(o) and si not in seen: first.append(o)
            else: rest.append(o); seen.add(si)
        out += pins.get(g, []) + first + rest
    for q in Q: out.extend(x[2] for x in q)
    return flat(out)


class Op:
    def __init__(self, o, pos, rel=0, dl=10**9, deps=(), ahead=1.5, lag=0):
        self.o, self.pos, self.rel, self.dl, self.deps, self.ahead, self.lag = o, pos, rel, dl, list(deps), ahead, lag
        self.at = None


def lin(ops, a, b, rel=None, dl=None, ahead=1.5):
    tot = sum(scost(o) for o in ops); acc = 0; q = []
    for o in ops:
        q.append(Op(o, a + (b - a) * acc / max(tot, 1), a if rel is None else rel, 10**9 if dl is None else dl, ahead=ahead)); acc += scost(o)
    return q


def ldsc(o):
    if not isds(o): return 0
    t = _txt(o)
    return 16 if 'b128' in t else 8


def isvm(o):
    if isinstance(o, list): return any(isvm(x) for x in o)
    if callable(o): return getattr(o, 'slots', 1) == 2
    return _txt(o).startswith('buffer_') or _txt(o).startswith('global_')


def gsched(mf, Q, tail=None, quiet=2, vmgap=3, window=28):
    n = len(mf); tail = tail or {}
    Q = [list(q) for q in Q]
    out = []; carry = 0.0; nods = -1; novm = -1; bucket = 0
    for g, m in enumerate(mf):
        out.append(m)
        base = (mdur(m) - 8) / 4
        hi = min(n, g + window)
        load = sum(scost(x.o) for q in Q for x in q if x.pos < hi or x.dl < hi) + sum(scost(l) for k, l in tail.items() if g <= k < hi)
        cap = max(base, load / (hi - g)) + max(min(carry, 0.99), -2)
        use = scost(tail.get(g, []))
        bucket = max(0, bucket - max(mdur(m), 8 + 4 * int(cap)))
        cur = []; blocked = set()
        while True:
            cand = [(min(q[0].pos, min(x.dl for x in q) - 2), si) for si, q in enumerate(Q) if q and si not in blocked]
            if not cand: break
            _, si = min(cand)
            x = Q[si][0]; o = x.o; c = scost(o)
            must = g >= min(y.dl for y in Q[si])
            ok = g >= x.rel and all(d.at is not None and g >= d.at + x.lag for d in x.deps)
            if must: assert ok or all(d.at is not None for d in x.deps), (g, o)
            if not must:
                if not ok or x.pos > g + x.ahead or use + min(c, 2) > cap + 0.01: blocked.add(si); continue
                if isw(o):
                    soon = any(isds(y.o) and not isw(y.o) and y.dl <= g + quiet for q in Q for y in q)
                    if soon or g <= nods or any(isds(y) for _, y in cur): blocked.add(si); continue
                elif isds(o) and (g <= nods or bucket + ldsc(o) > 24): blocked.add(si); continue
                elif isvm(o) and g <= novm: blocked.add(si); continue
            if isw(o): nods = g + quiet
            elif isds(o): bucket += ldsc(o)
            if isvm(o): novm = g + vmgap
            x.at = g
            cur.append((si, o)); use += c; Q[si].pop(0)
        carry = cap - use
        first = []; rest = []; seen = set()
        for si, o in cur:
            if (isds(o) or isvm(o)) and si not in seen: first.append(o)
            else: rest.append(o); seen.add(si)
        out += first + rest + list(tail.get(g, []))
    assert not any(Q), [x.o for q in Q for x in q]
    return flat(out)
```

```python
import sys, struct, re
from asm import Asm, Ins, weave, pace, spread, mweave, flat, gaps, scost, Op, lin, gsched

NAME = 'adaLN_cond__sliding_local_dilated__dense_activation_relu__prompt'
DEBUG = any(a.startswith('--ts') for a in sys.argv)
TSSEL = None
OPT = {}
for a in sys.argv:
    if a.startswith('--ts='): TSSEL = set(a[5:].split(',')) | {'start', 'end'}
    if a.startswith('--opt='):
        for kv in a[6:].split(','):
            k, _, val = kv.partition('=')
            OPT[k] = int(val) if val else 1
TSDEF = set('start,mf0,qkv,opoll,ypoll,hpoll,end'.split(','))
def opt(k, d=0): return OPT.get(k, d)

HELLO2 = 0x5000
GRAN, HELLO, GEN, FLAGS, STATS = 0x0, 0x3000, 0x4000, 0x10000, 0x20000
OB, YB, HB, TSB = 0x100000, 0x300000, 0x500000, 0xB00000
WS_SIZE = 0x1000000
OOB = 0x40000000
K = 1024
RA, RB = 0, 64 * K
HL = 4 * K
WL = 24 * K
MV = 156 * K
MR = 0
STS = 1024
UT = 60 * K
EX = RB
XT = RB + 48 * K
W2X = RB + 66 * K
sX, sWQ, sWO, sW1, sW2, sC, sWM, sOUT, sWS = [f's[{i}:{i+3}]' for i in range(8, 44, 4)]
TAG = 's[44:45]'
sW, sXG, sRK, sRB64, sHQ, sGRP, sR, sXCC, sFAST = [f's{i}' for i in range(46, 55)]
sT0, sT1, sT2, sT3, sT4 = [f's{i}' for i in range(55, 60)]
mP, mC0, mC1 = 's[60:61]', 's[62:63]', 's[64:65]'
sCNT, sD, sM3, sM1, sM2, sP, sLB, sLB2, sS0, sS1, sS2, sCBK = [f's{i}' for i in range(66, 78)]
sG0, sG1, sG2 = 's3', 's4', 's5'
TS0 = 84
NTS = 8
sHEL, sBIAS, sCS, sX0, sX1, sX2 = [f's{i}' for i in range(78, 84)]
SPIN = 20000
LOG2E = 1.4426950408889634

def NT(i): return ' nt' if opt('nt', 0) >> i & 1 else ''
def f2u(x): return struct.unpack('<I', struct.pack('<f', x))[0]
def v(i, n=1): return f'v{i}' if n == 1 else f'v[{i}:{i+n-1}]'
def a_(i, n=1): return f'a{i}' if n == 1 else f'a[{i}:{i+n-1}]'
def smov(d, x): return f's_mov_b32 {d}, {x:#x}'

A = Asm()
_I = A.I
CTX = {}
cur = {}
def I(text, tok=None):
    c = CTX.get((text, tok))
    if c:
        for o in c:
            if cur.get(o.split()[1]) != o: I(o)
    if text.startswith('s_') and text.split()[1:2] in (['m0,'], [sD + ',']): cur[text.split()[1]] = text
    return _I(text, tok)
A.I = I
def ctx(groups):
    for g in groups: CTX[g[-1]] = groups[0][:-1]
    return groups
R = lambda l: A.run(flat(l))
def cat(*ls): return [o for l in ls for o in l]
tsnames = []
def ts(name):
    if not DEBUG or name not in (TSSEL or TSDEF): return
    i = len(tsnames)
    assert i < NTS
    tsnames.append(name)
    A._emit(Ins(f's_memtime s[{TS0+2*i}:{TS0+1+2*i}]'))

vL, vL16, vFO = 1, 2, 3
vFS, vOA, vTAG = 6, 7, 8
vHR, vTR, vWO, vPR, vPF, vW2, vW2R, vWQ = 10, 14, 17, 18, 19, 20, 21, 23
WM0, WMC, WMA = 40, 72, 80
vMA, vMC = 26, 27
pC, pWM = 's[28:29]', 's[30:31]'
sHG, sM5, sHS, sK12 = 's32', 's33', 's34', 's35'
mRB = 's[82:83]'

def mod_issue():
    o = [f'global_load_dword v{WMC}, v{vMC}, {pC}']
    for j in range(8):
        o.append(f'global_load_dwordx4 {v(WM0+4*j,4)}, v{vMA}, {pWM} offset:{3072 if j&1 else -3072}')
        if j & 1 and j < 7: o.append(f'v_add_u32 v{vMA}, {sK12}, v{vMA}')
    return o

SRDS = {8: (0, 2097152), 12: (8, 1572864), 40: (80, WS_SIZE), 16: (16, 524288), 20: (32, 1409024), 24: (40, 1409024), 36: (64, 2097152)}
def kload(s): return f's_load_dwordx2 s[{s}:{s+1}], s[0:1], {SRDS[s][0]}'
def srd(s): return [smov(f's{s+2}', SRDS[s][1]), smov(f's{s+3}', 0x20000)]
def prologue():
    if DEBUG: A._emit(Ins('s_memrealtime s[100:101]'))
    ts('start')
    I('s_load_dwordx4 s[28:31], s[0:1], 48')
    I('s_getpc_b64 s[6:7]')
    I(f'v_lshlrev_b32 v4, 4, v0')
    I(f's_and_b32 {sT0}, s2, 56')
    I(f'v_lshl_add_u32 v5, {sT0}, 9, v4')
    A._emit_nodep(f'global_load_dword a247, v5, s[6:7]')
    I(kload(40))
    I('s_cmpk_ge_u32 s2, 256')
    I('s_cbranch_scc1 L_end')
    R([f's_and_b32 {sXG}, s2, 7', f's_lshr_b32 {sRK}, s2, 3', f's_lshl2_add_u32 {sCBK}, {sXG}, {sRK}', f's_add_u32 {sT0}, {sCBK}, 48',
       f'v_and_b32 v{vMA}, -4, v0', f's_movk_i32 {sT1}, 12272', f'v_mad_u32_u24 v{vMA}, v{vMA}, {sT1}, v4', f'v_lshl_add_u32 v{vMA}, {sT0}, 6, v{vMA}',
       f's_movk_i32 {sK12}, 12288', f'v_lshlrev_b32 v{vMC}, 2, v0',
       ])
    if not opt('nohelp'):
        R([f'v_lshrrev_b32 v5, 4, v0', f's_movk_i32 {sT1}, 5888', f'v_mad_u32_u24 v5, v5, {sT1}, v4', f's_mul_i32 {sT1}, {sRK}, 48', f's_lshl3_add_u32 {sT1}, {sT1}, {sXG}',
           f'v_lshl_add_u32 v25, {sT1}, 8, v5', kload(8), kload(12), 's_cmp_ge_u32 s2, 32'])
        A.lg0()
        A._emit_nodep(f'global_load_dword a247, v25, {pWM}')
    I(f's_load_dwordx2 {TAG}, s[40:41], {GEN}')
    I('s_cbranch_scc1 L_u1')
    A.cond = 'urg'
    R(mod_issue())
    ts('mi')
def ids():
    return [f'v_lshrrev_b32 v4, 6, v0', f'v_and_b32 v{vL}, 63, v0', f'v_readfirstlane_b32 {sW}, v4', f's_lshr_b32 {sT0}, {sRK}, 3',
            f's_lshl2_add_u32 {sRB64}, {sXG}, {sT0}', f's_and_b32 {sHQ}, {sRK}, 7', f's_lshr_b32 {sGRP}, {sRB64}, 1', f's_and_b32 {sR}, {sRK}, 15',
            f'v_lshlrev_b32 v{vL16}, 4, v{vL}']
def code_pf():
    f = lambda: A._emit_nodep(f'global_load_dword a247, v4, s[6:7]')
    return [[f's_and_b32 {sT0}, {sRK}, 3', f's_cmp_eq_u32 {sT0}, {sW}', f'v_lshlrev_b32 v4, 7, v0', f's_cselect_b64 exec, -1, 0', f, 's_mov_b64 exec, -1']]

def mod_compute():
    o = []
    I = o.append
    c = WMC
    for i in range(8): I(f'v_mov_b32 v{WMA+i}, 0')
    I(f'v_and_b32 v4, 3, v{vL}')
    I(f'v_lshlrev_b32 v4, 5, v4')
    I(f'v_lshrrev_b32 v5, 4, v{vL}')
    I(f'v_lshl_add_u32 v4, v5, 3, v4')
    I(f's_lshl_b32 {sT2}, {sW}, 7')
    I(f'v_add_u32 v4, {sT2}, v4')
    I(f'v_and_b32 v24, 0x70, v{vL16}')
    I(f'v_mov_b32 v5, v24')
    I(f'v_cmp_gt_u32 vcc, 8, v0')
    I(f'v_mov_b32 v25, {OOB:#x}')
    I(f's_lshr_b32 {sT2}, {sCBK}, 4')
    I(f'v_cndmask_b32 v24, v25, v24, vcc')
    I(f's_lshr_b32 {sT3}, 0x12, {sT2}')
    I(f's_and_b32 {sT3}, {sT3}, 1')
    I(f's_mul_i32 {sT3}, {sT3}, {f2u(1.0):#x}')
    I(f's_lshl_b32 {sT2}, {sCBK}, 7')
    I(f'v_lshlrev_b32 v{c+4}, 16, v{c}')
    I(lambda: ts('mc'))
    I(f'v_and_b32 v{c+5}, 0xffff0000, v{c}')
    for k in (4, 5): I(f'v_mul_f32 v{c+k+2}, {-LOG2E!r}, v{c+k}')
    for k in (4, 5): I(f'v_exp_f32 v{c+k+2}, v{c+k+2}')
    for k in (4, 5): I(f'v_add_f32 v{c+k+2}, 1.0, v{c+k+2}')
    for k in (4, 5): I(f'v_rcp_f32 v{c+k+2}, v{c+k+2}')
    for k in (4, 5): I(f'v_mul_f32 v{c+k}, v{c+k}, v{c+k+2}')
    I(f'v_cvt_pk_bf16_f32 v{c+4}, v{c+4}, v{c+5}')
    I(smov(sT0, 0x05040100)); I(smov(sT1, 0x07060302))
    for j in range(4):
        I(f'v_mov_b32_dpp v{c+j}, v{c+4} quad_perm:[{j},{j},{j},{j}] row_mask:0xf bank_mask:0xf')
    for j in range(4):
        r0, r1 = WM0 + 8*j, WM0 + 8*j + 4
        for d in range(4):
            I(f'v_perm_b32 v{c+4+(d&1)*2}, v{r1+d}, v{r0+d}, {sT0}')
            if d == 0: I(lambda j=j: ts(f'mw{j}'))
            I(f'v_perm_b32 v{c+5+(d&1)*2}, v{r1+d}, v{r0+d}, {sT1}')
            I(f'v_dot2c_f32_bf16 v{WMA+2*d}, v{c+4+(d&1)*2}, v{c+j}')
            I(f'v_dot2c_f32_bf16 v{WMA+2*d+1}, v{c+5+(d&1)*2}, v{c+j}')
    m = WMA
    for i in range(4): I(f'v_permlane32_swap_b32 v{m+i}, v{m+i+4}')
    for i in range(4): I(f'v_add_f32 v{m+i}, v{m+i}, v{m+i+4}')
    for i in range(2): I(f'v_permlane16_swap_b32 v{m+i}, v{m+i+2}')
    for i in range(2): I(f'v_add_f32 v{m+i}, v{m+i}, v{m+i+2}')
    for rot in (8, 4):
        for i in range(2): I(f'v_add_f32_dpp v{m+i}, v{m+i}, v{m+i} row_ror:{rot} row_mask:0xf bank_mask:0xf')
    I(f'ds_write_b64 v4, {v(m,2)}')
    I(f'v_mov_b32 v30, s44')
    I(f'v_mov_b32 v31, s45')
    I(lambda: ts('mb0'))
    I(A.barrier)
    I(lambda: ts('mb1'))
    for w in range(4): I(f'ds_read_b128 {v(WM0+4*w,4)}, v5 offset:{128*w}')
    for i in (0, 2): I(f'v_pk_add_f32 {v(WM0+i,2)}, {v(WM0+i,2)}, {v(WM0+4+i,2)}')
    for i in (0, 2): I(f'v_pk_add_f32 {v(WM0+8+i,2)}, {v(WM0+8+i,2)}, {v(WM0+12+i,2)}')
    for i in (0, 2): I(f'v_pk_add_f32 {v(WM0+i,2)}, {v(WM0+i,2)}, {v(WM0+8+i,2)}')
    I(f'v_cvt_pk_bf16_f32 v{WM0+4}, v{WM0}, v{WM0+1}')
    I(f'v_cvt_pk_bf16_f32 v{WM0+5}, v{WM0+2}, v{WM0+3}')
    for i in range(2):
        I(f'v_lshlrev_b32 v{WM0+2*i}, 16, v{WM0+4+i}')
        I(f'v_and_b32 v{WM0+2*i+1}, 0xffff0000, v{WM0+4+i}')
    for i in range(4): I(f'v_add_f32 v{WM0+i}, {sT3}, v{WM0+i}')
    I(f'v_cvt_pk_bf16_f32 v28, v{WM0}, v{WM0+1}')
    I(f'v_cvt_pk_bf16_f32 v29, v{WM0+2}, v{WM0+3}')
    I(f'buffer_store_dwordx4 v[28:31], v24, {sWS}, {sT2} offen sc1')
    return o

NODEP = [None]
def _emit_nodep(text, tok=None):
    ins = Ins(text); ins.w = set()
    A._emit(ins); A.vm.append((set(), tok, A.cond or NODEP[0], set()))
A._emit_nodep = _emit_nodep

def pfm_setup():
    o = [f's_lshl2_add_u32 {sT0}, s2, {sW}', f's_sub_u32 {sT0}, {sT0}, 128', f's_mul_i32 {sT0}, {sT0}, {14*128}', f'v_lshl_add_u32 v{vPF}, v{vL}, 7, {sT0}',
         f'v_cmp_gt_u32 vcc, 14, v{vL}', f'v_mov_b32 v5, {OOB:#x}']
    if opt('pf3'):
        o += [f's_lshl2_add_u32 {sT0}, {sRK}, {sW}', f's_mul_i32 {sT0}, {sT0}, {12*1024}', f's_add_u32 {sT0}, {sT0}, {(384 - 14*1024) & 0xffffffff:#x}',
              f'v_lshl_add_u32 v4, v{vL}, 10, {sT0}', f'v_cndmask_b32 v{vPF}, v4, v{vPF}, vcc', f'v_cmp_gt_u32 vcc, 26, v{vL}']
    return [o + [f'v_cndmask_b32 v{vPF}, v5, v{vPF}, vcc']]
def pfm(srd):
    f = lambda: A._emit_nodep(f'buffer_load_dword a247, v{vPF}, {srd}, 0 offen')
    f.slots = 2
    if opt('no3', 0) >> [sWQ, sWO, sW1, sW2].index(srd) & 1: return [['s_bfm_b64 exec, 14, 0', f, 's_mov_b64 exec, -1']]
    return [f]
def tile_base(d):
    return [f's_lshr_b32 {d}, {sR}, 2', f's_lshl2_add_u32 {d}, {sGRP}, {d}', f's_mul_i32 {d}, {d}, {86*1024}']
def h_bases():
    return [f's_mul_i32 {sT0}, {sRB64}, {2*86*1024}', f's_add_u32 {sT0}, {sT0}, {HB + 32768}', f's_mul_i32 {sM5}, {sW}, 5120', f's_add_u32 {sHG}, {sT0}, {sM5}',
            f's_add_u32 {sM5}, {sM5}, {HL}', f's_mul_i32 {sT1}, {sW}, 20480', f's_add_u32 {sHS}, {sT0}, {sT1}', [f's_bitcmp1_b32 {sW}, 1',
            f's_cselect_b32 {sT1}, {86*1024 - 40960}, 0'], f's_add_u32 {sHS}, {sHS}, {sT1}']
def pr0():
    f = lambda: A._emit_nodep(f'buffer_load_dword a247, v4, {sWS}, 0 offen', 'pr0')
    return [[f's_mul_i32 {sT0}, {sHQ}, 2560', f's_add_u32 {sT0}, {sT0}, {sHS}', f'v_lshl_add_u32 v4, v{vL}, 7, {sT0}',
            f's_lshl_b32 {sT0}, {sGRP}, 5', f's_add_u32 {sT0}, {sT0}, {sR}', f's_lshl_b32 {sT0}, {sT0}, 7', f's_add_u32 {sT0}, {sT0}, {FLAGS}', f'v_writelane_b32 v4, {sT0}, 20',
            f's_bfm_b64 exec, 21, 0', f, 's_mov_b64 exec, -1']]
def help_u():
    f = lambda r, s: (lambda: A._emit_nodep(f'buffer_load_dword a247, v{r}, {s}, 0 offen'))
    return [[f's_lshl2_add_u32 {sT0}, {sR}, {sW}', f's_mul_i32 {sT0}, {sT0}, 640', f's_lshl_b32 {sT1}, {sXG}, 18', f's_add_u32 {sT0}, {sT0}, {sT1}', f's_sub_u32 {sT0}, {sT0}, 16384',
             f'v_lshl_add_u32 v4, v{vL}, 7, {sT0}', f's_lshr_b32 {sT0}, {sRK}, 3', f's_mul_i32 {sT0}, {sT0}, {2*86*1024}', f's_sub_u32 {sT0}, {sHS}, {sT0}',
             f's_mul_i32 {sT1}, {sR}, 640', f's_add_u32 {sT0}, {sT0}, {sT1}', f'v_lshl_add_u32 v5, v{vL}, 7, {sT0}',
             f's_cmp_ge_u32 {sRK}, 16', f's_cselect_b64 exec, 31, 0', f(4, sX), f(5, sWS), 's_mov_b64 exec, -1']]
def pr_setup():
    return tile_base(sT0) + [f's_and_b32 {sT1}, {sR}, 3', f's_lshl2_add_u32 {sT1}, {sT1}, {sW}', f's_add_u32 {sT0}, {sT0}, {HB}',
        f's_lshl_b32 {sT2}, {sT1}, 11', f's_add_u32 {sT2}, {sT2}, {sT0}', f's_mul_i32 {sT1}, {sT1}, {(27 if opt("phx") else 7)*128}', f's_add_u32 {sT1}, {sT1}, {sT0}',
        f's_add_u32 {sT1}, {sT1}, {(32 if opt("phx") else 72)*1024-16*128}', f's_lshl3_add_u32 {sT0}, {sRB64}, {sHQ}', f's_lshl2_add_u32 {sT0}, {sT0}, {sW}', f's_lshl_b32 {sT0}, {sT0}, 11',
        f's_sub_u32 {sT0}, {sT0}, {48*128}',
        f'v_mov_b32 v32, {sT2}', f'v_mov_b32 v33, {sT1}', f'v_mov_b32 v34, {sT0}', [f'v_cmp_gt_u32 vcc, 16, v{vL}', f'v_cndmask_b32 v32, v33, v32, vcc'],
        [f'v_cmp_gt_u32 vcc, 48, v{vL}', f'v_cndmask_b32 v32, v34, v32, vcc'], f'v_lshl_add_u32 v{vPR}, v{vL}, 7, v32',
        f's_lshl2_add_u32 {sT1}, {sR}, {sW}',
        f's_lshl_b32 {sT0}, {sGRP}, 6', f's_add_u32 {sT0}, {sT0}, {sT1}', f's_lshl_b32 {sT0}, {sT0}, 7', f's_add_u32 {sT0}, {sT0}, {STATS}', f'v_writelane_b32 v{vPR}, {sT0}, 44']
def pr(lo, hi, srd):
    f = lambda: A._emit_nodep(f'buffer_load_dword a247, v{vPR}, {srd}, 0 offen')
    f.slots = 2
    return [[smov('exec_lo', lo), smov('exec_hi', hi), f, 's_mov_b64 exec, -1']]
def pf_o(): return pr(0xffff, 0x1000, sWS)
def pf_h(): return pr(0xffff0000, 0x7ff, sWS) if opt('phx') else pr(0x7f0000, 0, sWS)
def pf_y(): return pr(0, 0xffff0000, sOUT)

vXO, XR, XF, XS = 88, 96, 106, 126
vHS, vGA, vHA, GD, HD, GT, GF, vSW, vSR, XT2 = 152, 157, 158, 160, 164, 168, 170, 178, 179, 180
def x_setup():
    o = [f's_mul_i32 {sT1}, {sHQ}, 10', f'v_lshrrev_b32 v93, 5, v{vL}', f'v_add_u32 v93, {sT1}, v93', f'v_and_b32 v94, 31, v{vL}', f'v_lshlrev_b32 v94, 3, v94',
         f's_lshl_b32 {sT0}, {sRB64}, 8', f's_add_u32 {sT0}, {sT0}, {sW}', f's_sub_u32 {sT0}, {sT0}, 64', f's_lshl_b32 {sT0}, {sT0}, 8',
         f'v_lshl_add_u32 v{vXO}, v93, 10, v94', f'v_add_u32 v{vXO}, {sT0}, v{vXO}']
    return o
def x_load():
    o = []
    for i in range(5):
        if i < 4: o.append(f'v_add_u32 v{vXO+i+1}, 2048, v{vXO+i}')
        o.append(f'buffer_load_dwordx2 {v(XR+2*i,2)}, v{vXO+i}, {sX}, 0 offen')
    return o
def ln_setup():
    o = [f'v_lshlrev_b32 v93, 4, v93', smov(sT0, 0xf0)]
    for i in range(5):
        o += [f'v_bitop3_b32 v95, v93, {sT0}, v94 bitop3:0x6a', f'v_lshl_add_u32 v{vHS+i}, v93, 4, v95'] + ([f'v_add_u32 v93, 32, v93'] if i < 4 else [])
    o += [f's_lshl2_add_u32 {sT0}, {sW}, {STS}', f'v_and_b32 v{vSW}, 0x30, v{vL}', f'v_add_u32 v{vSW}, {sT0}, v{vSW}',
          f'v_and_b32 v{vSR}, 7, v{vL}', f'v_and_b32 v95, 32, v{vL}', f'v_lshl_add_u32 v{vSR}, v{vSR}, 6, v95',
          f's_lshl_b32 {sT0}, {sW}, 9', f'v_lshl_add_u32 v{vGA}, v94, 1, {sT0}', f'v_lshl_add_u32 v{vGA}, v95, 6, v{vGA}',
          f's_lshl_b32 {sT0}, {sGRP}, 8', f's_add_u32 {sT0}, {sT0}, {HELLO}', f'v_and_b32 v{vHA}, 0xf0, v{vL16}', f'v_add_u32 v{vHA}, {sT0}, v{vHA}']
    return o
def ln1():
    o = []
    for i in range(5):
        f = XF + 4*i; s = XS + 2*i; p = XT2 + 4*(i & 1)
        for d in range(2):
            o += [f'v_lshlrev_b32 v{f+2*d}, 16, v{XR+2*i+d}', f'v_and_b32 v{f+2*d+1}, 0xffff0000, v{XR+2*i+d}']
        o += [f'v_pk_mul_f32 {v(p+2,2)}, {v(f,2)}, {v(f,2)}', f'v_pk_add_f32 {v(p,2)}, {v(f,2)}, {v(f+2,2)}', f'v_pk_fma_f32 {v(p+2,2)}, {v(f+2,2)}, {v(f+2,2)}, {v(p+2,2)}',
              f'v_add_f32 v{s}, v{p}, v{p+1}', f'v_add_f32 v{s+1}, v{p+2}, v{p+3}', lambda i=i: ts(f'x{i}')]
    o += [f'v_permlane16_swap_b32 v{XS+2*i}, v{XS+2*i+1}' for i in range(5)]
    o += [f'v_add_f32 v{XS+2*i}, v{XS+2*i}, v{XS+2*i+1}' for i in range(5)]
    for rot in (8, 4, 2, 1):
        o += [f'v_add_f32_dpp v{XS+2*i}, v{XS+2*i}, v{XS+2*i} row_ror:{rot} row_mask:0xf bank_mask:0xf' for i in range(5)]
    o += [f'ds_write_b32 v{vSW}, v{XS+2*i} offset:{64*i}' for i in range(5)]
    return o
def ln2():
    a = XT2
    o = [f'ds_read_b128 {v(a,4)}, v{vSR} offset:{STS}', f'ds_read_b128 {v(a+4,4)}, v{vSR} offset:{STS+16}', f'v_mov_b32 v95, {f2u(1e-5):#x}',
         f'v_pk_add_f32 {v(a,2)}, {v(a,2)}, {v(a+2,2)}', f'v_pk_add_f32 {v(a+4,2)}, {v(a+4,2)}, {v(a+6,2)}', f'v_add_f32 v{a}, v{a}, v{a+1}', f'v_add_f32 v{a+4}, v{a+4}, v{a+5}',
         f'v_mul_f32 v{a+1}, {f2u(-1.0/512):#x}, v{a}', f'v_fmamk_f32 v{a+4}, v{a+4}, {f2u(1.0/512):#x}, v95',
         f'v_fma_f32 v{a+4}, -v{a+1}, v{a+1}, v{a+4}', f'v_max_f32 v{a+4}, v95, v{a+4}', f'v_rsq_f32 v{a}, v{a+4}', f'v_mul_f32 v{a+1}, v{a+1}, v{a}']
    o += [f'v_mov_b64_dpp {v(XS+2*i,2)}, {v(a,2)} row_newbcast:{i} row_mask:0xf bank_mask:0xf' for i in range(5)]
    for i in range(5):
        for d in range(2):
            x = v(XF + 4*i + 2*d, 2)
            o.append(f'v_pk_fma_f32 {x}, {x}, {v(XS+2*i,2)}, {v(XS+2*i,2)} op_sel:[0,0,1] op_sel_hi:[1,0,1]')
    return o
def h_head():
    o = [f'v_mov_b32 v{GT}, v{GD}', f'v_mov_b32 v{GT+1}, v{GD+1}', f'v_cmp_ne_u32 vcc, {sXCC}, v{HD}' if not opt('nohel') else 'v_cmp_ne_u32 vcc, v0, v0']
    o += [f'v_permlane32_swap_b32 v{GD+i}, v{GT+i}' for i in range(2)]
    o += [f's_cmp_eq_u64 vcc, 0', f's_cselect_b32 {sFAST}, ' + ('0' if opt('slow') else '1') + ', 0']
    for k, s in enumerate((GD, GD+1, GT, GT+1)):
        o += [f'v_lshlrev_b32 v{GF+2*k}, 16, v{s}', f'v_and_b32 v{GF+2*k+1}, 0xffff0000, v{s}']
    return o
def h_body():
    o = []
    for i in range(5):
        f = XF + 4*i
        o += [f'v_pk_fma_f32 {v(f+2*d,2)}, {v(f+2*d,2)}, {v(GF+4+2*d,2)}, {v(GF+2*d,2)}' for d in range(2)]
        o += [f'v_cvt_pk_bf16_f32 v{XR+2*i+d}, v{f+2*d}, v{f+2*d+1}' for d in range(2)]
        o.append(f'v_min_u32 v{XR+2*i}, -2, v{XR+2*i}')
        o.append(f'buffer_store_dwordx2 {v(XR+2*i,2)}, v{vHS+i}, {sWS}, {sHS} offen@')
    return o
vHC, HK, CL = 159, 160, 38
def h_clear(): return [f'v_mov_b32 v{CL}, -1', f'v_mov_b32 v{CL+1}, -1'] + [(f'buffer_store_dwordx2 {v(CL,2)}, v{vHS+i}, {sWS}, {sHS} offen', 'clr') for i in range(5)]
def h_cleared(): return [lambda: A.waitvm('clr'), f'buffer_store_dwordx2 {v(vTAG,2)}, v{vFS}, {sWS}, 0 offen offset:{3*512}']
def hk_read(c): return [f'ds_read_b128 {v(HK+4*i,4)}, v{vHC} offset:{(c&1)*20480+1024*i}' for i in range(5)]
def hk_max(): return [f'v_max3_u32 v{HK+1}, v{HK}, v{HK+2}, v{HK+4}'] + [f'v_max3_u32 v{HK+1}, v{HK+1}, v{HK+4*i+2}, v{HK+4*i+4}' for i in (1, 2, 3)] + [f'v_max_u32 v{HK+1}, v{HK+1}, v{HK+18}']
def hk_check(c):
    S, J = A.uniq('again'), A.uniq('hok')
    cmp = [f'v_cmp_eq_u32 vcc, -1, v{HK+1}', 's_cmp_lg_u64 vcc, 0']
    R(cmp)
    if c == 0: I(smov(sCNT, SPIN))
    I(f's_cbranch_scc1 {S}')
    A.label(J)
    if DEBUG and f'hn{c}' in (TSSEL or ()):
        i = len(tsnames); tsnames.append(f'hn{c}')
        A.lg0(force=True)
        R([f's_sub_u32 {sCNT}, {SPIN}, {sCNT}', f's_mul_i32 {sCNT}, {sCNT}, 10000', f's_add_u32 s{TS0+2*i}, s{TS0}, {sCNT}', f's_addc_u32 s{TS0+2*i+1}, s{TS0+1}, 0'])
    def again():
        A.label(S)
        L, X = A.uniq('agl'), A.uniq('agx')
        R(['s_nop 7', 's_mov_b32 s6, m0', f's_mov_b32 s7, {sD}', smov(sCNT, SPIN)])
        A.label(L)
        cur.clear()
        R(h_issue(c))
        I(f's_sub_u32 {sCNT}, {sCNT}, 1')
        I(f's_cbranch_scc1 {X}')
        A.vm0()
        R(hk_read(c) + hk_max() + cmp)
        A.settle()
        I(f's_cbranch_scc1 {L}')
        A.label(X)
        A.vm0()
        R(['s_mov_b32 m0, s6', f's_mov_b32 {sD}, s7'])
        A.settle()
        I(f's_branch {J}')
    slow_blocks.append(again)
def h_issue(c):
    g = (c >> 1) * 86 * 1024 + (c & 1) * 20480
    ld = lambda i: (f'buffer_load_dwordx4 v{vL16}, {sWS}, {sD} offen offset:{1024*i} sc1 lds', f'hc{c}')
    g4 = ctx([[f's_add_u32 m0, {sM5}, {c*20480}', f's_add_u32 {sD}, {sHG}, {g}', ld(0)], [ld(1)], [ld(2)], [ld(3)]])
    del CTX[ld(0)]
    return g4 + [[f's_add_u32 m0, {sM5}, {c*20480+4096}', f's_add_u32 {sD}, {sHG}, {g+4096}', ld(0)]]

def dma_setup():
    return [
        f'v_and_b32 v4, 16, v{vL}', f'v_lshlrev_b32 v4, 1, v4', f'v_xor_b32 v4, v4, v{vL16}',
        f's_and_b32 {sT0}, {sW}, 1', f's_lshl_b32 {sT0}, {sT0}, 6', f'v_xor_b32 v4, {sT0}, v4', f'v_and_b32 v4, 0x70, v4',
        f's_lshl_b32 {sT1}, {sHQ}, 7', f'v_add_u32 v4, {sT1}, v4',
        f'v_lshrrev_b32 v5, 3, v0',
        f'v_mul_u32_u24 v{vWQ}, 3072, v5', f'v_add_u32 v{vWQ}, v{vWQ}, v4',
        f'v_lshl_add_u32 v{vWO}, v5, 10, v4',
        f's_mul_i32 {sM3}, {sW}, 3072', f's_lshl_b32 {sM1}, {sW}, 10',
    ]

NSL = 11
def wslot(ks): return ks if ks < NSL else ks - 5
def wq_issue(ks):
    g = []
    for p in range(3):
        ld = (f'buffer_load_dwordx4 v{vWQ}, {sWQ}, {sD} offen offset:{1024*p}{NT(0)} lds', f'ks{ks}')
        g.append([f's_add_u32 m0, {sM3}, {WL + wslot(ks)*12288}', smov(sD, ks*32*3072), ld] if p == 0 else [ld])
    return ctx(g)

def tr_base(dst, piece, gstride, tmp=4):
    return [
        f'v_lshrrev_b32 v{tmp}, 4, v{vL}', f'v_mul_u32_u24 v{dst}, {gstride}, v{tmp}',
        f'v_bfe_u32 v{tmp}, v{vL}, 2, 2', f'v_lshl_add_u32 v{dst}, v{tmp}, 7, v{dst}',
        f'v_bfe_u32 v{tmp}, v{vL}, 3, 2', f'v_xor_b32 v{tmp}, {piece}, v{tmp}', f'v_lshl_add_u32 v{dst}, v{tmp}, 5, v{dst}',
        f'v_and_b32 v{tmp}, 3, v{vL}', f'v_lshl_add_u32 v{dst}, v{tmp}, 3, v{dst}']

def wq_read(ks):
    sl = wslot(ks)
    return [f'ds_read_b64_tr_b16 {a_(12*ks+4*p+2*hr,2)}, v{vTR+sl//6} offset:{(sl%6)*12288 + p*1024 + hr*512}' for p in range(3) for hr in range(2)]

def wo_issue(i):
    return [f's_add_u32 m0, {sM1}, {RA + i*4096}', smov(sD, i*32768), (f'buffer_load_dwordx4 v{vWO}, {sWO}, {sD} offen{NT(1)} lds', 'wo')]

def rd_setup():
    o = tr_base(vTR, sW, 3072) + [f'v_add_u32 v{vTR+1}, {WL + 72*K}, v{vTR}', f'v_add_u32 v{vTR}, {WL}, v{vTR}']
    return o
def hr_setup():
    return [f'v_lshrrev_b32 v16, 4, v{vL}', f'v_xor_b32 v16, v16, v{vL}', f'v_and_b32 v16, 15, v16', f'v_and_b32 v{vHR}, 15, v{vL}', f'v_lshl_add_u32 v16, v{vHR}, 4, v16',
            f'v_lshlrev_b32 v16, 4, v16', f'v_add_u32 v{vHR}, {HL}, v16', f'v_add_u32 v{vHC}, {sM5}, v{vL16}'] + [f'v_xor_b32 v{vHR+k}, {64*k}, v{vHR}' for k in range(1, 4)]
def flag_setup():
    return [f's_lshl_b32 {sT0}, {sGRP}, 12', f's_add_u32 {sT0}, {sT0}, {FLAGS}', f'v_lshl_add_u32 v{vFO}, v{vL}, 3, {sT0}',
            f's_lshl2_add_u32 {sT0}, {sR}, {sW}', f'v_mov_b32 v4, {OOB:#x}', [f'v_cmp_eq_u32 vcc, {sT0}, v{vL}', f'v_cndmask_b32 v{vFS}, v4, v{vFO}, vcc'],
            f'v_mov_b32 v{vTAG}, s44', f'v_mov_b32 v{vTAG+1}, s45',
            [f's_bitcmp1_b32 {sRB64}, 0', f's_cselect_b32 s82, 0, -1', f's_cselect_b32 s83, -1, 0']]
def w2_setup():
    o = []
    o += [f'v_lshrrev_b32 v4, 3, v{vL}', f'v_lshlrev_b32 v{vW2}, 10, v4', f'v_and_b32 v4, 16, v{vL}', f'v_lshlrev_b32 v4, 2, v4',
          f'v_xor_b32 v4, v4, v{vL16}', f'v_and_b32 v4, 0x70, v4', f's_lshl_b32 {sT0}, {sHQ}, 7', f's_mul_i32 {sT1}, {sW}, {352*1024}',
          f's_add_u32 {sT0}, {sT0}, {sT1}', f'v_add3_u32 v{vW2}, v{vW2}, v4, {sT0}',
          f's_mul_i32 {sM2}, {sW}, {15*K}']
    o += [f'v_lshrrev_b32 v4, 5, v{vL}', f'v_lshlrev_b32 v{vW2R}, 9, v4', f'v_bfe_u32 v4, v{vL}, 2, 2', f'v_lshl_add_u32 v{vW2R}, v4, 7, v{vW2R}',
          f'v_bfe_u32 v4, v{vL}, 3, 1', f's_and_b32 {sT0}, {sW}, 1', f'v_xor_b32 v4, {sT0}, v4', f'v_lshl_add_u32 v{vW2R}, v4, 6, v{vW2R}',
          f'v_bfe_u32 v4, v{vL}, 4, 1', f'v_lshl_add_u32 v{vW2R}, v4, 5, v{vW2R}', f'v_and_b32 v4, 3, v{vL}', f'v_lshl_add_u32 v{vW2R}, v4, 3, v{vW2R}',
          f's_add_u32 {sT0}, {sM3}, {RB + 12*K}', f'v_add_u32 v{vW2R}, {sT0}, v{vW2R}', f'v_xor_b32 v{vW2R+1}, 64, v{vW2R}']
    return [x.replace('v4', 'v16') for x in o]

def tag_fix(): return [f's_add_u32 s44, s44, 0x7f4a7c15', f's_addc_u32 s45, s45, 0x9e3779b9']
def hello_setup():
    return [f's_getreg_b32 {sXCC}, hwreg(HW_REG_XCC_ID)', f's_and_b32 {sXCC}, {sXCC}, 15',
            f's_lshl4_add_u32 {sT0}, {sGRP}, {sR}', f's_lshl_b32 {sT0}, {sT0}, 4', f's_add_u32 {sHEL}, {sT0}, {HELLO}',
            f'v_mov_b32 v32, {sXCC}', f'v_mov_b32 v33, 0', f'v_mov_b32 v34, s44', f'v_mov_b32 v35, s45',
            f'v_lshlrev_b32 v36, 24, v0']
def hello(): return [f'buffer_store_dwordx4 v[32:35], v36, {sWS}, {sHEL} offen sc1']
def hello2():
    return [[f's_add_u32 {sHEL}, {sHEL}, {HELLO2 - HELLO + 8}', f'v_lshlrev_b32 v16, 24, v0', f'buffer_store_dwordx2 {v(vTAG,2)}, v16, {sWS}, {sHEL} offen sc1']]

PART = 0x40000
M2D, M2T, M2A, M2S, vM2A, vM2P, vM2Q, vM2O = 188, 196, 200, 208, 209, 210, 211, 212
sONE = sBIAS
def m2_load():
    return [[f's_lshr_b32 s6, {sRK}, 2', f's_and_b32 s7, {sRK}, 3', f's_lshl2_add_u32 s7, {sXG}, s7', f'v_lshrrev_b32 v213, 3, v0',
             f'v_lshl_add_u32 v213, s6, 5, v213', f's_add_u32 s7, s7, 40', f'v_and_b32 v214, 0x70, v{vL16}', f'v_lshl_add_u32 v214, s7, 7, v214',
             f'v_mad_u32_u24 v{vM2A}, v213, {sK12}, v214', f'v_lshlrev_b32 v213, 2, v213', (f'global_load_dword v{M2S}, v213, {pC}', 'm2')] +
            [(f'global_load_dwordx4 {v(M2D+4*j,4)}, v{vM2A}, {pWM} offset:{3072 if j else -3072}', 'm2') for j in range(2)]]
def m2_setup():
    c = M2T
    return [f's_and_b32 {sT1}, {sRK}, 3', f's_lshl2_add_u32 {sT1}, {sXG}, {sT1}', f's_and_b32 {sT0}, {sRK}, 28', f's_lshl_b32 {sT2}, {sT1}, 14', f's_add_u32 {sT2}, {sT2}, {PART}',
         f's_add_u32 {sT3}, {sT0}, {sW}', f's_lshl_b32 {sT3}, {sT3}, 9', f's_add_u32 {sT3}, {sT3}, {sT2}',
         f'v_and_b32 v{c}, 15, v{vL}', f'v_and_b32 v{c+1}, 0x30, v{vL}', f'v_lshl_add_u32 v{c+1}, v{c}, 6, v{c+1}', f'v_add_u32 v{c+1}, {sT3}, v{c+1}', f'v_mov_b32 v{c+2}, {OOB:#x}',
         [f'v_cmp_gt_u32 vcc, 8, v{c}', f's_lshl4_add_u32 {sT2}, {sT0}, {sT2}', f'v_lshrrev_b32 v{c}, 2, v0', f'v_cndmask_b32 v{vM2P}, v{c+2}, v{c+1}, vcc'],
         f'v_and_b32 v{c+1}, 0x30, v{vL16}', f'v_lshl_add_u32 v{c+1}, v{c}, 9, v{c+1}', f'v_add_u32 v{c+1}, {sT2}, v{c+1}',
         [f'v_cmp_gt_u32 vcc, 64, v0', f's_lshl_b32 {sT1}, {sT1}, 5', f's_add_u32 {sT1}, {sT1}, {sT0}', f'v_cndmask_b32 v{vM2Q}, v{c+2}, v{c+1}, vcc'],
         f's_lshl3_add_u32 {sT1}, {sT1}, 4096', f'v_lshl_add_u32 v{c+1}, v0, 3, {sT1}', f'v_and_b32 v{c}, 0xfd, v0',
         [f'v_cmp_eq_u32 vcc, 0, v{c}', f's_lshr_b32 {sT0}, {sXG}, 1', f's_cmp_eq_u32 {sT0}, 2', f's_cselect_b32 {sONE}, 1.0, 0', f'v_cndmask_b32 v{vM2O}, v{c+2}, v{c+1}, vcc']]
def m2_a():
    c = M2T; m = M2A
    o = [smov(sT0, 0x05040100), smov(sT1, 0x07060302), f'v_lshlrev_b32 v{c}, 16, v{M2S}', f'v_and_b32 v{c+1}, 0xffff0000, v{M2S}']
    for op in (f'v_mul_f32 v@2, {-LOG2E!r}, v@0', 'v_exp_f32 v@2, v@2', 'v_add_f32 v@2, 1.0, v@2', 'v_rcp_f32 v@2, v@2', 'v_mul_f32 v@0, v@0, v@2'):
        o += [op.replace('@2', str(c+2+k)).replace('@0', str(c+k)) for k in range(2)]
    o.append(f'v_cvt_pk_bf16_f32 v{M2S}, v{c}, v{c+1}')
    for d in range(4):
        t = M2T + 2*(d & 1)
        o += [f'v_perm_b32 v{t}, v{M2D+4+d}, v{M2D+d}, {sT0}', f'v_perm_b32 v{t+1}, v{M2D+4+d}, v{M2D+d}, {sT1}',
              f'v_dot2_f32_bf16 v{m+2*d}, v{t}, v{M2S}, 0', f'v_dot2_f32_bf16 v{m+2*d+1}, v{t+1}, v{M2S}, 0']
    o += [f'v_permlane32_swap_b32 v{m+i}, v{m+i+4}' for i in range(4)] + [f'v_add_f32 v{m+i}, v{m+i}, v{m+i+4}' for i in range(4)]
    o += [f'v_permlane16_swap_b32 v{m+i}, v{m+i+2}' for i in range(2)] + [f'v_add_f32 v{m+i}, v{m+i}, v{m+i+2}' for i in range(2)]
    o += [f'v_mov_b32 v{m+2}, s44', f'v_mov_b32 v{m+3}, s45']
    o += [f'v_add_f32_dpp v{m+i}, v{m+i}, v{m+i} row_ror:8 row_mask:0xf bank_mask:0xf' for i in range(2)]
    return o
def m2_st(): return [f'buffer_store_dwordx4 {v(M2A,4)}, v{vM2P}, {sWS}, 0 offen sc1']
def m2_ld2(): return [(f'buffer_load_dwordx4 {v(M2D,4)}, v{vM2Q}, {sWS}, 0 offen sc1', 'poll'), (f'buffer_load_dwordx4 {v(M2D+4,4)}, v{vM2Q}, {sWS}, {sG0} offen sc1', 'poll')]
def m2_check():
    check_loop(m2_ld2(), [f'v_cmp_ne_u64 vcc, {TAG}, {v(M2D+2,2)}', f'v_cmp_ne_u64 s[6:7], {TAG}, {v(M2D+6,2)}', f's_or_b64 vcc, vcc, s[6:7]',
                          f's_cselect_b32 s6, 1, 0', f's_cmp_gt_u32 s6, {sW}'], 'm2')
def m2_b():
    p = M2D; m = M2A
    o = [f'v_add_f32 v{p+i}, v{p+i}, v{p+4+i}' for i in range(2)]
    for rot in (4, 8):
        o += [f'v_add_f32_dpp v{p+i}, v{p+i}, v{p+i} row_ror:{rot} row_mask:0xf bank_mask:0xf' for i in range(2)]
    for n in (16, 32):
        o += [f'v_mov_b32 v{p+4+i}, v{p+i}' for i in range(2)] + [f'v_permlane{n}_swap_b32 v{p+i}, v{p+4+i}' for i in range(2)] + [f'v_add_f32 v{p+i}, v{p+i}, v{p+4+i}' for i in range(2)]
    o += [f'v_cvt_pk_bf16_f32 v{p+4}, v{p}, v{p+1}', f'v_lshlrev_b32 v{p}, 16, v{p+4}', f'v_and_b32 v{p+1}, 0xffff0000, v{p+4}',
          f'v_add_f32 v{p}, {sONE}, v{p}', f'v_add_f32 v{p+1}, {sONE}, v{p+1}', f'v_cvt_pk_bf16_f32 v{m}, v{p}, v{p+1}',
          f'v_mov_b32_dpp v{m+1}, v{m} quad_perm:[1,1,3,3] row_mask:0xf bank_mask:0xf',
          f'buffer_store_dwordx4 {v(m,4)}, v{vM2O}, {sWS}, 0 offen sc1']
    return o

AONE = 192
vXL = 151
def late_setup():
    o = [f'v_and_b32 v36, 1, v{vL}', f'v_cmp_eq_u32 {mP}, 1, v36', f'v_lshrrev_b32 v35, 4, v{vL}', f'v_lshl_add_u32 v35, v35, 2, v36',
         f'v_and_b32 v36, 15, v{vL}', f'v_cmp_le_u32 {mC0}, v35, v36', f'v_add_u32 v35, 2, v35', f'v_cmp_le_u32 {mC1}, v35, v36',
         f'v_mov_b32 v36, 0xffff', f'v_mov_b32 v35, 0xffff0000', f'v_cndmask_b32 v36, v36, v35, {mP}',
         f'v_cndmask_b32 v{MK}, v36, 0, {mC0}', f'v_cndmask_b32 v{MK+1}, v36, 0, {mC1}',
         f'v_cndmask_b32 v{MK+2}, 0, v36, {mC0}', f'v_cndmask_b32 v{MK+3}, 0, v36, {mC1}', f'v_mov_b32 v36, 0x3f803f80']
    o += [f'v_accvgpr_write_b32 a{AONE+i}, v36' for i in range(4)]
    o += [[f's_cmp_eq_u32 {sRB64}, 0', f's_cselect_b32 {sT0}, {f2u(-4e9):#x}, 0'], smov(sCS, f2u(0.25 * LOG2E))] + [f'v_mov_b32 v{BIAS+i}, {sT0}' for i in range(4)]
    o += [f's_mul_i32 {sT0}, {sRB64}, {2*86*1024}', f's_lshl2_add_u32 {sT1}, {sHQ}, {sW}', f's_lshl_b32 {sT1}, {sT1}, 9',
          f's_add_u32 {sT0}, {sT0}, {sT1}', f's_add_u32 {sT0}, {sT0}, {HB}', smov(sX0, 86*1024),
          f'v_bfe_u32 v35, v{vL}, 4, 1', f'v_lshlrev_b32 v35, 14, v35', f'v_lshrrev_b32 v36, 5, v{vL}', f'v_lshl_add_u32 v35, v36, 8, v35',
          f'v_and_b32 v36, 0xf0, v{vL16}', f'v_add3_u32 v{vOA}, v35, v36, {sT0}']
    o += [f's_lshl2_add_u32 {sT2}, {sRB64}, {sW}', f's_lshl_b32 {sT2}, {sT2}, 7', f's_add_u32 {sT2}, {sT2}, {sHQ}', f's_lshl_b32 {sT2}, {sT2}, 7',
          f's_lshr_b32 {sT3}, {sW}, 1', f's_lshl1_add_u32 {sLB}, {sRB64}, {sT3}', f's_mul_i32 {sLB}, {sLB}, {86*1024}',
          f's_and_b32 {sT3}, {sW}, 1', f's_lshl_b32 {sT3}, {sT3}, 14', f's_add_u32 {sLB}, {sLB}, {sT3}', f's_add_u32 {sLB}, {sLB}, {HB}',
          f'v_and_b32 v36, 15, v{vL}', f'v_lshl_add_u32 v36, v36, 10, {sT2}', f'v_bfe_u32 v35, v{vL}, 4, 1', f'v_lshl_add_u32 v36, v35, 5, v36', f'v_lshrrev_b32 v35, 5, v{vL}', f'v_lshl_add_u32 v{vXL}, v35, 4, v36']
    o += [f's_mul_i32 {sT0}, {sR}, 12', f's_sub_u32 {sT1}, 172, {sT0}', f's_lshl_b32 {sT0}, {sT0}, 4', f's_mul_i32 {sT2}, {sW}, {16*2752}', f's_add_u32 {sT0}, {sT0}, {sT2}',
          f'v_mov_b32 v37, {OOB:#x}']
    for t in range(3):
        o += [f'v_add_u32 v36, {64*t}, v{vL}', f'v_mul_u32_u24 v35, 171, v36', f'v_lshrrev_b32 v35, 11, v35', f'v_mul_u32_u24 v32, 12, v35', f'v_sub_u32 v36, v36, v32',
              [f'v_cmp_gt_i32 vcc, {sT1}, v36', f'v_mul_u32_u24 v35, 2752, v35', f'v_lshl_add_u32 v36, v36, 4, {sT0}', f'v_add_u32 v36, v36, v35',
              f'v_cndmask_b32 v{vW1+t}, v37, v36, vcc']] + ([f's_sub_u32 {sT0}, {sT0}, 1024'] if t < 2 else [])
    o += [f'v_lshlrev_b32 v36, 4, v0', f'v_add_u32 v{vG2A}, 4096, v36', smov(sG1, 4096), smov(sG0, 8192), f'v_lshlrev_b32 v36, 3, v0', f'v_add_u32 v{vG2W}, {MV}, v36']
    return o

def check_loop(loads, cmps, name='-'):
    L, D = A.uniq('chk'), A.uniq('ok')
    I(smov(sCNT, SPIN))
    A.waitvm('poll')
    ts(name + 'r')
    A.settle()
    A.label(L)
    R(cmps)
    I(f's_cbranch_scc0 {D}')
    A.cond = L
    I(f's_sub_u32 {sCNT}, {sCNT}, 1')
    I(f's_cbranch_scc1 {D}')
    R(loads)
    A.vm0()
    I(f's_branch {L}')
    A.cond = None
    A.label(D)
    if DEBUG and name + 'n' in (TSSEL or ()):
        i = len(tsnames); tsnames.append(name + 'n')
        A.lg0(force=True)
        R([f's_sub_u32 {sCNT}, {SPIN}, {sCNT}', f's_mul_i32 {sCNT}, {sCNT}, 10000', f's_add_u32 s{TS0+2*i}, s{TS0}, {sCNT}', f's_addc_u32 s{TS0+2*i+1}, s{TS0+1}, 0'])

vPD = 4
def poll_load(phase): return (f'buffer_load_dwordx2 v[4:5], v{vFO}, {sWS}, 0 offen offset:{phase*512} sc1', 'poll')
def poll_check(phase, mask):
    check_loop([poll_load(phase)], [f'v_cmp_ne_u64 vcc, {TAG}, v[4:5]', f's_and_b64 vcc, vcc, {mask}'], f'p{phase}')

slow_blocks = []
def pubs(body): return [((o.replace('@', ''), 'pub') if isinstance(o, str) and '@' in o else o) for o in body]
def publish(body, phase, bg=(), shadow=(), stores=None):
    S, J = A.uniq('slow'), A.uniq('join')
    stores = [o for o in (stores or body) if '@' in o]
    R(pubs(body))
    I(f's_cmp_eq_u32 {sFAST}, 0')
    I(f's_cbranch_scc1 {S}')
    A.label(J)
    R(pace(list(shadow), list(bg), period=opt('bgper', 40)) if shadow else list(bg))
    A.waitvm('pub')
    I(f'buffer_store_dwordx2 {v(vTAG,2)}, v{vFS}, {sWS}, 0 offen offset:{phase*512}')
    def slow():
        A.label(S)
        I('s_nop 7')
        R([o.replace('@', ' sc1') for o in stores])
        A.vm0()
        I(f'buffer_store_dwordx2 {v(vTAG,2)}, v{vFS}, {sWS}, 0 offen offset:{phase*512} sc1')
        A.settle()
        I(f's_branch {J}')
    slow_blocks.append(slow)

def g1_load(): return [(f'buffer_load_dwordx4 {v(GD,4)}, v{vGA}, {sWS}, 0 offen sc1', 'poll')] if opt('nohel') else [(f'buffer_load_dwordx4 {v(HD,4)}, v{vHA}, {sWS}, 0 offen sc1', 'poll'), (f'buffer_load_dwordx4 {v(GD,4)}, v{vGA}, {sWS}, 0 offen sc1', 'poll')]
def g1_check():
    check_loop(g1_load(), [f'v_cmp_ne_u64 vcc, {TAG}, {v(GD+2,2)}', f'v_cmp_ne_u64 s[6:7], {TAG}, {v((GD if opt("nohel") else HD)+2,2)}', f's_or_b64 vcc, vcc, s[6:7]'], 'g1')
G2 = 80
vG2A, vG2W = 248, 249
def g2_loads():
    g = G2
    return [(f'buffer_load_dwordx4 {v(g,4)}, v{vG2A}, {sWS}, 0 offen sc1', 'poll'),
            (f'buffer_load_dwordx4 {v(g+4,4)}, v{vG2A}, {sWS}, {sG1} offen sc1', 'poll')]
def g2_check():
    g = G2
    check_loop(g2_loads(), [f'v_cmp_ne_u64 vcc, {TAG}, {v(g+2,2)}', f'v_cmp_ne_u64 s[6:7], {TAG}, {v(g+6,2)}', f's_or_b64 vcc, vcc, s[6:7]'], 'g2')
def g2_post():
    g = G2
    return [f'ds_write_b64 v{vG2W}, {v(g,2)}', f'ds_write_b64 v{vG2W}, {v(g+4,2)} offset:2048']

ACC = 24
def accQ(T): return ACC + 4 * (T - 1)
def accK(T): return ACC + 16 + 4 * T
def accV(T): return ACC + 36 + 4 * T
HFR = 96
def h_read(ks):
    return [f'ds_read_b128 {v(HFR+20*(ks&1)+4*T,4)}, v{vHR+(ks&3)} offset:{((ks>>2)&1)*20480+T*4096}' for T in range(5)]
def qkv_mfma(ks):
    o = []
    for T in range(5):
        h = v(HFR + 20 * (ks & 1) + 4 * T, 4)
        def m(d, x, y): o.append(f'v_mfma_f32_16x16x32_bf16 {v(d,4)}, {x}, {y}, ' + ('0' if ks == 0 else v(d, 4)))
        m(accK(T), a_(12*ks+4, 4), h)
        m(accV(T), h, a_(12*ks+8, 4))
        if T: m(accQ(T), a_(12*ks, 4), h)
    return o

AUA, AGA, AG2, AGB = 192, 224, 232, 248
def modvec_read():
    o = [f's_lshl_b32 {sT0}, {sHQ}, 7', f's_add_u32 {sT0}, {sT0}, {MV}', f'v_lshrrev_b32 v14, 4, v{vL}', f'v_lshl_add_u32 v14, v14, 3, {sT0}']
    for j in range(4):
        o.append(f'ds_read_b64 {v(CG+4*j+2,2)}, v14 offset:{32*j}')
        o.append(f'ds_read_b64 {v(CG+16+4*j+2,2)}, v14 offset:{2048+32*j}')
    o += [f's_and_b32 {sT1}, {sW}, 1', f's_lshl_b32 {sT1}, {sT1}, 6', f's_add_u32 {sT0}, {sT0}, {sT1}',
          f'v_lshrrev_b32 v15, 5, v{vL}', f'v_lshl_add_u32 v14, v15, 3, {sT0}']
    for q in range(4):
        o.append(f'ds_read_b64 {a_(AGB+2*q,2)}, v14 offset:{3072+16*q}')
    o += [f's_lshl_b32 {sT0}, {sW}, 8', f's_add_u32 {sT0}, {sT0}, {MV+1024}', f'v_lshl_add_u32 v15, v15, 3, {sT0}',
          f'v_and_b32 v14, 4, v{vL}', f'v_lshl_add_u32 v14, v14, 8, v15']
    for i in range(8):
        for hr in range(2):
            o.append(f'ds_read_b64 {a_(AUA+4*i+2*hr,2)}, v14 offset:{(i>>1)*64+(i&1)*16+hr*32}')
    return o

MK, ONE, BIAS = 216, 220, 224
def attention():
    QB, KB, VB = 136, 144, 154
    SC, SP = 164, 180
    LG, MX = 196, 204
    PB, OA, SM = 164, 180, 228
    OS = 208
    o = []
    def cvt(d, s): return [f'v_cvt_pk_bf16_f32 v{d}, v{s}, v{s+1}', f'v_cvt_pk_bf16_f32 v{d+1}, v{s+2}, v{s+3}']
    o += cvt(KB, accK(0))
    for T in range(1, 5): o += cvt(KB + 2*T, accK(T)) + cvt(QB + 2*(T-1), accQ(T))
    for T in range(1, 5):
        t = T - 1
        o.append(f'v_mfma_f32_16x16x16_bf16 {v(SC+4*t,4)}, {v(KB+2*T,2)}, {v(QB+2*t,2)}, 0')
        if T == 1: o += cvt(VB, accV(0))
        o.append(f'v_mfma_f32_16x16x16_bf16 {v(SP+4*t,4)}, {v(KB+2*t,2)}, {v(QB+2*t,2)}, ' + (v(BIAS, 4) if T == 1 else '0'))
        o += cvt(VB + 2*T, accV(T))
    for t in range(4):
        for e in range(2):
            o.append(f'v_cndmask_b32 v{SC+4*t+2*e}, v{SC+4*t+2*e}, v{SC+4*t+2*e+1}, {mP}')
            o.append(f'v_cndmask_b32 v{SP+4*t+2*e}, v{SP+4*t+2*e}, v{SP+4*t+2*e+1}, {mP}')
            o.append(f'v_cndmask_b32 v{LG+2*t+e}, v{SP+4*t+2*e}, v{SC+4*t+2*e}, {mC1 if e else mC0}')
        o.append(f'v_max_f32 v{MX+t}, v{LG+2*t}, v{LG+2*t+1}')
    cs = 0.25 * LOG2E
    o += [f'v_permlane16_swap_b32 v{MX}, v{MX+1}', f'v_permlane16_swap_b32 v{MX+2}, v{MX+3}',
          f'v_max_f32 v{MX}, v{MX}, v{MX+1}', f'v_max_f32 v{MX+2}, v{MX+2}, v{MX+3}',
          f'v_permlane32_swap_b32 v{MX}, v{MX+2}', f'v_max_f32 v{MX}, v{MX}, v{MX+2}',
          f'v_mul_f32 v{MX+2}, {f2u(-cs):#x}, v{MX}', f'v_mul_f32 v{MX}, {f2u(-cs):#x}, v{MX}',
          f'v_permlane32_swap_b32 v{MX}, v{MX+2}', f'v_mov_b32 v{MX+1}, v{MX}', f'v_mov_b32 v{MX+3}, v{MX+2}',
          f'v_permlane16_swap_b32 v{MX}, v{MX+1}', f'v_permlane16_swap_b32 v{MX+2}, v{MX+3}']
    for t in range(4):
        for e in range(2): o.append(f'v_fma_f32 v{LG+2*t+e}, v{LG+2*t+e}, {sCS}, v{MX+t}')
    for t in range(4):
        for e in range(2): o.append(f'v_exp_f32 v{LG+2*t+e}, v{LG+2*t+e}')
    def pv(u): return [f'v_mfma_f32_16x16x32_bf16 {v(SM+4*u,4)}, {a_(AONE,4)}, {v(PB+4*u,4)}, 0',
                       f'v_mfma_f32_16x16x32_bf16 {v(OA+4*u,4)}, {v(VB+2*u,4)}, {v(PB+4*u,4)}, 0']
    for t in range(4):
        p = [f'v_cvt_pk_bf16_f32 v{LG+2*t+e}, v{LG+2*t+e}, v{LG+2*t+e}' for e in range(2)]
        p += [f'v_and_b32 v{PB+4*t+i}, v{MK+i}, v{LG+2*t+(i&1)}' for i in range(4)]
        if t:
            m = pv(t - 1)
            p = p[:2] + [m[0]] + p[2:4] + [m[1]] + p[4:]
        o += p
    def fin(t): return [f'v_rcp_f32 v{SM+4*t}, v{SM+4*t}'] + [f'v_mul_f32 v{OA+4*t+i}, v{OA+4*t+i}, v{SM+4*t}' for i in range(4)] + cvt(OS + 2*t, OA + 4*t)
    m = pv(3)
    f0 = fin(0)
    o += f0[:2] + [m[0]] + f0[2:4] + [m[1]] + f0[4:] + fin(1)
    tail = [f'v_permlane16_swap_b32 v{OS+i}, v{OS+2+i}' for i in range(2)]
    tail += [f'buffer_store_dwordx4 {v(OS,4)}, v{vOA}, {sWS}, 0 offen@']
    tail += fin(2) + fin(3)
    tail += [f'v_permlane16_swap_b32 v{OS+4+i}, v{OS+6+i}' for i in range(2)]
    tail += [f'buffer_store_dwordx4 {v(OS+4,4)}, v{vOA}, {sWS}, {sX0} offen@']
    return o, tail

vW1 = 252
def w1_issue(i):
    g = ctx([([f's_add_u32 m0, {sM3}, {RB + i*12288}', smov(sD, i*64*2752)] if t == 0 else []) +
            [(f'buffer_load_dwordx4 v{vW1+t}, {sW1}, {sD} offen offset:{1024*t}{NT(2)} lds', f'w1_{i}')] for t in range(3)])
    if i in A2:
        k = A2.index(i)
        def f():
            assert A.tokc[f'w2r{k}'] >= 6
            A.waitlg(f'w2r{k}')
        g[0] = [f] + g[0]
    return g

X1 = 24
CG = 40
CAC = 72
CO = 96
CW = 160
vC = 10
vYA, vSA = 14, 15
XC = 88
def c_xload():
    return [f'buffer_load_dwordx4 {v(XC+4*j,4)}, v{vXL}, {sX}, 0 offen offset:{64*j}' for j in range(2)]

def c_base():
    return tr_base(vC, 0, 1024, tmp=16) + [f'v_xor_b32 v{vC+j}, {32*j}, v{vC}' for j in range(1, 4)]
def c_unpack():
    o = []
    for j in range(8):
        r = CG + 4*j
        o += [f'v_lshlrev_b32 v{r}, 16, v{r+2}', f'v_and_b32 v{r+1}, 0xffff0000, v{r+2}', f'v_lshlrev_b32 v{r+2}, 16, v{r+3}', f'v_and_b32 v{r+3}, 0xffff0000, v{r+3}']
    o = [f'v_permlane16_swap_b32 v{XC+4*j+i}, v{XC+4*j+2+i}' for j in range(2) for i in range(2)] + o
    for k in range(8):
        o += [f'v_lshlrev_b32 v{X1+2*k}, 16, v{XC+k}', f'v_and_b32 v{X1+2*k+1}, 0xffff0000, v{XC+k}']
    return o
def c_addr():
    o = []
    o += [f's_lshl_b32 {sT0}, {sRB64}, 16', f's_lshr_b32 {sT1}, {sW}, 1', f's_lshl_b32 {sT1}, {sT1}, 15', f's_add_u32 {sT0}, {sT0}, {sT1}',
          f's_lshl_b32 {sT1}, {sHQ}, 12', f's_add_u32 {sT0}, {sT0}, {sT1}', f's_and_b32 {sT1}, {sW}, 1', f's_lshl_b32 {sT1}, {sT1}, 8',
          f's_add_u32 {sS0}, {sT0}, {sT1}',
          f'v_lshrrev_b32 v16, 4, v{vL}', f'v_and_b32 v{vYA}, 0xf0, v{vL16}', f'v_lshl_add_u32 v{vYA}, v16, 9, v{vYA}',
          f's_lshl_b32 {sT0}, {sRB64}, 12', f's_lshl_b32 {sT1}, {sW}, 10', f's_add_u32 {sT0}, {sT0}, {sT1}', f's_lshl_b32 {sT1}, {sHQ}, 3',
          f's_add_u32 {sT0}, {sT0}, {sT1}', f's_add_u32 {sS1}, {sT0}, {STATS}',
          f'v_and_b32 v{vSA}, 15, v{vL}', f'v_lshlrev_b32 v{vSA}, 6, v{vSA}', f'v_and_b32 v16, 1, v16', f'v_lshl_add_u32 v{vSA}, v16, 2, v{vSA}']
    return o

def frag_loads(dst, n, sreg, bump=None, srd=sWS):
    g = []
    for i in range(n):
        o = []
        if i and i % 4 == 0: o.append(f's_add_u32 {sreg}, {sreg}, ' + (bump if (bump and i == 20) else '4096'))
        o.append(f'buffer_load_dwordx4 {v(dst+4*i,4)}, v{vL16}, {srd}, {sreg} offen offset:{(i&3)*1024} sc1')
        g.append(o)
    return g

def cw(ks, j, n):
    ks %= 12
    return a_(80+16*ks+j, n) if ks < 7 else v(CW+16*(ks-7)+j, n)
def c_rd(ks):
    return [f'ds_read_b64_tr_b16 {cw(ks, 4*j+2*hr, 2)}, v{vC+j} offset:{RA+ks*4096+hr*512}' for j in range(4) for hr in range(2)]
def c_main(bg, npre, extra, pre):
    i7 = [i for i, g in enumerate(bg) if isinstance(g, list) and isinstance(g[-1], tuple) and g[-1][1] == 'w1_7'][0]
    bg = list(bg); bg[i7] = ['s_barrier'] + bg[i7]
    ld = frag_loads(CO, 16, sLB) + bg
    LA = opt('cla', 8)
    R(pace(pre, ld[:LA], period=opt('cper', 0)))
    rd = cat(*[c_rd(k) for k in range(npre, 16)])
    n0 = opt('crd0', 32)
    R(rd[:n0]); rd = rd[n0:]
    mm = [f'v_mfma_f32_16x16x32_bf16 {v(CAC+4*j,4)}, {cw(ks, 4*j, 4)}, {v(CO+4*ks,4)}, ' + ('0' if ks == 0 else v(CAC+4*j,4)) for ks in range(16) for j in range(4)]
    pins = {4*k: flat(ld[k+LA]) for k in range(16) if k + LA < len(ld)}
    seq = gaps(mm, [(rd, 0, min(64, max(1, len(rd)*2//3))), (extra, 0, 64)], pins)
    for ks in range(12, 16): assert min(seq.index(o) for o in c_rd(ks)) > seq.index(mm[4*(ks-12)+3])
    for ks in range(npre, 16): assert all(o not in seq or seq.index(o) < seq.index(mm[4*ks]) - 6 for o in c_rd(ks))
    ts('c0')
    R(seq)
    ts('cend')
    return ld[16+LA:]

def c_epi():
    YT, YP = 96, 112
    o = []
    for h in range(2):
        ks = range(4*h, 4*h+4)
        o += [f'v_pk_fma_f32 {v(X1+2*k,2)}, {v(CAC+2*k,2)}, {v(CG+2*k,2)}, {v(X1+2*k,2)}' for k in ks]
        o += [f'v_pk_mul_f32 {v(YT+2*k,2)}, {v(X1+2*k,2)}, {v(CG+16+2*k,2)}' for k in ks]
        o += [f'v_cvt_pk_bf16_f32 v{YP+k}, v{YT+2*k}, v{YT+2*k+1}' for k in ks]
        o += [f'buffer_store_dwordx4 {v(YP+4*h,4)}, v{vYA}, {sOUT}, {sS0} offen offset:{2048*h}@']
    o += [f'v_pk_add_f32 v[120:121], {v(X1,2)}, {v(X1+2,2)}', f'v_pk_mul_f32 v[122:123], {v(X1,2)}, {v(X1,2)}']
    for k in range(1, 8):
        if k > 1: o.append(f'v_pk_add_f32 v[120:121], v[120:121], {v(X1+2*k,2)}')
        o.append(f'v_pk_fma_f32 v[122:123], {v(X1+2*k,2)}, {v(X1+2*k,2)}, v[122:123]')
    o += ['v_add_f32 v120, v120, v121', 'v_add_f32 v122, v122, v123', 'v_permlane16_swap_b32 v120, v122', 'v_add_f32 v120, v120, v122',
          'v_mov_b32 v122, v120', 'v_permlane32_swap_b32 v120, v122', 'v_add_f32 v120, v120, v122',
          f'buffer_store_dword v120, v{vSA}, {sWS}, {sS1} offen@']
    return o

NA2 = opt('na2', 6)
A2 = [2, 3, 4, 5, 6, 1][:NA2]
def w2_rebase():
    return [[f's_mul_i32 {sT0}, {sW}, {12*K}', f's_sub_u32 {sT0}, {sT0}, {RB + 12*K}', f'v_add_u32 v{vW2R}, {sT0}, v{vW2R}', f'v_add_u32 v{vW2R+1}, {sT0}, v{vW2R+1}']]
def w2a_issue(i):
    g = []
    for p in range(3):
        ld = (f'buffer_load_dwordx4 v{vW2}, {sW2}, {sD} offen offset:{1024*p}{NT(3)} lds', f'w2a{i}')
        CTX[ld] = [f's_add_u32 m0, {sM3}, {RB + A2[i]*12288}', smov(sD, (3*i+p)*8192 - 1024*p)]
        g.append(CTX[ld][(1 if p else 0):] + [ld])
    return g
def w2_frag(b, off, tok=None):
    s, hr = divmod(b, 2)
    return [(f'ds_read_b64_tr_b16 {a_(8*s+4*slot+2*hr,2)}, v{vW2R+slot} offset:{off}', tok) for slot in range(2)]
def w2a_read(i):
    f = lambda: A.waitvm(f'w2a{i}')
    return [f] + cat(*[w2_frag(3*i+p, (A2[i]-1)*12288 + 1024*p, f'w2r{i}') for p in range(3)])
NB2 = 44 - 3*NA2
def w2_issue(b):
    def f():
        assert A.tokc[f'w2s{b-15}'] == 2
        A.waitlg(f'w2s{b-15}')
    return ([f] if b >= 15 else []) + [f's_add_u32 m0, {sM2}, {b%15*1024}', smov(sD, (3*NA2+b)*8192), (f'buffer_load_dwordx4 v{vW2}, {sW2}, {sD} offen{NT(3)} lds', f'w2_{b}')]
def w2_read(b): return [[lambda: A.waitvm(f'w2_{b}', 1)] + w2_frag(3*NA2+b, b%15*1024, f'w2s{b}')]

DAC, DW, DST, DY = 40, 88, 112, 128
vD = 10
vUT, vSB = 120, 123
vST = 16
def d_setup():
    o = [f'v_lshrrev_b32 v16, 5, v{vL}', f'v_bfe_u32 v{vD}, v{vL}, 2, 2', f'v_lshl_add_u32 v16, v16, 2, v{vD}', f'v_mul_u32_u24 v{vD}, 192, v16',
         f'v_bfe_u32 v16, v{vL}, 4, 1', f'v_lshl_add_u32 v{vD}, v16, 5, v{vD}', f'v_and_b32 v16, 3, v{vL}', f'v_lshl_add_u32 v{vD}, v16, 3, v{vD}',
         f'v_add_u32 v{vD}, {RB}, v{vD}', f'v_add_u32 v{vD+1}, {4*12288}, v{vD}',
         f's_mul_i32 {sT0}, {sW}, {2*12288}', f'v_add_u32 v13, {sT0}, v{vD}']
    return o
def d_setup2():
    return [
        f'v_and_b32 v{vST}, 31, v{vL}', f'v_lshlrev_b32 v{vST}, 6, v{vST}', f'v_and_b32 v17, 32, v{vL}', f'v_add_u32 v{vST}, v{vST}, v17',
        f's_lshl_b32 {sT0}, {sGRP}, 2', f's_add_u32 {sT0}, {sT0}, {sW}',
        f's_lshl_b32 {sLB2}, {sT0}, 11', f's_add_u32 {sLB2}, {sLB2}, {STATS}',
        f's_lshl_b32 {sLB}, {sT0}, 15',
        f's_mul_i32 {sT0}, {sT0}, {86*1024}', f's_mul_i32 {sT1}, {sR}, {6*1024}', f's_add_u32 {sT0}, {sT0}, {sT1}',
        f's_add_u32 {sS0}, {sT0}, {HB}', f's_add_u32 {sS1}, {sS0}, 2048', f's_add_u32 {sS2}, {sS0}, 4096',
        [f's_cmp_ge_u32 {sR}, 14', f's_cselect_b32 {sS1}, {OOB:#x}, {sS1}', f's_cselect_b32 {sS2}, {OOB:#x}, {sS2}'],
        [f's_cmp_eq_u32 {sR}, 15', f's_cselect_b32 {sS0}, {OOB:#x}, {sS0}'],
        smov(sT1, 0xcccccccc),
        [f's_bitcmp1_b32 {sW}, 0', f's_cselect_b32 {sT0}, {sT1}, 0x33333333'],
        [f's_bitcmp1_b32 {sW}, 1', f's_cselect_b32 s62, 0, {sT0}', f's_cselect_b32 s63, {sT0}, 0'],
        f's_mul_i32 {sT0}, {sW}, 768', f's_add_u32 {sT0}, {sT0}, {UT}', f'v_lshl_add_u32 v17, v{vL}, 2, {sT0}',
        f'v_lshlrev_b32 v7, 2, v{vL}', f'v_add_u32 v7, {UT}, v7',
    ]

def w1_rd(k16, buf, base=vD, ts_=range(3)):
    return [f'ds_read_b64_tr_b16 {v(DW+12*buf+4*t+2*hr,2)}, v{base+(k16>>4)} offset:{((k16>>2)&3)*12288+t*64+((k16>>1)&1)*6144+hr*3072+(k16&1)*1536}' for t in ts_ for hr in range(2)]

def d_ut(extra, at):
    R(w1_rd(0, 0, 13))
    for i in range(8):
        R(at.get(i, []))
        mm = [f'v_mfma_f32_32x32x16_bf16 {v(DAC+16*t,16)}, {a_(AUA+4*i,4)}, {v(DW+12*(i&1)+4*t,4)}, ' + ('0' if i == 0 else v(DAC+16*t,16)) for t in range(3)]
        R(mweave(mm, (w1_rd(i+1, (i+1)&1, 13) if i < 7 else d_frag(0) + d_frag(1) + d_frag(2)) + extra[i]))
    R(at.get(8, []))
    R([(f'ds_write_b32 v17, v{DAC+16*t} offset:{256*t}', 'utw') for t in range(3)])
UTT = 244
def d_ut2():
    o = [f'ds_read_b32 v{UTT+3*w+t}, v7 offset:{768*w+256*t}' for w in range(4) for t in range(3)]
    for t in range(3):
        o += [f'v_add_f32 v{UTT+t}, v{UTT+t}, v{UTT+3+t}', f'v_add_f32 v{UTT+6+t}, v{UTT+6+t}, v{UTT+9+t}', f'v_add_f32 v{vUT+t}, v{UTT+t}, v{UTT+6+t}']
    return o

def stats_load(dst, sreg):
    return [f'buffer_load_dwordx4 {v(dst,4)}, v{vST}, {sWS}, {sreg} offen sc1', f'buffer_load_dwordx4 {v(dst+4,4)}, v{vST}, {sWS}, {sreg} offen offset:16 sc1']

def stats_ops(d):
    o = []
    for e in range(2):
        o.append(f'v_add_f32 v{d+e}, v{d+e}, v{d+2+e}')
        o.append(f'v_add_f32 v{d+4+e}, v{d+4+e}, v{d+6+e}')
    for e in range(2): o.append(f'v_add_f32 v{d+2+e}, v{d+e}, v{d+4+e}')
    for e in range(2): o.append(f'v_add_f32 v{d+e}, v{d+e}, v{d+4+e}')
    o.append(f'v_mov_b32 v{d+4}, {f2u(1e-5):#x}')
    for e in range(2): o.append(f'v_permlane32_swap_b32 v{d+e}, v{d+2+e}')
    for e in range(2): o.append(f'v_add_f32 v{d+e}, v{d+e}, v{d+2+e}')
    o.append(f'v_mul_f32 v{d}, {f2u(1/512):#x}, v{d}')
    o.append(f'v_fmac_f32 v{d+4}, {f2u(1/512):#x}, v{d+1}')
    o.append(f'v_fma_f32 v{d+1}, -v{d}, v{d}, v{d+4}')
    o.append(f'v_max_f32 v{d+1}, {f2u(1e-5):#x}, v{d+1}')
    return o

def lead_order(n, m):
    o = sorted([((k + 0.1) / n, 0, k) for k in range(n)] + [((k + 0.1 + 0.3*t) / (n - m), t, k) for t in (1, 2) for k in range(n - m)])
    return [(t, k) for _, t, k in o] + [(t, k) for t in (1, 2) for k in range(n - m, n)]
def d_frag(i):
    t, k = lead_order(32, opt('dm', 8))[i]
    return [re.sub(r'v\[\d+:\d+\]', v(DW+4*(i%6)+2*hr, 2), o, 1) for hr, o in enumerate(w1_rd(k, 0, ts_=[t]))]
def d_main(ld, nb, n0):
    M = opt('dm', 8)
    order = lead_order(32, M)
    pos = {tk: i for i, tk in enumerate(order)}
    mm = [f'v_mfma_f32_32x32x16_bf16 {v(DAC+16*t,16)}, {v(DW+4*(i%6),4)}, {v(DY+4*k,4)}, ' + ('0' if k == 0 else v(DAC+16*t,16)) for i, (t, k) in enumerate(order)]
    fq = [Op(d_frag(i), i - 5, rel=max(0, i - 6), dl=max(0, i - 4)) for i in range(3, 96)]
    so = stats_ops(DST) + [f'v_sqrt_f32 v{DST+1}, v{DST+1}', [f'v_cmp_gt_u32 vcc, 32, v{vL}', f'v_sub_f32 v{DST}, 0, v{DST}', 's_nop 0',
                           f'v_cndmask_b32 v{vSB}, v{DST}, v{DST+1}, vcc']]
    UB, KC = opt('dub', 4), opt('dkc', 24)
    tail = {UB: [lambda: A.waitlg('utw'), 's_barrier']}
    xq = lin(so, 1, 10, dl=KC - 3) + lin(d_ut2(), UB + 1, UB + 12, dl=KC - 3) + lin(e_pre0(), KC, 60)
    epi = d_epi()
    xq += lin(pubs(epi[0]), pos[0, 31] + 3, pos[0, 31] + 3 + max(M, 1)) + lin(pubs(epi[1]), pos[1, 31] + 3, pos[1, 31] + 3 + max(M - 3, 0)) if M >= 4 else []
    YW, Y0, PER, ND2 = opt('dyw', 99), opt('dy0', 0), opt('dper', 75) / 32, opt('ndd', 11)
    k0 = 32 - len(ld); q = []; b = nb; land = {x: 0 for x in range(n0)}
    for i, g in enumerate(ld):
        q.append((g, pos[0, k0 + i] - 4))
        for x in range(n0, b): land.setdefault(x, pos[0, k0 + i])
        if i >= Y0 and (i - Y0) % YW == YW - 1 and b < min(NB2, nb + ND2): q.append((b, 0)); b += 1
    while b < min(NB2, nb + ND2): q.append((b, 0)); b += 1
    rop = {}; rq = []; at = 1
    for x in sorted(land):
        at = max(at + 0.7, land[x] + 1); rop[x] = Op(w2_read(x)[0], at, rel=land[x] + 1); rq.append(rop[x])
    vq = []; p = 0
    for g, dl in q:
        if isinstance(g, int):
            if g >= 15 and g - 15 not in rop or p > 93: b = g; break
            vq.append(Op(w2_issue(g), p, rel=int(p), dl=95, ahead=0, deps=[rop[g-15]] if g >= 15 else [], lag=3))
        else:
            if 4*(k0 + ld.index(g)) + DY + 4 > UTT: assert p > UB + 16
            vq.append(Op(g, p, rel=min(int(p), dl), dl=dl, ahead=0))
        p += PER
    for t in range(3):
        g = [i for i in range(KC, 64) if t not in (order[i][0], order[i+1][0])][t]
        tail.setdefault(g, []).append(f'v_mfma_f32_32x32x2_f32 {v(DAC+16*t,16)}, v{vUT+t}, v{vSB}, {v(DAC+16*t,16)}')
    for k in (1, 8, 16, 24): tail.setdefault(3*k - 1, []).append(lambda k=k: ts(f'd{k}'))
    R(gsched(mm, [fq, vq, rq, xq], tail, 0, 0, window=12))
    ts('dend')
    return b, len(rop), (epi[2] if M >= 4 else cat(*epi))

def d_epi():
    HP = 128
    r = []
    for t in range(3):
        o = []
        for s in range(2):
            ks = range(4*s, 4*s+4)
            o += [f'v_cvt_pk_bf16_f32 v{HP+8*t+k}, v{DAC+16*t+2*k}, v{DAC+16*t+2*k+1}' for k in ks]
            o += [f'v_pk_max_i16 v{HP+8*t+k}, v{HP+8*t+k}, 0' for k in ks]
            o.append(f'buffer_store_dwordx4 {v(HP+8*t+4*s,4)}, v{vL16}, {sWS}, {[sS0,sS1,sS2][t]} offen offset:{1024*s}@')
        r.append(o)
    return r

EH, EAC, XE, EST, EG = 80, 176, 40, 56, 64
sE0, sE1, sE2, sE3 = 's28', 's29', 's30', 's31'
def e_pre0():
    o = [f's_lshl_b32 {sT0}, {sRB64}, 1', f's_lshr_b32 {sT1}, {sW}, 1', f's_add_u32 {sT0}, {sT0}, {sT1}',
         f's_lshl_b32 {sE3}, {sT0}, 11', f's_add_u32 {sE3}, {sE3}, {STATS}',
         f's_xor_b32 {sT1}, {sT0}, 1', f's_mul_i32 {sE0}, {sT1}, {86*1024}', f's_mul_i32 {sE1}, {sT0}, {86*1024}',
         f's_mul_i32 {sT1}, {sW}, {22*1024}', f's_add_u32 {sT1}, {sT1}, {HB}', f's_add_u32 {sE0}, {sE0}, {sT1}', f's_add_u32 {sE1}, {sE1}, {sT1}',
         smov(sE2, 4096), [f's_cmp_eq_u32 {sW}, 3', f's_cselect_b32 {sE2}, {OOB:#x}, {sE2}']]
    o += [f's_mul_i32 {sT0}, {sW}, 11', f'v_lshrrev_b32 v12, 2, v{vL}', f'v_mul_u32_u24 v12, 3, v12', f'v_add_u32 v13, 2, v12',
          f'v_cmp_le_u32 {mC0}, {sT0}, v13', f's_add_u32 {sT0}, {sT0}, 10', f's_min_u32 {sT0}, {sT0}, 42', f'v_cmp_ge_u32 {mC1}, {sT0}, v12',
          f'v_bfe_u32 v12, v{vL}, 1, 1', f's_and_b32 {sT0}, {sRB64}, 1', f'v_cmp_eq_u32 {mP}, {sT0}, v12',
          f's_and_b64 {mC0}, {mC0}, {mC1}', f's_and_b64 {mC0}, {mC0}, {mP}']
    return o
def e_pre1():
    o = [f's_lshl_b32 {sT0}, {sW}, 4', f'v_and_b32 v10, 15, v{vL}', f'v_add_u32 v10, {sT0}, v10', f'v_mul_u32_u24 v10, 272, v10',
         f'v_and_b32 v11, 0x30, v{vL}', f'v_add_u32 v10, v10, v11', f'v_add_u32 v10, {XT}, v10']
    o += [f'ds_write_b128 v10, {v(X1+4*j,4)} offset:{64*j}' for j in range(4)]
    o += [f's_lshr_b32 {sT0}, {sW}, 1', f's_mul_i32 {sT0}, {sT0}, {32*272}', f's_and_b32 {sT1}, {sW}, 1', f's_lshl_b32 {sT1}, {sT1}, 7',
          f's_add_u32 {sT0}, {sT0}, {sT1}', f's_add_u32 {sT0}, {sT0}, {XT}',
          f'v_and_b32 v10, 31, v{vL}', f'v_mul_u32_u24 v10, 272, v10', f'v_lshrrev_b32 v11, 5, v{vL}', f'v_lshlrev_b32 v11, 4, v11',
          f'v_add3_u32 v10, v10, v11, {sT0}']
    return o
def e_pre2():
    o = [f'ds_read_b128 {v(XE+4*q,4)}, v10 offset:{32*q}' for q in range(4)]
    for rel in (1, 2, 3):
        o += [f's_xor_b32 {sT0}, {sW}, {rel}', f's_mul_i32 {sT0}, {sT0}, 12288', f's_add_u32 {sT0}, {sT0}, {EX + (rel-1)*4096}', f'v_add_u32 v{10+rel}, {sT0}, v{vL16}']
    for k in range(8):
        o += [f'v_accvgpr_read_b32 v{EG+2*k+1}, a{AGB+k}', f'v_lshlrev_b32 v{EG+2*k}, 16, v{EG+2*k+1}', f'v_and_b32 v{EG+2*k+1}, 0xffff0000, v{EG+2*k+1}']
    o += stats_ops(EST) + [f'v_rsq_f32 v{EST}, v{EST+1}']
    o += [f's_mul_i32 {sT0}, {sW}, 12288', f's_add_u32 {sT0}, {sT0}, {EX}', f'v_add_u32 v14, {sT0}, v{vL16}']
    o += [f'v_mul_f32 v{EG+k}, v{EST}, v{EG+k}' for k in range(16)]
    o += [f's_lshl_b32 {sT0}, {sRB64}, 16', f's_lshr_b32 {sT1}, {sW}, 1', f's_lshl_b32 {sT1}, {sT1}, 15', f's_add_u32 {sT0}, {sT0}, {sT1}',
          f's_lshl_b32 {sT1}, {sHQ}, 7', f's_add_u32 {sT0}, {sT0}, {sT1}', f's_and_b32 {sT1}, {sW}, 1', f's_lshl_b32 {sT1}, {sT1}, 6',
          f's_add_u32 {sS0}, {sT0}, {sT1}',
          f'v_and_b32 v15, 31, v{vL}', f'v_lshlrev_b32 v15, 10, v15', f'v_lshrrev_b32 v16, 5, v{vL}', f'v_lshl_add_u32 v15, v16, 4, v15']
    return o

def e_main(pre):
    ld = frag_loads(EH, 22, sE0, sE2) + frag_loads(EH + 88, 22, sE1, sE2)
    LA = opt('ela', 8)
    R(ld[:LA] + stats_load(EST, sE3))
    R(pre)
    def mm(tile, slot, rel, i):
        d = a_(EAC + 16*tile, 16) if tile else v(X1, 16)
        return f'v_mfma_f32_32x32x16_bf16 {d}, {a_(8*i+4*slot,4)}, {v(EH+88*rel+4*i,4)}, ' + ('0' if i == 0 else d)
    def wr(tile): return [f'ds_write_b128 v{10+tile}, {a_(EAC+16*tile+4*q,4)} offset:{1024*q}' for q in range(4)]
    def rd(rel): return [f'ds_read_b128 {v(EH+16*rel+4*q,4)}, v14 offset:{4096*(rel-1)+1024*q}' for q in range(4)]
    def acc(rel): return [f'v_fma_f32 v{XE+k}, v{EH+16*rel+k}, v{EG+k}, v{XE+k}' for k in range(16)]
    M = opt('em', 10)
    o2 = sorted([((i + 0.1) / 22, 1, i) for i in range(22)] + [((i + 0.6) / (22 - M), 0, i) for i in range(22 - M)])
    o2 = [(t, i) for _, t, i in o2] + [(0, i) for i in range(22 - M, 22)]
    ms = cat(*[[mm(2, 0, 0, i), mm(3, 1, 0, i)] for i in range(22)]) + [mm(t, t, 1, i) for t, i in o2]
    use = [2*i for i in range(22)] + [44 + o2.index((1, i)) for i in range(22)]
    vq = [Op(ld[j], use[j - LA], rel=use[j - LA], dl=use[j - LA], ahead=0) for j in range(LA, 44)]
    B1 = opt('eb1', 2); B2 = B1 + 12; B3 = opt('eb3', 62)
    L1 = use[43]
    bar = lambda: A.barrier()
    tail = {B1: ['s_barrier'], B2: [bar], B3: [bar]}
    xq = lin(e_pre1(), B1 + 1, B2 - 2, dl=B2 - 1) + lin(e_pre2()[:16] + e_pre2()[-16:] if opt('xe') else e_pre2(), B2 + 1, 44, dl=46) + lin(wr(2) + wr(3), 47, B3 - 3, dl=B3 - 1)
    xq += lin(rd(2) + rd(3), B3 + 1, B3 + 5) + lin(acc(2) + acc(3), B3 + 5, B3 + 13, dl=87)
    assert L1 > B3 + 12
    last = wr(1) + [bar, lambda: ts('ebar')] + rd(1) + acc(1)
    if M >= 6:
        tail[L1 + 2] = wr(1); tail[L1 + 4] = last[4:10]; last = last[10:]
        if M >= 10: xq += lin(last, L1 + 8, 88, dl=87); last = []
    for j in (1, 11, 22, 33): tail.setdefault(2*j - 1, []).append(lambda j=j: ts(f'e{j}'))
    R(gsched(ms, [vq, xq], tail, 0, 0, window=12))
    ts('eend')
    R(last)
    for pr in range(2):
        ks = range(4*pr, 4*pr+4)
        for k in ks: I(f'v_pk_fma_f32 {v(X1+2*k,2)}, {v(X1+2*k,2)}, {v(EG+2*k,2)}, {v(XE+2*k,2)}')
        for k in ks: I(f'v_cvt_pk_bf16_f32 v{EH+k}, v{X1+2*k}, v{X1+2*k+1}')
        for i in range(2): I(f'v_permlane32_swap_b32 v{EH+4*pr+i}, v{EH+4*pr+2+i}')
        I(f'buffer_store_dwordx4 {v(EH+4*pr,4)}, v15, {sOUT}, {sS0} offen offset:{32*pr}')

def gen_update():
    I(f's_lshl_b32 {sT0}, s2, 2')
    I(f's_add_u32 {sT0}, {sT0}, {sW}')
    I(f's_cmp_lg_u32 {sT0}, {120*4}')
    A.settle()
    I('s_cbranch_scc1 L_nogen')
    A.cond = 'gen'
    I(smov(sCNT, SPIN)); I(smov(sT0, HELLO2))
    A.label('L_gen')
    for i in range(4): I(f'buffer_load_dwordx4 {v(160+4*i,4)}, v{vL16}, {sWS}, {sT0} offen offset:{1024*i} sc1')
    A.vm0()
    R([f'v_cmp_ne_u64 vcc, {TAG}, v[162:163]', f'v_cmp_ne_u64 s[4:5], {TAG}, v[166:167]', f's_or_b64 vcc, vcc, s[4:5]',
       f'v_cmp_ne_u64 s[4:5], {TAG}, v[170:171]', f's_or_b64 vcc, vcc, s[4:5]', f'v_cmp_ne_u64 s[4:5], {TAG}, v[174:175]', f's_or_b64 vcc, vcc, s[4:5]',
       's_cbranch_scc0 L_gend', f's_sub_u32 {sCNT}, {sCNT}, 1', 's_cbranch_scc0 L_gen'])
    A.label('L_gend')
    I(f'v_lshlrev_b32 v160, 24, v{vL}')
    I(smov(sT0, GEN))
    I(f'buffer_store_dwordx2 {v(vTAG,2)}, v160, {sWS}, {sT0} offen sc1')
    A.settle()
    A.cond = None
    A.label('L_nogen')

def finish():
    if DEBUG:
        A.vm0()
        ts('end')
        A._emit(Ins('s_memrealtime s[6:7]'))
        A.lg0(force=True)
        for i in range(2*NTS): I(f'v_writelane_b32 v4, s{TS0+i}, {i}')
        I('s_getpc_b64 s[4:5]'); A.label('L_pc'); I(f's_sub_u32 s4, s4, L_pc-{NAME}_kernel'); I('s_subb_u32 s5, s5, 0'); I('v_writelane_b32 v4, s4, 36'); I('v_writelane_b32 v4, s5, 37')
        I('v_writelane_b32 v4, s100, 30'); I('v_writelane_b32 v4, s101, 31')
        I('v_writelane_b32 v4, s6, 32'); I('v_writelane_b32 v4, s7, 33'); I(f'v_writelane_b32 v4, {sFAST}, 34'); I(f'v_writelane_b32 v4, {sXCC}, 35')
        R([f's_lshl_b32 {sT0}, s2, 2', f's_add_u32 {sT0}, {sT0}, {sW}', f's_lshl_b32 {sT0}, {sT0}, 8', f's_add_u32 {sT0}, {sT0}, {TSB}',
           f'v_lshlrev_b32 v5, 2, v{vL}', f'buffer_store_dword v4, v5, {sWS}, {sT0} offen'])
    A.label('L_end')
    I('s_endpgm')
    for s in slow_blocks: s()

def gate(n):
    def f():
        A._wait(vm=n)
    return f

def main():
    W = lambda a, b: [g for ks in range(a, b) for g in wq_issue(ks)]
    RD = lambda a, b: [o for ks in range(a, b) for o in wq_read(ks)]
    segs = 'G S1 S2 H 0a 0b 1a 1b 2a 2b 3a 3b A PO C PY'.split()
    cold = {n: [] for n in segs}
    for name, f, d in (('pwo', lambda: pfm(sWO), 2), ('pw1', lambda: pfm(sW1), 4), ('po', pf_o, 6), ('py', pf_y, 9), ('pw2', lambda: pfm(sW2), 11), ('ph', pf_h, 11), ('h2', hello2, 8)):
        cold[segs[opt(name, d)]] += f()
    M2P = opt('m2p', 1)
    M2G = opt('m2g', -1)
    if M2P != 1: cold[segs[M2P]] += m2_load()
    assert M2P in (1, 2) or M2G >= 0
    prologue()
    w = W(0, NSL)
    GW = opt('gw', 8)
    def take(n, gated=True):
        nonlocal w
        r = [([gate(GW - 1)] if gated else []) + [lambda k=3*NSL-len(w)+i: ts(f'w{k}')] + g for i, g in enumerate(w[:n])]; w = w[n:]
        return r
    wa0 = take(opt('wa0', 0), False)
    wa = take(opt('wa', 3), False)
    sa = srd(16) + srd(20) + srd(24) + srd(36) + rd_setup()
    wb = take(opt('wb', 3), False)
    tokc = dict(A.tokc)
    kl = [kload(s) for s in (16, 20, 24, 36)]
    hel = hello()
    mc = mod_compute()
    k0 = mc.index('v_mov_b32 v30, s44')
    k1 = [i for i, o in enumerate(mc) if isinstance(o, str) and o.startswith('ds_read_b128')][-1] + 1
    R(ids() + srd(40) + mc[:k0-1] + tag_fix() + mc[k0-1:k1] + srd(8) + x_setup() + x_load() + mc[k1:])
    ts('modpub')
    global TSSEL
    sv = TSSEL; TSSEL = {'none'}
    CLP = opt('clp', 0)
    R(hello_setup() + hel + h_bases() + ln_setup() + h_clear() + (m2_load() if M2P == 1 else []) + kl + srd(12) + dma_setup())
    R(pace(sa + pfm_setup() + flag_setup() + ln1(), wa0 + wa + wb, period=50))
    R(h_cleared())
    TSSEL = sv
    A.settle(); I('s_branch L_u2')
    A.cond = None
    A.label('L_u1')
    A.tokc = tokc
    A.sm = {('s', 44), ('s', 45)}
    A.vm = [e for e in A.vm if e[2] != 'urg']
    A.lg = []
    early = {'2': m2_load() if M2P == 1 else [], 'u': help_u(), 'p': pfm(sWQ), 'r': pr0(), 'c': ln_setup() + (h_clear() if CLP == 0 else [])}
    od = ['urpc2||', 'uprc2||', 'urcp2||', 'purc2||', 'uprc|2|', 'uprc||2', 'rupc2||'][opt('od', 0)]
    e0, em, e1 = [cat(*[early[c] for c in x]) for x in od.split('|')]
    R(ids() + srd(8) + x_setup())
    ts('karg')
    R(x_load() + srd(40) + h_bases() + srd(12) + pfm_setup() + e0 + dma_setup() + wa0 + sa)
    ts('xiss')
    R(tag_fix() + kl + hello_setup() + hel + flag_setup() + em + wa)
    ts('hel')
    R(pace(ln1(), e1 + cold['S1'] + wb, period=opt('wbp', 70), first=opt('wb0', 150)))
    if CLP: R([lambda: A.waitvm('pr0')] + h_clear())
    R(h_cleared())
    A.vm = [e for e in A.vm if e[1] and e[1] != 'm2'] + [(e[0], 'm2', 'x', set()) for e in A.vm if e[1] == 'm2']
    A.settle()
    A.label('L_u2')
    ts('lb0')
    A.barrier()
    ts('lb1')
    R(pace(ln2(), take(opt('wc', 2), False), period=opt('wbp', 70)))
    ts('ln')
    late = hr_setup() + pr_setup() + w2_setup() + late_setup() + m2_setup()
    L1 = opt('l1', 36)
    R(pace(late[:L1], cold['S2'] + take(opt('wd', 0)), period=opt('wbp', 70))); late = late[L1:]
    ts('g1i')
    R(g1_load() + [poll_load(3)])
    L2 = opt('l2', 60)
    R(pace(late[:L2], take(opt('we', 4), False), period=opt('wep', 50), first=20)); late = late[L2:]
    g1_check()
    ts('gath')
    def nlanded(): return min(k for k in range(NSL + 1) if k == NSL or any(e[1] == f'ks{k}' for e in A.vm) or A.tokc.get(f'ks{k}', 0) < 3)
    R(h_head())
    S, J = A.uniq('slow'), A.uniq('join')
    I(f's_cmp_eq_u32 {sFAST}, 0')
    A.settle()
    I(f's_cbranch_scc1 {S}')
    R([o.replace('@', '') for o in h_body()])
    poll_check(3, mRB)
    A.cond = None
    A.label(J)
    def slow():
        A.label(S)
        R([o.replace('@', ' sc1') for o in h_body()])
        A.vm0()
        I(f'buffer_store_dwordx2 {v(vTAG,2)}, v{vFS}, {sWS}, 0 offen offset:{4*512} sc1')
        R([poll_load(4)])
        poll_check(4, mRB)
        A.vm0()
        A.settle()
        I(f's_branch {J}')
    slow_blocks.append(slow)
    ts('hp')
    if opt('nb1', 0): A.waitvm(f'ks{opt("nb1", 0) - 1}')
    ND = nlanded()
    I('s_barrier')
    sh = late + RD(0, ND) + (m2_a() if M2G < 0 else [])
    HD_ = min(opt('hd', 20), len(sh))
    assert L1 + L2 + HD_ >= len(hr_setup() + pr_setup())
    R(pace(sh[:HD_], take(opt('wf', 3), False), period=opt('wgp', 30), first=0))
    ts('hf')
    R(h_issue(0))
    R(pace(sh[HD_:], cold['G'] + take(opt('wg', 3), False), period=opt('wgp', 30), first=0))
    R((m2_st() if M2G < 0 else []) + take(opt('np', 3), False) + cold['H'])
    A.waitvm('hc0', 5)
    ts('h0')
    R(hk_read(0) + hk_max())
    hk_check(0)
    landed = nlanded()
    A.barrier()
    ts('mf0')
    assert ND >= 1 and landed >= 3
    R(h_read(0))
    w1b = [w1_issue(i) for i in range(8)]
    wo = [wo_issue(i) for i in range(16)]
    mm = cat(*[qkv_mfma(ks) for ks in range(16)])
    E = lambda c: 42 + 56*c
    G = [14 + 28*i for i in range(8)]
    cuts = [28*i for i in range(9)]
    items = [(14*int(g[-1][1][2:]) - 14 - 14*(int(g[-1][1][2:]) & 1), g) for g in w + W(NSL, 16)] + [(E(c-1) - opt('hlead', 1), g) for c in (1, 2, 3) for g in h_issue(c)]
    items.sort(key=lambda x: x[0])
    items = [g for _, g in items] + wo + cat(*[w2a_issue(i) for i in range(NA2)])
    rdat = {k: -1 for k in range(ND)}
    free = {k: 0 for k in range(ND)}
    issued = {k: -40 for k in range(NSL) if A.tokc.get(f'ks{k}', 0) == 3}
    used = {1: [('hc1', None)], 3: [('hc2', None)], 5: [('hc3', None)], 7: [('wo', 16)] if opt('wo3', 0) else []}
    rq = []
    RPG = opt('rpg', 5)
    state = {'next': ND, 'end': {}}
    def reads(ks, at):
        for k in ks:
            at0 = max(at, state.get('rp', 0))
            rq.extend(lin(RD(k, k+1), at0, at0 + RPG, rel=at, dl=min(14*k - 4, at0 + RPG + 4), ahead=4))
            state['rp'] = at0 + RPG; state['end'][k] = min(14*k - 4, at0 + RPG + 4); state['next'] = k + 1
    reads(range(ND, landed), 0)
    dsp = [opt('dsp0', 42) / 10, opt('dsp', 50) / 10, opt('dsp', 50) / 10, opt('dsp3', 50) / 10]
    LAG = opt('lag', 45)
    HKL = opt('hkl', 12)
    vq = []; p = 1.0; bi = 0; nwo = 0; nw1 = 0
    def release(g):
        tok = g[-1][1]
        if tok[:2] == 'ks': need = [int(tok[2:]) - 5] if int(tok[2:]) >= NSL else []
        elif tok[:2] == 'hc': need = {1: [0, 1], 2: [1, 2, 3], 3: [3, 4]}[int(tok[2])]
        elif tok == 'wo': return 0 if nwo < 1 else E(0) if nwo < 6 else E(1) if nwo < 11 else E(2)
        else: need = [[5, 11], [11, 12], [12, 13], [13, 14], [14, 15], [99]][int(tok[3])]
        return max([free.get(k, E(3) if k == 99 else None) or 0 if (k in free or k == 99) else 10**6 for k in need] + [0])
    def do_bar(i):
        must = min(15, 2*i + 3)
        k = state['next']
        while k < 16 and k in issued and (k <= must or issued[k] <= G[i] - LAG): k += 1
        assert k > must, (i, k)
        fr = [j for j, e in state['end'].items() if j not in free and e < G[i] - 1]
        need = i in used or opt('fb', 0) >> i & 1 or state['next'] <= must or (items and release(items[0]) > 10**5 and fr)
        if not need: return
        used.setdefault(i, [])
        for j in fr: free[j] = G[i]
        if k > state['next']:
            used[i].append((f'ks{k-1}', 3)); reads(range(state['next'], k), G[i])
    while True:
        if opt('wof', 0) and items and release(items[0]) > p + 3 and bi < 8 and p < G[bi] - 3:
            j = [k for k, g in enumerate(items) if g[-1][1] == 'wo']
            if j and release(items[j[0]]) < p: items.insert(0, items.pop(j[0]))
        r = release(items[0]) if items else 10**6
        if bi < 8 and items and r < G[bi] - 1:
            tk = [g[-1][1] for g in items]
            if any(x in tk for x in [f'ks{min(15, 2*bi+3)}'] + [u[0] for u in used.get(bi, [])]): p = min(p, G[bi] - 2)
            if f'hc{(bi+1)//2}' in tk: p = min(p, max(r + 1, G[bi] - HKL - 3))
        if bi < 8 and max(p, r + 1) >= G[bi]:
            do_bar(bi); bi += 1; continue
        p = max(p, r + 1)
        if p > 222: break
        g = items.pop(0); tok = g[-1][1]
        if tok[:2] == 'ks' and 'offset:2048' in g[-1][0]: issued[int(tok[2:])] = p
        nwo += tok == 'wo'
        dl = G[bi] - 2 if bi < 8 else 223
        if tok[:2] == 'hc': dl = min(dl, E(int(tok[2]) - 1) - HKL - 2)
        vq += [Op(o, p - 2, ahead=3) for o in g[:-1]] + [Op(g[-1], p, rel=min(int(p), dl), dl=dl, ahead=0)]
        p += dsp[min(3, int(p) // 56)]
    tail = {}
    def bar(name, toks):
        def f():
            for tok in toks:
                if tok[0][:2] == 'hc': hk_check(int(tok[0][2]))
                else: A.waitvm(*tok)
            A.barrier()
            ts(name)
        f.slots = 2.5
        return f
    for i, toks in used.items(): tail[G[i]-1] = [bar(f'b{i}', toks)]
    hq = []
    for ks in range(1, 16):
        h = h_read(ks)
        for T in range(1 if opt('xh') else 5):
            rel = 14*ks - 14 - [12, 9, 6, 3, 0][T]
            if ks & 3 == 0: rel = max(rel, E(ks//4 - 1))
            hq.append(Op((h[T], f'h{ks}'), max(rel, 14*ks - 14 + 1.6*T), rel=rel, dl=14*ks - 8 + T, ahead=3))
        if 4 <= ks < 8: hq.append(Op(f'v_add_u32 v{vHR+(ks&3)}, 40960, v{vHR+(ks&3)}', 14*ks - 4, dl=14*ks + 6))
        tail.setdefault(14*ks - 1, []).insert(0, lambda ks=ks: A.waitlg(f'h{ks}'))
    M2L, M2C = opt('m2l', 100), opt('m2c', 160)
    tail.setdefault(M2C - 1, []).append(m2_check)
    oq = (lin(m2_a() + m2_st(), M2G, M2G + 36, dl=M2L - 2) if M2G >= 0 else []) + lin(m2_ld2(), M2L, M2L + 8, dl=M2C - 10) + lin(m2_b(), M2C, M2C + 36, dl=222)
    kq = []
    for c in (1, 2, 3):
        e = E(c - 1)
        tail.setdefault(e - HKL - 1, []).append(lambda c=c: A.waitvm(f'hc{c}', 5))
        kq += lin(hk_read(c), e - HKL, e - HKL + 4, dl=e - 6) + lin(hk_max(), e - 5, e - 2, rel=e - HKL + 4, dl=e - 2)
        if c == 1: kq.append(Op(f'v_add_u32 v{vHC}, 40960, v{vHC}', e + 2, rel=e + 1))
    lq = []
    for si in range(8):
        name = f'{si>>1}' + 'ab'[si & 1]
        l = {'3a': c_xload()}.get(name, []) + cold[name]
        lq += lin(l, cuts[si] + 3, cuts[si+1] - 3 if not opt('cburst') else cuts[si] + 6, dl=min(222, cuts[si+1] + 10))
    if opt('xm'): mm = [re.sub(r'v_mfma_f32_16x16x32_bf16 (\S+), .*', r'v_mfma_f32_4x4x4_16b_f16 \1, v[2:3], v[2:3], 0', m) if i % 14 else m for i, m in enumerate(mm)]
    R(gsched(mm, [hq, vq, lq, rq, oq, kq], tail, opt('quiet', 2), opt('vmgap', 2)))
    w1 = list(items)
    od1 = [i for i in (0, 1, 6, 5, 4) if i not in A2] + A2 + [7]
    for i in od1:
        if i in A2:
            k = len(w1) - opt('w2lead', 2)
            w1[k] = w1[k] + w2a_read(A2.index(i))
        w1 += w1b[i]
    print('ND', ND, 'landed', landed, 'left', len(w1), sorted(used.items()), {k: int(x) for k, x in issued.items() if x > 0}, file=sys.stderr)
    ts('qkv')
    att, tail = attention()
    NW1, NW1b, NW1c = opt('nw1', 10), opt('nw1b', 2), opt('nw1c', 2)
    assert len(w1) - NW1 - NW1b - NW1c >= 3
    bg = cold['A'] + w1[:NW1]; w1 = w1[NW1:]
    bg.insert(opt('g2p', 6), g2_loads())
    R(pace(att, bg, period=opt('aper', 100)))
    assert A.tokc['wo'] == 16
    ts('att')
    CPRE = opt('cpre', 4)
    publish(tail, 0, cold['PO'] + w1[:NW1b], c_base() + [g2_check] + g2_post()); w1 = w1[NW1b:]
    ts('opub')
    sh = [A.barrier] + pace(modvec_read() + cat(*[c_rd(k) for k in range(CPRE)]) + c_unpack(), w1[:NW1c], period=opt('osper', 100)); w1 = w1[NW1c:]
    OPD = min(opt('opd', 0), len(sh)); OSP = min(max(OPD, opt('osp', 999)), len(sh))
    R(sh[:OPD] + [poll_load(0)] + sh[OPD:OSP])
    poll_check(0, mRB)
    ts('opoll')
    rest = c_main(w1 + cold['C'], CPRE, c_addr(), sh[OSP:])
    publish(c_epi(), 1, rest + cold['PY'], d_setup() + d_setup2())
    ts('ypub')
    for i in range(8): A.waitvm(f'w1_{i}', 3)
    A.barrier()
    ts('ut0')
    YP, YC, N0, N1 = opt('yp', 3), opt('yc', 5), opt('n0', 6), opt('n1', 3)
    assert YP <= YC and N0 + N1 <= 15
    ld = frag_loads(DY, 32, sLB, srd=sOUT)
    LA = opt('dla', 7)
    def ycheck():
        poll_check(1, mC0)
        ts('ypoll')
    at = {YP: [poll_load(1)]}
    at.setdefault(YC, []).extend([ycheck] + ld[:2] + stats_load(DST, sLB2) + ld[2:LA])
    ex = [[] for i in range(9)]
    ex[0] = w2_rebase()
    Y0 = opt('y0', 0)
    for i in range(N0): ex[min(Y0 + i * max(YC - Y0, 1) // N0, 7)].append(w2_issue(i))
    for i in range(N1): ex[min(YC + i * (8 - YC) // N1, 8)].append(w2_issue(N0 + i))
    at.setdefault(8, []).extend(ex[8])
    d_ut(ex, at)
    ts('ut1')
    nb, nrd, epi = d_main(ld[LA:], N0 + N1, N0 if YC < 8 or not N0 else N0)
    NR = opt('nr', 6)
    rest = []
    for b in range(nb, NB2):
        while b - 15 >= nrd: rest.append(w2_read(nrd)[0]); nrd += 1
        rest.append(w2_issue(b))
    publish(epi, 2, rest[:NR], stores=cat(*d_epi())); rest = rest[NR:]
    ts('hpub')
    gen_update()
    rds = cat(*[w2_read(b) for b in range(nrd, NB2)])
    n1 = len([b for b in range(nrd, NB2) if b < nb])
    HPD = min(opt('hpd', 4), n1)
    R(rest + rds[:HPD] + [poll_load(2)] + rds[HPD:n1])
    poll_check(2, mC0)
    ts('hpoll')
    e_main(rds[n1:])
    finish()

main()
hdr = open(f'cdna_kernels/{NAME}.s.ref').read().split('\n')
head = [l for l in hdr if l.startswith(';') and '@launch' not in l]
out = '\n'.join(head) + '\n; @launch grid=(256,1,1) block=(256,1,1) lds=163840\n'
out += f'''.amdgcn_target "amdgcn-amd-amdhsa--gfx950"
.text
.globl {NAME}_kernel
.p2align 8
.type {NAME}_kernel,@function
{NAME}_kernel:
'''
out += A.text()
out += f'''.fill @PAD@, 4, 0xbf810000
.section .rodata,"a"
.p2align 6
.amdhsa_kernel {NAME}_kernel
  .amdhsa_next_free_vgpr 512
  .amdhsa_next_free_sgpr 102
  .amdhsa_accum_offset 256
  .amdhsa_group_segment_fixed_size 0
  .amdhsa_kernarg_size 88
  .amdhsa_user_sgpr_count 2
  .amdhsa_user_sgpr_kernarg_segment_ptr 1
  .amdhsa_system_sgpr_workgroup_id_x 1
.end_amdhsa_kernel
'''
dst = sys.argv[1]
import subprocess, re
import os
SZ = f'_sz{os.getpid()}'
def textsize(t):
    open(SZ + '.s', 'w').write(t)
    subprocess.run(['clang', '-x', 'assembler', '-target', 'amdgcn-amd-amdhsa', '-mcpu=gfx950', '-c', SZ + '.s', '-o', SZ + '.o'], check=True)
    h = subprocess.run(['llvm-objdump', '-h', SZ + '.o'], capture_output=True, text=True).stdout
    return int(re.search(r'\.text\s+([0-9a-f]+)', h).group(1), 16)
sz = textsize(out.replace('@PAD@', '1'))
out = out.replace('@PAD@', str(max(1, (33024 - sz) // 4 + 2)))
assert textsize(out) >= 33024
print('code bytes', sz, file=sys.stderr)
open(dst, 'w').write(out)
if DEBUG: open(dst + '.ts', 'w').write(','.join(tsnames))
print(A.stats, 'nops', A.nnop, 'waits', A.nwait, file=sys.stderr)

os.remove(SZ + '.s'); os.remove(SZ + '.o')
```

```python
import sys, struct, re
from asm import Asm, Ins, weave, pace, spread, mweave, flat, gaps, scost, Op, lin, gsched

NAME = 'adaLN_cond__sliding_local_dilated__dense_activation_relu__prompt'
DEBUG = any(a.startswith('--ts') for a in sys.argv)
TSSEL = None
OPT = {}
for a in sys.argv:
    if a.startswith('--ts='): TSSEL = set(a[5:].split(',')) | {'start', 'end'}
    if a.startswith('--opt='):
        for kv in a[6:].split(','):
            k, _, val = kv.partition('=')
            OPT[k] = int(val) if val else 1
TSDEF = set('start,mf0,qkv,opoll,ypoll,hpoll,end'.split(','))
def opt(k, d=0): return OPT.get(k, d)

HELLO2 = 0x5000
GRAN, HELLO, GEN, FLAGS, STATS = 0x0, 0x3000, 0x4000, 0x10000, 0x20000
OB, YB, HB, TSB = 0x100000, 0x300000, 0x500000, 0xB00000
WS_SIZE = 0x1000000
OOB = 0x40000000
K = 1024
RA, RB = 0, 64 * K
HL = 4 * K
WL = 24 * K
MV = 156 * K
MR = 0
STS = 1024
UT = 60 * K
EX = RB
XT = RB + 48 * K
W2X = RB + 66 * K
sX, sWQ, sWO, sW1, sW2, sC, sWM, sOUT, sWS = [f's[{i}:{i+3}]' for i in range(8, 44, 4)]
TAG = 's[44:45]'
sW, sXG, sRK, sRB64, sHQ, sGRP, sR, sXCC, sFAST = [f's{i}' for i in range(46, 55)]
sT0, sT1, sT2, sT3, sT4 = [f's{i}' for i in range(55, 60)]
mP, mC0, mC1 = 's[60:61]', 's[62:63]', 's[64:65]'
sCNT, sD, sM3, sM1, sM2, sP, sLB, sLB2, sS0, sS1, sS2, sCBK = [f's{i}' for i in range(66, 78)]
sG0, sG1, sG2 = 's3', 's4', 's5'
TS0 = 84
NTS = 8
sHEL, sBIAS, sCS = 's78', 's79', 's80'
sX0 = 's71'
SPIN = 20000
LOG2E = 1.4426950408889634

def NT(i): return ' nt' if opt('nt', 0) >> i & 1 else ''
def f2u(x): return struct.unpack('<I', struct.pack('<f', x))[0]
def v(i, n=1): return f'v{i}' if n == 1 else f'v[{i}:{i+n-1}]'
def a_(i, n=1): return f'a{i}' if n == 1 else f'a[{i}:{i+n-1}]'
def smov(d, x): return f's_mov_b32 {d}, {x:#x}'

A = Asm()
_I = A.I
CTX = {}
cur = {}
def I(text, tok=None):
    c = CTX.get((text, tok))
    if c:
        for o in c:
            if cur.get(o.split()[1]) != o: I(o)
    if text.startswith('s_') and text.split()[1:2] in (['m0,'], [sD + ',']): cur[text.split()[1]] = text
    return _I(text, tok)
A.I = I
def ctx(groups):
    for g in groups: CTX[g[-1]] = groups[0][:-1]
    return groups
R = lambda l: A.run(flat(l))
def cat(*ls): return [o for l in ls for o in l]
tsnames = []
def ts(name):
    if not DEBUG or name not in (TSSEL or TSDEF): return
    i = len(tsnames)
    assert i < NTS
    tsnames.append(name)
    A._emit(Ins(f's_memtime s[{TS0+2*i}:{TS0+1+2*i}]'))

vL, vL16, vFO = 1, 2, 3
vFS, vOA, vTAG = 6, 7, 8
vHR, vTR, vWO, vPR, vPF, vW2, vW2R, vWQ = 10, 14, 17, 18, 19, 20, 21, 23
WM0, WMC, WMA = 40, 72, 80
vMA, vMC = 26, 27
pC, pWM = 's[28:29]', 's[30:31]'
sHG, sM5, sHS, sK12 = 's32', 's33', 's34', 's35'
mRB = 's[82:83]'

def mod_issue():
    o = [f'global_load_dword v{WMC}, v{vMC}, {pC}']
    for j in range(8):
        o.append(f'global_load_dwordx4 {v(WM0+4*j,4)}, v{vMA}, {pWM} offset:{3072 if j&1 else -3072}')
        if j & 1 and j < 7: o.append(f'v_add_u32 v{vMA}, {sK12}, v{vMA}')
    return o

SRDS = {8: (0, 2097152), 12: (8, 1572864), 40: (80, WS_SIZE), 16: (16, 524288), 20: (32, 1409024), 24: (40, 1409024), 36: (64, 2097152)}
def kload(s): return f's_load_dwordx2 s[{s}:{s+1}], s[0:1], {SRDS[s][0]}'
def srd(s): return [smov(f's{s+2}', SRDS[s][1]), smov(f's{s+3}', 0x20000)]
def prologue():
    if DEBUG: A._emit(Ins('s_memrealtime s[100:101]'))
    ts('start')
    I('s_load_dwordx4 s[28:31], s[0:1], 48')
    I('s_getpc_b64 s[6:7]')
    I(f'v_lshlrev_b32 v4, 4, v0')
    I(f's_and_b32 {sT0}, s2, 56')
    I(f'v_lshl_add_u32 v5, {sT0}, 9, v4')
    A._emit_nodep(f'global_load_dword a247, v5, s[6:7]')
    I(kload(40))
    I('s_cmpk_ge_u32 s2, 256')
    I('s_cbranch_scc1 L_end')
    R([f's_and_b32 {sXG}, s2, 7', f's_lshr_b32 {sRK}, s2, 3', f's_lshl2_add_u32 {sCBK}, {sXG}, {sRK}', f's_add_u32 {sT0}, {sCBK}, 48',
       f'v_and_b32 v{vMA}, -4, v0', f's_movk_i32 {sT1}, 12272', f'v_mad_u32_u24 v{vMA}, v{vMA}, {sT1}, v4', f'v_lshl_add_u32 v{vMA}, {sT0}, 6, v{vMA}',
       f's_movk_i32 {sK12}, 12288', f'v_lshlrev_b32 v{vMC}, 2, v0',
       ])
    if not opt('nohelp'):
        R([f'v_lshrrev_b32 v5, 4, v0', f's_movk_i32 {sT1}, 5888', f'v_mad_u32_u24 v5, v5, {sT1}, v4', f's_mul_i32 {sT1}, {sRK}, 48', f's_lshl3_add_u32 {sT1}, {sT1}, {sXG}',
           f'v_lshl_add_u32 v25, {sT1}, 8, v5', kload(8), kload(12), 's_cmp_ge_u32 s2, 32'])
        A.lg0()
        A._emit_nodep(f'global_load_dword a247, v25, {pWM}')
    I(f's_load_dwordx2 {TAG}, s[40:41], {GEN}')
    I('s_cbranch_scc1 L_u1')
    A.cond = 'urg'
    R(mod_issue())
    ts('mi')
def ids():
    return [f'v_lshrrev_b32 v4, 6, v0', f'v_and_b32 v{vL}, 63, v0', f'v_readfirstlane_b32 {sW}, v4', f's_lshr_b32 {sT0}, {sRK}, 3',
            f's_lshl2_add_u32 {sRB64}, {sXG}, {sT0}', f's_and_b32 {sHQ}, {sRK}, 7', f's_lshr_b32 {sGRP}, {sRB64}, 1', f's_and_b32 {sR}, {sRK}, 15',
            f'v_lshlrev_b32 v{vL16}, 4, v{vL}']
def code_pf():
    f = lambda: A._emit_nodep(f'global_load_dword a247, v4, s[6:7]')
    return [[f's_and_b32 {sT0}, {sRK}, 3', f's_cmp_eq_u32 {sT0}, {sW}', f'v_lshlrev_b32 v4, 7, v0', f's_cselect_b64 exec, -1, 0', f, 's_mov_b64 exec, -1']]

def mod_compute():
    o = []
    I = o.append
    c = WMC
    for i in range(8): I(f'v_mov_b32 v{WMA+i}, 0')
    I(f'v_and_b32 v4, 3, v{vL}')
    I(f'v_lshlrev_b32 v4, 5, v4')
    I(f'v_lshrrev_b32 v5, 4, v{vL}')
    I(f'v_lshl_add_u32 v4, v5, 3, v4')
    I(f's_lshl_b32 {sT2}, {sW}, 7')
    I(f'v_add_u32 v4, {sT2}, v4')
    I(f'v_and_b32 v24, 0x70, v{vL16}')
    I(f'v_mov_b32 v5, v24')
    I(f'v_cmp_gt_u32 vcc, 8, v0')
    I(f'v_mov_b32 v25, {OOB:#x}')
    I(f's_lshr_b32 {sT2}, {sCBK}, 4')
    I(f'v_cndmask_b32 v24, v25, v24, vcc')
    I(f's_lshr_b32 {sT3}, 0x12, {sT2}')
    I(f's_and_b32 {sT3}, {sT3}, 1')
    I(f's_mul_i32 {sT3}, {sT3}, {f2u(1.0):#x}')
    I(f's_lshl_b32 {sT2}, {sCBK}, 7')
    I(f'v_lshlrev_b32 v{c+4}, 16, v{c}')
    I(lambda: ts('mc'))
    I(f'v_and_b32 v{c+5}, 0xffff0000, v{c}')
    for k in (4, 5): I(f'v_mul_f32 v{c+k+2}, {-LOG2E!r}, v{c+k}')
    for k in (4, 5): I(f'v_exp_f32 v{c+k+2}, v{c+k+2}')
    for k in (4, 5): I(f'v_add_f32 v{c+k+2}, 1.0, v{c+k+2}')
    for k in (4, 5): I(f'v_rcp_f32 v{c+k+2}, v{c+k+2}')
    for k in (4, 5): I(f'v_mul_f32 v{c+k}, v{c+k}, v{c+k+2}')
    I(f'v_cvt_pk_bf16_f32 v{c+4}, v{c+4}, v{c+5}')
    I(smov(sT0, 0x05040100)); I(smov(sT1, 0x07060302))
    for j in range(4):
        I(f'v_mov_b32_dpp v{c+j}, v{c+4} quad_perm:[{j},{j},{j},{j}] row_mask:0xf bank_mask:0xf')
    for j in range(4):
        r0, r1 = WM0 + 8*j, WM0 + 8*j + 4
        for d in range(4):
            I(f'v_perm_b32 v{c+4+(d&1)*2}, v{r1+d}, v{r0+d}, {sT0}')
            if d == 0: I(lambda j=j: ts(f'mw{j}'))
            I(f'v_perm_b32 v{c+5+(d&1)*2}, v{r1+d}, v{r0+d}, {sT1}')
            I(f'v_dot2c_f32_bf16 v{WMA+2*d}, v{c+4+(d&1)*2}, v{c+j}')
            I(f'v_dot2c_f32_bf16 v{WMA+2*d+1}, v{c+5+(d&1)*2}, v{c+j}')
    m = WMA
    for i in range(4): I(f'v_permlane32_swap_b32 v{m+i}, v{m+i+4}')
    for i in range(4): I(f'v_add_f32 v{m+i}, v{m+i}, v{m+i+4}')
    for i in range(2): I(f'v_permlane16_swap_b32 v{m+i}, v{m+i+2}')
    for i in range(2): I(f'v_add_f32 v{m+i}, v{m+i}, v{m+i+2}')
    for rot in (8, 4):
        for i in range(2): I(f'v_add_f32_dpp v{m+i}, v{m+i}, v{m+i} row_ror:{rot} row_mask:0xf bank_mask:0xf')
    I(f'ds_write_b64 v4, {v(m,2)}')
    I(f'v_mov_b32 v30, s44')
    I(f'v_mov_b32 v31, s45')
    I(lambda: ts('mb0'))
    I(A.barrier)
    I(lambda: ts('mb1'))
    for w in range(4): I(f'ds_read_b128 {v(WM0+4*w,4)}, v5 offset:{128*w}')
    for i in (0, 2): I(f'v_pk_add_f32 {v(WM0+i,2)}, {v(WM0+i,2)}, {v(WM0+4+i,2)}')
    for i in (0, 2): I(f'v_pk_add_f32 {v(WM0+8+i,2)}, {v(WM0+8+i,2)}, {v(WM0+12+i,2)}')
    for i in (0, 2): I(f'v_pk_add_f32 {v(WM0+i,2)}, {v(WM0+i,2)}, {v(WM0+8+i,2)}')
    I(f'v_cvt_pk_bf16_f32 v{WM0+4}, v{WM0}, v{WM0+1}')
    I(f'v_cvt_pk_bf16_f32 v{WM0+5}, v{WM0+2}, v{WM0+3}')
    for i in range(2):
        I(f'v_lshlrev_b32 v{WM0+2*i}, 16, v{WM0+4+i}')
        I(f'v_and_b32 v{WM0+2*i+1}, 0xffff0000, v{WM0+4+i}')
    for i in range(4): I(f'v_add_f32 v{WM0+i}, {sT3}, v{WM0+i}')
    I(f'v_cvt_pk_bf16_f32 v28, v{WM0}, v{WM0+1}')
    I(f'v_cvt_pk_bf16_f32 v29, v{WM0+2}, v{WM0+3}')
    I(f'buffer_store_dwordx4 v[28:31], v24, {sWS}, {sT2} offen sc1')
    return o

NODEP = [None]
def _emit_nodep(text, tok=None):
    ins = Ins(text); ins.w = set()
    A._emit(ins); A.vm.append((set(), tok, A.cond or NODEP[0], set()))
A._emit_nodep = _emit_nodep

def pfm_setup():
    o = [f's_lshl2_add_u32 {sT0}, s2, {sW}', f's_sub_u32 {sT0}, {sT0}, 128', f's_mul_i32 {sT0}, {sT0}, {14*128}', f'v_lshl_add_u32 v{vPF}, v{vL}, 7, {sT0}',
         f'v_cmp_gt_u32 vcc, 14, v{vL}', f'v_mov_b32 v5, {OOB:#x}']
    if opt('pf3'):
        o += [f's_lshl2_add_u32 {sT0}, {sRK}, {sW}', f's_mul_i32 {sT0}, {sT0}, {12*1024}', f's_add_u32 {sT0}, {sT0}, {(384 - 14*1024) & 0xffffffff:#x}',
              f'v_lshl_add_u32 v4, v{vL}, 10, {sT0}', f'v_cndmask_b32 v{vPF}, v4, v{vPF}, vcc', f'v_cmp_gt_u32 vcc, 26, v{vL}']
    return [o + [f'v_cndmask_b32 v{vPF}, v5, v{vPF}, vcc']]
def pfm(srd):
    f = lambda: A._emit_nodep(f'buffer_load_dword a247, v{vPF}, {srd}, 0 offen')
    f.slots = 2
    if opt('no3', 0) >> [sWQ, sWO, sW1, sW2].index(srd) & 1: return [['s_bfm_b64 exec, 14, 0', f, 's_mov_b64 exec, -1']]
    return [f]
def tile_base(d):
    return [f's_lshr_b32 {d}, {sR}, 2', f's_lshl2_add_u32 {d}, {sGRP}, {d}', f's_mul_i32 {d}, {d}, {86*1024}']
def h_bases():
    return [f's_mul_i32 {sT0}, {sRB64}, {2*86*1024}', f's_add_u32 {sT0}, {sT0}, {HB + 32768}', f's_mul_i32 {sM5}, {sW}, 5120', f's_add_u32 {sHG}, {sT0}, {sM5}',
            f's_add_u32 {sM5}, {sM5}, {HL}', f's_mul_i32 {sT1}, {sW}, 20480', f's_add_u32 {sHS}, {sT0}, {sT1}', [f's_bitcmp1_b32 {sW}, 1',
            f's_cselect_b32 {sT1}, {86*1024 - 40960}, 0'], f's_add_u32 {sHS}, {sHS}, {sT1}']
def pr0():
    f = lambda: A._emit_nodep(f'buffer_load_dword a247, v4, {sWS}, 0 offen', 'pr0')
    return [[f's_mul_i32 {sT0}, {sHQ}, 2560', f's_add_u32 {sT0}, {sT0}, {sHS}', f'v_lshl_add_u32 v4, v{vL}, 7, {sT0}',
            f's_lshl_b32 {sT0}, {sGRP}, 5', f's_add_u32 {sT0}, {sT0}, {sR}', f's_lshl_b32 {sT0}, {sT0}, 7', f's_add_u32 {sT0}, {sT0}, {FLAGS}', f'v_writelane_b32 v4, {sT0}, 20',
            f's_bfm_b64 exec, 21, 0', f, 's_mov_b64 exec, -1']]
def help_u():
    f = lambda r, s: (lambda: A._emit_nodep(f'buffer_load_dword a247, v{r}, {s}, 0 offen'))
    return [[f's_lshl2_add_u32 {sT0}, {sR}, {sW}', f's_mul_i32 {sT0}, {sT0}, 640', f's_lshl_b32 {sT1}, {sXG}, 18', f's_add_u32 {sT0}, {sT0}, {sT1}', f's_sub_u32 {sT0}, {sT0}, 16384',
             f'v_lshl_add_u32 v4, v{vL}, 7, {sT0}', f's_lshr_b32 {sT0}, {sRK}, 3', f's_mul_i32 {sT0}, {sT0}, {2*86*1024}', f's_sub_u32 {sT0}, {sHS}, {sT0}',
             f's_mul_i32 {sT1}, {sR}, 640', f's_add_u32 {sT0}, {sT0}, {sT1}', f'v_lshl_add_u32 v5, v{vL}, 7, {sT0}',
             f's_cmp_ge_u32 {sRK}, 16', f's_cselect_b64 exec, 31, 0', f(4, sX), f(5, sWS), 's_mov_b64 exec, -1']]
def pr_setup():
    return tile_base(sT0) + [f's_and_b32 {sT1}, {sR}, 3', f's_lshl2_add_u32 {sT1}, {sT1}, {sW}', f's_add_u32 {sT0}, {sT0}, {HB}',
        f's_lshl_b32 {sT2}, {sT1}, 11', f's_add_u32 {sT2}, {sT2}, {sT0}', f's_mul_i32 {sT1}, {sT1}, {(27 if opt("phx") else 7)*128}', f's_add_u32 {sT1}, {sT1}, {sT0}',
        f's_add_u32 {sT1}, {sT1}, {(32 if opt("phx") else 72)*1024-16*128}', f's_lshl3_add_u32 {sT0}, {sRB64}, {sHQ}', f's_lshl2_add_u32 {sT0}, {sT0}, {sW}', f's_lshl_b32 {sT0}, {sT0}, 11',
        f's_sub_u32 {sT0}, {sT0}, {48*128}',
        f'v_mov_b32 v32, {sT2}', f'v_mov_b32 v33, {sT1}', f'v_mov_b32 v34, {sT0}', [f'v_cmp_gt_u32 vcc, 16, v{vL}', f'v_cndmask_b32 v32, v33, v32, vcc'],
        [f'v_cmp_gt_u32 vcc, 48, v{vL}', f'v_cndmask_b32 v32, v34, v32, vcc'], f'v_lshl_add_u32 v{vPR}, v{vL}, 7, v32',
        f's_lshl2_add_u32 {sT1}, {sR}, {sW}',
        f's_lshl_b32 {sT0}, {sGRP}, 6', f's_add_u32 {sT0}, {sT0}, {sT1}', f's_lshl_b32 {sT0}, {sT0}, 7', f's_add_u32 {sT0}, {sT0}, {STATS}', f'v_writelane_b32 v{vPR}, {sT0}, 44']
def pr(lo, hi, srd):
    f = lambda: A._emit_nodep(f'buffer_load_dword a247, v{vPR}, {srd}, 0 offen')
    f.slots = 2
    return [[smov('exec_lo', lo), smov('exec_hi', hi), f, 's_mov_b64 exec, -1']]
def pf_o(): return pr(0xffff, 0x1000, sWS)
def pf_h(): return [] if opt('xph') else pr(0xffff0000, 0x7ff, sWS) if opt('phx') else pr(0x7f0000, 0, sWS)
def pf_y():
    f = lambda h: (lambda: A._emit_nodep(f'buffer_load_dword a247, v{vYA}, {sOUT}, {sS0} offen offset:{2048*h}'))
    return [[smov('exec_lo', 0x01010101), 's_mov_b32 exec_hi, exec_lo', f(0), f(1), 's_mov_b64 exec, -1']] + [
        (f'buffer_store_dwordx4 {v(MKR,4)}, v{vYA}, {sOUT}, {sS0} offen offset:{2048*h}', 'clr2') for h in range(2)] + [(f'buffer_store_dword v{MKR}, v{vSA}, {sWS}, {sS1} offen', 'clr2')]

vXO, XR, XF, XS = 88, 96, 106, 126
vHS, vGA, vHA, GD, HD, GT, GF, vSW, vSR, XT2 = 152, 157, 158, 160, 164, 168, 170, 178, 179, 180
def x_setup():
    o = [f's_mul_i32 {sT1}, {sHQ}, 10', f'v_lshrrev_b32 v93, 5, v{vL}', f'v_add_u32 v93, {sT1}, v93', f'v_and_b32 v94, 31, v{vL}', f'v_lshlrev_b32 v94, 3, v94',
         f's_lshl_b32 {sT0}, {sRB64}, 8', f's_add_u32 {sT0}, {sT0}, {sW}', f's_sub_u32 {sT0}, {sT0}, 64', f's_lshl_b32 {sT0}, {sT0}, 8',
         f'v_lshl_add_u32 v{vXO}, v93, 10, v94', f'v_add_u32 v{vXO}, {sT0}, v{vXO}']
    return o
def x_load():
    o = []
    for i in range(5):
        if i < 4: o.append(f'v_add_u32 v{vXO+i+1}, 2048, v{vXO+i}')
        o.append(f'buffer_load_dwordx2 {v(XR+2*i,2)}, v{vXO+i}, {sX}, 0 offen')
    return o
def ln_setup():
    o = [f'v_lshlrev_b32 v93, 4, v93', smov(sT0, 0xf0)]
    for i in range(5):
        o += [f'v_bitop3_b32 v95, v93, {sT0}, v94 bitop3:0x6a', f'v_lshl_add_u32 v{vHS+i}, v93, 4, v95'] + ([f'v_add_u32 v93, 32, v93'] if i < 4 else [])
    o += [f's_lshl2_add_u32 {sT0}, {sW}, {STS}', f'v_and_b32 v{vSW}, 0x30, v{vL}', f'v_add_u32 v{vSW}, {sT0}, v{vSW}',
          f'v_and_b32 v{vSR}, 7, v{vL}', f'v_and_b32 v95, 32, v{vL}', f'v_lshl_add_u32 v{vSR}, v{vSR}, 6, v95',
          f's_lshl_b32 {sT0}, {sW}, 9', f'v_lshl_add_u32 v{vGA}, v94, 1, {sT0}', f'v_lshl_add_u32 v{vGA}, v95, 6, v{vGA}',
          f's_lshl_b32 {sT0}, {sGRP}, 8', f's_add_u32 {sT0}, {sT0}, {HELLO}', f'v_and_b32 v{vHA}, 0xf0, v{vL16}', f'v_add_u32 v{vHA}, {sT0}, v{vHA}']
    return o
def ln1():
    o = []
    for i in range(5):
        f = XF + 4*i; s = XS + 2*i; p = XT2 + 4*(i & 1)
        for d in range(2):
            o += [f'v_lshlrev_b32 v{f+2*d}, 16, v{XR+2*i+d}', f'v_and_b32 v{f+2*d+1}, 0xffff0000, v{XR+2*i+d}']
        o += [f'v_pk_mul_f32 {v(p+2,2)}, {v(f,2)}, {v(f,2)}', f'v_pk_add_f32 {v(p,2)}, {v(f,2)}, {v(f+2,2)}', f'v_pk_fma_f32 {v(p+2,2)}, {v(f+2,2)}, {v(f+2,2)}, {v(p+2,2)}',
              f'v_add_f32 v{s}, v{p}, v{p+1}', f'v_add_f32 v{s+1}, v{p+2}, v{p+3}', lambda i=i: ts(f'x{i}')]
    o += [f'v_permlane16_swap_b32 v{XS+2*i}, v{XS+2*i+1}' for i in range(5)]
    o += [f'v_add_f32 v{XS+2*i}, v{XS+2*i}, v{XS+2*i+1}' for i in range(5)]
    for rot in (8, 4, 2, 1):
        o += [f'v_add_f32_dpp v{XS+2*i}, v{XS+2*i}, v{XS+2*i} row_ror:{rot} row_mask:0xf bank_mask:0xf' for i in range(5)]
    o += [f'ds_write_b32 v{vSW}, v{XS+2*i} offset:{64*i}' for i in range(5)]
    return o
def ln2():
    a = XT2
    o = [f'ds_read_b128 {v(a,4)}, v{vSR} offset:{STS}', f'ds_read_b128 {v(a+4,4)}, v{vSR} offset:{STS+16}', f'v_mov_b32 v95, {f2u(1e-5):#x}',
         f'v_pk_add_f32 {v(a,2)}, {v(a,2)}, {v(a+2,2)}', f'v_pk_add_f32 {v(a+4,2)}, {v(a+4,2)}, {v(a+6,2)}', f'v_add_f32 v{a}, v{a}, v{a+1}', f'v_add_f32 v{a+4}, v{a+4}, v{a+5}',
         f'v_mul_f32 v{a+1}, {f2u(-1.0/512):#x}, v{a}', f'v_fmamk_f32 v{a+4}, v{a+4}, {f2u(1.0/512):#x}, v95',
         f'v_fma_f32 v{a+4}, -v{a+1}, v{a+1}, v{a+4}', f'v_max_f32 v{a+4}, v95, v{a+4}', f'v_rsq_f32 v{a}, v{a+4}', f'v_mul_f32 v{a+1}, v{a+1}, v{a}']
    o += [f'v_mov_b64_dpp {v(XS+2*i,2)}, {v(a,2)} row_newbcast:{i} row_mask:0xf bank_mask:0xf' for i in range(5)]
    for i in range(5):
        for d in range(2):
            x = v(XF + 4*i + 2*d, 2)
            o.append(f'v_pk_fma_f32 {x}, {x}, {v(XS+2*i,2)}, {v(XS+2*i,2)} op_sel:[0,0,1] op_sel_hi:[1,0,1]')
    return o
def h_head():
    o = [f'v_mov_b32 v{GT}, v{GD}', f'v_mov_b32 v{GT+1}, v{GD+1}', f'v_cmp_ne_u32 vcc, {sXCC}, v{HD}' if not opt('nohel') else 'v_cmp_ne_u32 vcc, v0, v0']
    o += [f'v_permlane32_swap_b32 v{GD+i}, v{GT+i}' for i in range(2)]
    o += [f's_cmp_eq_u64 vcc, 0', f's_cselect_b32 {sFAST}, ' + ('0' if opt('slow') else '1') + ', 0', f's_lshl_b32 {sPH}, {sFAST}, 11', f's_sub_u32 {sPH}, 2048, {sPH}']
    for k, s in enumerate((GD, GD+1, GT, GT+1)):
        o += [f'v_lshlrev_b32 v{GF+2*k}, 16, v{s}', f'v_and_b32 v{GF+2*k+1}, 0xffff0000, v{s}']
    return o
def h_body():
    o = []
    for i in range(5):
        f = XF + 4*i
        o += [f'v_pk_fma_f32 {v(f+2*d,2)}, {v(f+2*d,2)}, {v(GF+4+2*d,2)}, {v(GF+2*d,2)}' for d in range(2)]
        o += [f'v_cvt_pk_bf16_f32 v{XR+2*i+d}, v{f+2*d}, v{f+2*d+1}' for d in range(2)]
        o.append(f'v_min_u32 v{XR+2*i}, -2, v{XR+2*i}')
        o.append(f'buffer_store_dwordx2 {v(XR+2*i,2)}, v{vHS+i}, {sWS}, {sHS} offen@')
    return o
vHC, HK, CL = 159, 160, 38
def h_clear(): return [f'v_mov_b32 v{CL}, -1', f'v_mov_b32 v{CL+1}, -1'] + [(f'buffer_store_dwordx2 {v(CL,2)}, v{vHS+i}, {sWS}, {sHS} offen', 'clr') for i in range(5)]
def h_cleared(): return [lambda: A.waitvm('clr'), f'buffer_store_dwordx2 {v(vTAG,2)}, v{vFS}, {sWS}, 0 offen offset:{3*512}']
def hk_read(c): return [f'ds_read_b128 {v(HK+4*i,4)}, v{vHC} offset:{(c&1)*20480+1024*i}' for i in range(5)]
def hk_max(): return [f'v_max3_u32 v{HK+1}, v{HK}, v{HK+2}, v{HK+4}'] + [f'v_max3_u32 v{HK+1}, v{HK+1}, v{HK+4*i+2}, v{HK+4*i+4}' for i in (1, 2, 3)] + [f'v_max_u32 v{HK+1}, v{HK+1}, v{HK+18}']
def hk_check(c):
    S, J = A.uniq('again'), A.uniq('hok')
    cmp = [f'v_cmp_eq_u32 vcc, -1, v{HK+1}', 's_cmp_lg_u64 vcc, 0']
    R(cmp)
    if c == 0: I(smov(sCNT, SPIN))
    I(f's_cbranch_scc1 {S}')
    A.label(J)
    if DEBUG and f'hn{c}' in (TSSEL or ()):
        i = len(tsnames); tsnames.append(f'hn{c}')
        A.lg0(force=True)
        R([f's_sub_u32 {sCNT}, {SPIN}, {sCNT}', f's_mul_i32 {sCNT}, {sCNT}, 10000', f's_add_u32 s{TS0+2*i}, s{TS0}, {sCNT}', f's_addc_u32 s{TS0+2*i+1}, s{TS0+1}, 0'])
    def again():
        A.label(S)
        L, X = A.uniq('agl'), A.uniq('agx')
        R(['s_nop 7', 's_mov_b32 s6, m0', f's_mov_b32 s7, {sD}', smov(sCNT, SPIN)])
        A.label(L)
        cur.clear()
        R(h_issue(c))
        I(f's_sub_u32 {sCNT}, {sCNT}, 1')
        I(f's_cbranch_scc1 {X}')
        A.vm0()
        R(hk_read(c) + hk_max() + cmp)
        A.settle()
        I(f's_cbranch_scc1 {L}')
        A.label(X)
        A.vm0()
        R(['s_mov_b32 m0, s6', f's_mov_b32 {sD}, s7'])
        A.settle()
        I(f's_branch {J}')
    slow_blocks.append(again)
def h_issue(c):
    g = (c >> 1) * 86 * 1024 + (c & 1) * 20480
    ld = lambda i: (f'buffer_load_dwordx4 v{vL16}, {sWS}, {sD} offen offset:{1024*i} sc1 lds', f'hc{c}')
    g4 = ctx([[f's_add_u32 m0, {sM5}, {c*20480}', f's_add_u32 {sD}, {sHG}, {g}', ld(0)], [ld(1)], [ld(2)], [ld(3)]])
    del CTX[ld(0)]
    return g4 + [[f's_add_u32 m0, {sM5}, {c*20480+4096}', f's_add_u32 {sD}, {sHG}, {g+4096}', ld(0)]]

def dma_setup():
    return [
        f'v_and_b32 v4, 16, v{vL}', f'v_lshlrev_b32 v4, 1, v4', f'v_xor_b32 v4, v4, v{vL16}',
        f's_and_b32 {sT0}, {sW}, 1', f's_lshl_b32 {sT0}, {sT0}, 6', f'v_xor_b32 v4, {sT0}, v4', f'v_and_b32 v4, 0x70, v4',
        f's_lshl_b32 {sT1}, {sHQ}, 7', f'v_add_u32 v4, {sT1}, v4',
        f'v_lshrrev_b32 v5, 3, v0',
        f'v_mul_u32_u24 v{vWQ}, 3072, v5', f'v_add_u32 v{vWQ}, v{vWQ}, v4',
        f'v_lshl_add_u32 v{vWO}, v5, 10, v4',
        f's_mul_i32 {sM3}, {sW}, 3072', f's_lshl_b32 {sM1}, {sW}, 10',
    ]

NSL = 11
def wslot(ks): return ks if ks < NSL else ks - 5
def wq_issue(ks):
    g = []
    for p in range(3):
        ld = (f'buffer_load_dwordx4 v{vWQ}, {sWQ}, {sD} offen offset:{1024*p}{NT(0)} lds', f'ks{ks}')
        g.append([f's_add_u32 m0, {sM3}, {WL + wslot(ks)*12288}', smov(sD, ks*32*3072), ld] if p == 0 else [ld])
    return ctx(g)

def tr_base(dst, piece, gstride, tmp=4):
    return [
        f'v_lshrrev_b32 v{tmp}, 4, v{vL}', f'v_mul_u32_u24 v{dst}, {gstride}, v{tmp}',
        f'v_bfe_u32 v{tmp}, v{vL}, 2, 2', f'v_lshl_add_u32 v{dst}, v{tmp}, 7, v{dst}',
        f'v_bfe_u32 v{tmp}, v{vL}, 3, 2', f'v_xor_b32 v{tmp}, {piece}, v{tmp}', f'v_lshl_add_u32 v{dst}, v{tmp}, 5, v{dst}',
        f'v_and_b32 v{tmp}, 3, v{vL}', f'v_lshl_add_u32 v{dst}, v{tmp}, 3, v{dst}']

def wq_read(ks):
    sl = wslot(ks)
    return [f'ds_read_b64_tr_b16 {a_(12*ks+4*p+2*hr,2)}, v{vTR+sl//6} offset:{(sl%6)*12288 + p*1024 + hr*512}' for p in range(3) for hr in range(2)]

def wo_issue(i):
    return [f's_add_u32 m0, {sM1}, {RA + i*4096}', smov(sD, i*32768), (f'buffer_load_dwordx4 v{vWO}, {sWO}, {sD} offen{NT(1)} lds', 'wo')]

def rd_setup():
    o = tr_base(vTR, sW, 3072) + [f'v_add_u32 v{vTR+1}, {WL + 72*K}, v{vTR}', f'v_add_u32 v{vTR}, {WL}, v{vTR}']
    return o
def hr_setup():
    return [f'v_lshrrev_b32 v16, 4, v{vL}', f'v_xor_b32 v16, v16, v{vL}', f'v_and_b32 v16, 15, v16', f'v_and_b32 v{vHR}, 15, v{vL}', f'v_lshl_add_u32 v16, v{vHR}, 4, v16',
            f'v_lshlrev_b32 v16, 4, v16', f'v_add_u32 v{vHR}, {HL}, v16', f'v_add_u32 v{vHC}, {sM5}, v{vL16}'] + [f'v_xor_b32 v{vHR+k}, {64*k}, v{vHR}' for k in range(1, 4)]
def flag_setup():
    return [f's_lshl_b32 {sT0}, {sGRP}, 12', f's_add_u32 {sT0}, {sT0}, {FLAGS}', f'v_lshl_add_u32 v{vFO}, v{vL}, 3, {sT0}',
            f's_lshl2_add_u32 {sT0}, {sR}, {sW}', f'v_mov_b32 v4, {OOB:#x}', [f'v_cmp_eq_u32 vcc, {sT0}, v{vL}', f'v_cndmask_b32 v{vFS}, v4, v{vFO}, vcc'],
            f'v_mov_b32 v{vTAG}, s44', f'v_mov_b32 v{vTAG+1}, s45',
            [f's_bitcmp1_b32 {sRB64}, 0', f's_cselect_b32 s82, 0, -1', f's_cselect_b32 s83, -1, 0']]
def w2_setup():
    o = []
    o += [f'v_lshrrev_b32 v4, 3, v{vL}', f'v_lshlrev_b32 v{vW2}, 10, v4', f'v_and_b32 v4, 16, v{vL}', f'v_lshlrev_b32 v4, 2, v4',
          f'v_xor_b32 v4, v4, v{vL16}', f'v_and_b32 v4, 0x70, v4', f's_lshl_b32 {sT0}, {sHQ}, 7', f's_mul_i32 {sT1}, {sW}, {352*1024}',
          f's_add_u32 {sT0}, {sT0}, {sT1}', f'v_add3_u32 v{vW2}, v{vW2}, v4, {sT0}',
          f's_mul_i32 {sM2}, {sW}, {15*K}']
    o += [f'v_lshrrev_b32 v4, 5, v{vL}', f'v_lshlrev_b32 v{vW2R}, 9, v4', f'v_bfe_u32 v4, v{vL}, 2, 2', f'v_lshl_add_u32 v{vW2R}, v4, 7, v{vW2R}',
          f'v_bfe_u32 v4, v{vL}, 3, 1', f's_and_b32 {sT0}, {sW}, 1', f'v_xor_b32 v4, {sT0}, v4', f'v_lshl_add_u32 v{vW2R}, v4, 6, v{vW2R}',
          f'v_bfe_u32 v4, v{vL}, 4, 1', f'v_lshl_add_u32 v{vW2R}, v4, 5, v{vW2R}', f'v_and_b32 v4, 3, v{vL}', f'v_lshl_add_u32 v{vW2R}, v4, 3, v{vW2R}',
          f's_add_u32 {sT0}, {sM3}, {RB + 12*K}', f'v_add_u32 v{vW2R}, {sT0}, v{vW2R}', f'v_xor_b32 v{vW2R+1}, 64, v{vW2R}']
    return [x.replace('v4', 'v16') for x in o]

def tag_fix(): return [f's_add_u32 s44, s44, 0x7f4a7c15', f's_addc_u32 s45, s45, 0x9e3779b9']
def hello_setup():
    return [f's_getreg_b32 {sXCC}, hwreg(HW_REG_XCC_ID)', f's_and_b32 {sXCC}, {sXCC}, 15',
            f's_lshl4_add_u32 {sT0}, {sGRP}, {sR}', f's_lshl_b32 {sT0}, {sT0}, 4', f's_add_u32 {sHEL}, {sT0}, {HELLO}',
            f'v_mov_b32 v32, {sXCC}', f'v_mov_b32 v33, 0', f'v_mov_b32 v34, s44', f'v_mov_b32 v35, s45',
            f'v_lshlrev_b32 v36, 24, v0']
def hello(): return [f'buffer_store_dwordx4 v[32:35], v36, {sWS}, {sHEL} offen sc1']
def hello2():
    return [[f's_add_u32 {sHEL}, {sHEL}, {HELLO2 - HELLO + 8}', f'v_lshlrev_b32 v16, 24, v0', f'buffer_store_dwordx2 {v(vTAG,2)}, v16, {sWS}, {sHEL} offen sc1']]

PART = 0x40000
M2D, M2T, M2A, M2S, vM2A, vM2P, vM2Q, vM2O = 188, 196, 200, 208, 209, 210, 211, 212
sONE = sBIAS
def m2_load():
    return [[f's_lshr_b32 s6, {sRK}, 2', f's_and_b32 s7, {sRK}, 3', f's_lshl2_add_u32 s7, {sXG}, s7', f'v_lshrrev_b32 v213, 3, v0',
             f'v_lshl_add_u32 v213, s6, 5, v213', f's_add_u32 s7, s7, 40', f'v_and_b32 v214, 0x70, v{vL16}', f'v_lshl_add_u32 v214, s7, 7, v214',
             f'v_mad_u32_u24 v{vM2A}, v213, {sK12}, v214', f'v_lshlrev_b32 v213, 2, v213', (f'global_load_dword v{M2S}, v213, {pC}', 'm2')] +
            [(f'global_load_dwordx4 {v(M2D+4*j,4)}, v{vM2A}, {pWM} offset:{3072 if j else -3072}', 'm2') for j in range(2)]]
def m2_setup():
    c = M2T
    return [f's_and_b32 {sT1}, {sRK}, 3', f's_lshl2_add_u32 {sT1}, {sXG}, {sT1}', f's_and_b32 {sT0}, {sRK}, 28', f's_lshl_b32 {sT2}, {sT1}, 14', f's_add_u32 {sT2}, {sT2}, {PART}',
         f's_add_u32 {sT3}, {sT0}, {sW}', f's_lshl_b32 {sT3}, {sT3}, 9', f's_add_u32 {sT3}, {sT3}, {sT2}',
         f'v_and_b32 v{c}, 15, v{vL}', f'v_and_b32 v{c+1}, 0x30, v{vL}', f'v_lshl_add_u32 v{c+1}, v{c}, 6, v{c+1}', f'v_add_u32 v{c+1}, {sT3}, v{c+1}', f'v_mov_b32 v{c+2}, {OOB:#x}',
         [f'v_cmp_gt_u32 vcc, 8, v{c}', f's_lshl4_add_u32 {sT2}, {sT0}, {sT2}', f'v_lshrrev_b32 v{c}, 2, v0', f'v_cndmask_b32 v{vM2P}, v{c+2}, v{c+1}, vcc'],
         f'v_and_b32 v{c+1}, 0x30, v{vL16}', f'v_lshl_add_u32 v{c+1}, v{c}, 9, v{c+1}', f'v_add_u32 v{c+1}, {sT2}, v{c+1}',
         [f'v_cmp_gt_u32 vcc, 64, v0', f's_lshl_b32 {sT1}, {sT1}, 5', f's_add_u32 {sT1}, {sT1}, {sT0}', f'v_cndmask_b32 v{vM2Q}, v{c+2}, v{c+1}, vcc'],
         f's_lshl3_add_u32 {sT1}, {sT1}, 4096', f'v_lshl_add_u32 v{c+1}, v0, 3, {sT1}', f'v_and_b32 v{c}, 0xfd, v0',
         [f'v_cmp_eq_u32 vcc, 0, v{c}', f's_lshr_b32 {sT0}, {sXG}, 1', f's_cmp_eq_u32 {sT0}, 2', f's_cselect_b32 {sONE}, 1.0, 0', f'v_cndmask_b32 v{vM2O}, v{c+2}, v{c+1}, vcc']]
def m2_a():
    c = M2T; m = M2A
    o = [smov(sT0, 0x05040100), smov(sT1, 0x07060302), f'v_lshlrev_b32 v{c}, 16, v{M2S}', f'v_and_b32 v{c+1}, 0xffff0000, v{M2S}']
    for op in (f'v_mul_f32 v@2, {-LOG2E!r}, v@0', 'v_exp_f32 v@2, v@2', 'v_add_f32 v@2, 1.0, v@2', 'v_rcp_f32 v@2, v@2', 'v_mul_f32 v@0, v@0, v@2'):
        o += [op.replace('@2', str(c+2+k)).replace('@0', str(c+k)) for k in range(2)]
    o.append(f'v_cvt_pk_bf16_f32 v{M2S}, v{c}, v{c+1}')
    for d in range(4):
        t = M2T + 2*(d & 1)
        o += [f'v_perm_b32 v{t}, v{M2D+4+d}, v{M2D+d}, {sT0}', f'v_perm_b32 v{t+1}, v{M2D+4+d}, v{M2D+d}, {sT1}',
              f'v_dot2_f32_bf16 v{m+2*d}, v{t}, v{M2S}, 0', f'v_dot2_f32_bf16 v{m+2*d+1}, v{t+1}, v{M2S}, 0']
    o += [f'v_permlane32_swap_b32 v{m+i}, v{m+i+4}' for i in range(4)] + [f'v_add_f32 v{m+i}, v{m+i}, v{m+i+4}' for i in range(4)]
    o += [f'v_permlane16_swap_b32 v{m+i}, v{m+i+2}' for i in range(2)] + [f'v_add_f32 v{m+i}, v{m+i}, v{m+i+2}' for i in range(2)]
    o += [f'v_mov_b32 v{m+2}, s44', f'v_mov_b32 v{m+3}, s45']
    o += [f'v_add_f32_dpp v{m+i}, v{m+i}, v{m+i} row_ror:8 row_mask:0xf bank_mask:0xf' for i in range(2)]
    return o
def m2_st(): return [f'buffer_store_dwordx4 {v(M2A,4)}, v{vM2P}, {sWS}, 0 offen sc1']
def m2_ld2(): return [(f'buffer_load_dwordx4 {v(M2D,4)}, v{vM2Q}, {sWS}, 0 offen sc1', 'poll'), (f'buffer_load_dwordx4 {v(M2D+4,4)}, v{vM2Q}, {sWS}, {sG0} offen sc1', 'poll')]
def m2_check():
    check_loop(m2_ld2(), [f'v_cmp_ne_u64 vcc, {TAG}, {v(M2D+2,2)}', f'v_cmp_ne_u64 s[6:7], {TAG}, {v(M2D+6,2)}', f's_or_b64 vcc, vcc, s[6:7]',
                          f's_cselect_b32 s6, 1, 0', f's_cmp_gt_u32 s6, {sW}'], 'm2')
def m2_b():
    p = M2D; m = M2A
    o = [f'v_add_f32 v{p+i}, v{p+i}, v{p+4+i}' for i in range(2)]
    for rot in (4, 8):
        o += [f'v_add_f32_dpp v{p+i}, v{p+i}, v{p+i} row_ror:{rot} row_mask:0xf bank_mask:0xf' for i in range(2)]
    for n in (16, 32):
        o += [f'v_mov_b32 v{p+4+i}, v{p+i}' for i in range(2)] + [f'v_permlane{n}_swap_b32 v{p+i}, v{p+4+i}' for i in range(2)] + [f'v_add_f32 v{p+i}, v{p+i}, v{p+4+i}' for i in range(2)]
    o += [f'v_cvt_pk_bf16_f32 v{p+4}, v{p}, v{p+1}', f'v_lshlrev_b32 v{p}, 16, v{p+4}', f'v_and_b32 v{p+1}, 0xffff0000, v{p+4}',
          f'v_add_f32 v{p}, {sONE}, v{p}', f'v_add_f32 v{p+1}, {sONE}, v{p+1}', f'v_cvt_pk_bf16_f32 v{m}, v{p}, v{p+1}',
          f'v_mov_b32_dpp v{m+1}, v{m} quad_perm:[1,1,3,3] row_mask:0xf bank_mask:0xf',
          f'buffer_store_dwordx4 {v(m,4)}, v{vM2O}, {sWS}, 0 offen sc1']
    return o

AONE = 192
vXL = 151
def late_setup():
    o = [f'v_and_b32 v36, 1, v{vL}', f'v_cmp_eq_u32 {mP}, 1, v36', f'v_lshrrev_b32 v35, 4, v{vL}', f'v_lshl_add_u32 v35, v35, 2, v36',
         f'v_and_b32 v36, 15, v{vL}', f'v_cmp_le_u32 {mC0}, v35, v36', f'v_add_u32 v35, 2, v35', f'v_cmp_le_u32 {mC1}, v35, v36',
         f'v_mov_b32 v36, 0xffff', f'v_mov_b32 v35, 0xffff0000', f'v_cndmask_b32 v36, v36, v35, {mP}',
         f'v_cndmask_b32 v{MK}, v36, 0, {mC0}', f'v_cndmask_b32 v{MK+1}, v36, 0, {mC1}',
         f'v_cndmask_b32 v{MK+2}, 0, v36, {mC0}', f'v_cndmask_b32 v{MK+3}, 0, v36, {mC1}', f'v_mov_b32 v36, 0x3f803f80']
    o += [f'v_accvgpr_write_b32 a{AONE+i}, v36' for i in range(4)]
    o += [[f's_cmp_eq_u32 {sRB64}, 0', f's_cselect_b32 {sT0}, {f2u(-4e9):#x}, 0'], smov(sCS, f2u(0.25 * LOG2E))] + [f'v_mov_b32 v{BIAS+i}, {sT0}' for i in range(4)]
    o += [f's_mul_i32 {sT0}, {sRB64}, {2*86*1024}', f's_lshl2_add_u32 {sT1}, {sHQ}, {sW}', f's_lshl_b32 {sT1}, {sT1}, 9',
          f's_add_u32 {sT0}, {sT0}, {sT1}', f's_add_u32 {sT0}, {sT0}, {HB}', smov(sX0, 86*1024),
          f'v_bfe_u32 v35, v{vL}, 4, 1', f'v_lshlrev_b32 v35, 14, v35', f'v_lshrrev_b32 v36, 5, v{vL}', f'v_lshl_add_u32 v35, v36, 8, v35',
          f'v_and_b32 v36, 0xf0, v{vL16}', f'v_add3_u32 v{vOA}, v35, v36, {sT0}']
    o += [f's_lshl2_add_u32 {sT2}, {sRB64}, {sW}', f's_lshl_b32 {sT2}, {sT2}, 7', f's_add_u32 {sT2}, {sT2}, {sHQ}', f's_lshl_b32 {sT2}, {sT2}, 7',
          f's_lshr_b32 {sT3}, {sW}, 1', f's_lshl1_add_u32 {sLB}, {sRB64}, {sT3}', f's_mul_i32 {sLB}, {sLB}, {86*1024}',
          f's_and_b32 {sT3}, {sW}, 1', f's_lshl_b32 {sT3}, {sT3}, 14', f's_add_u32 {sLB}, {sLB}, {sT3}', f's_add_u32 {sLB}, {sLB}, {HB}',
          f'v_and_b32 v36, 15, v{vL}', f'v_lshl_add_u32 v36, v36, 10, {sT2}', f'v_bfe_u32 v35, v{vL}, 4, 1', f'v_lshl_add_u32 v36, v35, 5, v36', f'v_lshrrev_b32 v35, 5, v{vL}', f'v_lshl_add_u32 v{vXL}, v35, 4, v36']
    o += [f's_mul_i32 {sT0}, {sR}, 12', f's_sub_u32 {sT1}, 172, {sT0}', f's_lshl_b32 {sT0}, {sT0}, 4', f's_mul_i32 {sT2}, {sW}, {16*2752}', f's_add_u32 {sT0}, {sT0}, {sT2}',
          f'v_mov_b32 v37, {OOB:#x}']
    for t in range(3):
        o += [f'v_add_u32 v36, {64*t}, v{vL}', f'v_mul_u32_u24 v35, 171, v36', f'v_lshrrev_b32 v35, 11, v35', f'v_mul_u32_u24 v32, 12, v35', f'v_sub_u32 v36, v36, v32',
              [f'v_cmp_gt_i32 vcc, {sT1}, v36', f'v_mul_u32_u24 v35, 2752, v35', f'v_lshl_add_u32 v36, v36, 4, {sT0}', f'v_add_u32 v36, v36, v35',
              f'v_cndmask_b32 v{vW1+t}, v37, v36, vcc']] + ([f's_sub_u32 {sT0}, {sT0}, 1024'] if t < 2 else [])
    o += [f'v_lshlrev_b32 v36, 4, v0', f'v_add_u32 v{vG2A}, 4096, v36', smov(sG1, 4096), smov(sG0, 8192), f'v_lshlrev_b32 v36, 3, v0', f'v_add_u32 v{vG2W}, {MV}, v36']
    return o

def check_loop(loads, cmps, name='-'):
    L, D = A.uniq('chk'), A.uniq('ok')
    I(smov(sCNT, SPIN))
    A.waitvm('poll')
    ts(name + 'r')
    A.settle()
    A.label(L)
    R(cmps)
    I(f's_cbranch_scc0 {D}')
    A.cond = L
    I(f's_sub_u32 {sCNT}, {sCNT}, 1')
    I(f's_cbranch_scc1 {D}')
    R(loads)
    A.vm0()
    I(f's_branch {L}')
    A.cond = None
    A.label(D)
    if DEBUG and name + 'n' in (TSSEL or ()):
        i = len(tsnames); tsnames.append(name + 'n')
        A.lg0(force=True)
        R([f's_sub_u32 {sCNT}, {SPIN}, {sCNT}', f's_mul_i32 {sCNT}, {sCNT}, 10000', f's_add_u32 s{TS0+2*i}, s{TS0}, {sCNT}', f's_addc_u32 s{TS0+2*i+1}, s{TS0+1}, 0'])

vPD = 4
def poll_load(phase): return (f'buffer_load_dwordx2 v[4:5], v{vFO}, {sWS}, {sPH if phase == 1 else 0} offen offset:{phase*512} sc1', 'poll')
def poll_check(phase, mask):
    check_loop([poll_load(phase)], [f'v_cmp_ne_u64 vcc, {TAG}, v[4:5]', f's_and_b64 vcc, vcc, {mask}'], f'p{phase}')

slow_blocks = []
def pubs(body): return [((o.replace('@', ''), 'pub') if isinstance(o, str) and '@' in o else o) for o in body]
def publish(body, phase, bg=(), shadow=(), stores=None, flag=True, label=None):
    S, J = A.uniq('slow'), A.uniq('join')
    stores = [o for o in (stores or body) if '@' in o]
    R(pubs(body))
    if label: A.label(label)
    I(f's_cmp_eq_u32 {sFAST}, 0')
    I(f's_cbranch_scc1 {S}')
    A.label(J)
    R(pace(list(shadow), list(bg), period=opt('bgper', 40)) if shadow else list(bg))
    if flag:
        A.waitvm('pub')
        I(f'buffer_store_dwordx2 {v(vTAG,2)}, v{vFS}, {sWS}, 0 offen offset:{phase*512}')
    def slow():
        A.label(S)
        I('s_nop 7')
        R([o.replace('@', ' sc1') for o in stores])
        A.vm0()
        I(f'buffer_store_dwordx2 {v(vTAG,2)}, v{vFS}, {sWS}, 0 offen offset:{phase*512} sc1')
        A.settle()
        I(f's_branch {J}')
    slow_blocks.append(slow)

def g1_load(): return [(f'buffer_load_dwordx4 {v(GD,4)}, v{vGA}, {sWS}, 0 offen sc1', 'poll')] if opt('nohel') else [(f'buffer_load_dwordx4 {v(HD,4)}, v{vHA}, {sWS}, 0 offen sc1', 'poll'), (f'buffer_load_dwordx4 {v(GD,4)}, v{vGA}, {sWS}, 0 offen sc1', 'poll')]
def g1_check():
    check_loop(g1_load(), [f'v_cmp_ne_u64 vcc, {TAG}, {v(GD+2,2)}', f'v_cmp_ne_u64 s[6:7], {TAG}, {v((GD if opt("nohel") else HD)+2,2)}', f's_or_b64 vcc, vcc, s[6:7]'], 'g1')
G2 = 80
vG2A, vG2W = 248, 249
def g2_loads():
    g = G2
    return [(f'buffer_load_dwordx4 {v(g,4)}, v{vG2A}, {sWS}, 0 offen sc1', 'poll'),
            (f'buffer_load_dwordx4 {v(g+4,4)}, v{vG2A}, {sWS}, {sG1} offen sc1', 'poll')]
def g2_check():
    g = G2
    check_loop(g2_loads(), [f'v_cmp_ne_u64 vcc, {TAG}, {v(g+2,2)}', f'v_cmp_ne_u64 s[6:7], {TAG}, {v(g+6,2)}', f's_or_b64 vcc, vcc, s[6:7]'], 'g2')
def g2_post():
    g = G2
    return [f'ds_write_b64 v{vG2W}, {v(g,2)}', f'ds_write_b64 v{vG2W}, {v(g+4,2)} offset:2048']

ACC = 24
def accQ(T): return ACC + 4 * (T - 1)
def accK(T): return ACC + 16 + 4 * T
def accV(T): return ACC + 36 + 4 * T
HFR = 96
def h_read(ks):
    return [f'ds_read_b128 {v(HFR+20*(ks&1)+4*T,4)}, v{vHR+(ks&3)} offset:{((ks>>2)&1)*20480+T*4096}' for T in range(5)]
def qkv_mfma(ks):
    o = []
    for T in range(5):
        h = v(HFR + 20 * (ks & 1) + 4 * T, 4)
        def m(d, x, y): o.append(f'v_mfma_f32_16x16x32_bf16 {v(d,4)}, {x}, {y}, ' + ('0' if ks == 0 else v(d, 4)))
        m(accK(T), a_(12*ks+4, 4), h)
        m(accV(T), h, a_(12*ks+8, 4))
        if T: m(accQ(T), a_(12*ks, 4), h)
    return o

AUA, AGA, AG2, AGB = 192, 224, 232, 248
def modvec_read():
    o = [f's_lshl_b32 {sT0}, {sHQ}, 7', f's_add_u32 {sT0}, {sT0}, {MV}', f'v_lshrrev_b32 v14, 4, v{vL}', f'v_lshl_add_u32 v14, v14, 3, {sT0}']
    for j in range(4):
        o.append(f'ds_read_b64 {v(CG+4*j+2,2)}, v14 offset:{32*j}')
        o.append(f'ds_read_b64 {v(CG+16+4*j+2,2)}, v14 offset:{2048+32*j}')
    o += [f's_and_b32 {sT1}, {sW}, 1', f's_lshl_b32 {sT1}, {sT1}, 6', f's_add_u32 {sT0}, {sT0}, {sT1}',
          f'v_lshrrev_b32 v15, 5, v{vL}', f'v_lshl_add_u32 v14, v15, 3, {sT0}']
    for q in range(4):
        o.append(f'ds_read_b64 {a_(AGB+2*q,2)}, v14 offset:{3072+16*q}')
    o += [f's_lshl_b32 {sT0}, {sW}, 8', f's_add_u32 {sT0}, {sT0}, {MV+1024}', f'v_lshl_add_u32 v15, v15, 3, {sT0}',
          f'v_and_b32 v14, 4, v{vL}', f'v_lshl_add_u32 v14, v14, 8, v15']
    for i in range(8):
        for hr in range(2):
            o.append(f'ds_read_b64 {a_(AUA+4*i+2*hr,2)}, v14 offset:{(i>>1)*64+(i&1)*16+hr*32}')
    return o

MK, ONE, BIAS = 216, 220, 224
def attention():
    QB, KB, VB = 136, 144, 154
    SC, SP = 164, 180
    LG, MX = 196, 204
    PB, OA, SM = 164, 180, 228
    OS = 208
    o = []
    def cvt(d, s): return [f'v_cvt_pk_bf16_f32 v{d}, v{s}, v{s+1}', f'v_cvt_pk_bf16_f32 v{d+1}, v{s+2}, v{s+3}']
    o += cvt(KB, accK(0))
    for T in range(1, 5): o += cvt(KB + 2*T, accK(T)) + cvt(QB + 2*(T-1), accQ(T))
    for T in range(1, 5):
        t = T - 1
        o.append(f'v_mfma_f32_16x16x16_bf16 {v(SC+4*t,4)}, {v(KB+2*T,2)}, {v(QB+2*t,2)}, 0')
        if T == 1: o += cvt(VB, accV(0))
        o.append(f'v_mfma_f32_16x16x16_bf16 {v(SP+4*t,4)}, {v(KB+2*t,2)}, {v(QB+2*t,2)}, ' + (v(BIAS, 4) if T == 1 else '0'))
        o += cvt(VB + 2*T, accV(T))
    for t in range(4):
        for e in range(2):
            o.append(f'v_cndmask_b32 v{SC+4*t+2*e}, v{SC+4*t+2*e}, v{SC+4*t+2*e+1}, {mP}')
            o.append(f'v_cndmask_b32 v{SP+4*t+2*e}, v{SP+4*t+2*e}, v{SP+4*t+2*e+1}, {mP}')
            o.append(f'v_cndmask_b32 v{LG+2*t+e}, v{SP+4*t+2*e}, v{SC+4*t+2*e}, {mC1 if e else mC0}')
        o.append(f'v_max_f32 v{MX+t}, v{LG+2*t}, v{LG+2*t+1}')
    cs = 0.25 * LOG2E
    o += [f'v_permlane16_swap_b32 v{MX}, v{MX+1}', f'v_permlane16_swap_b32 v{MX+2}, v{MX+3}',
          f'v_max_f32 v{MX}, v{MX}, v{MX+1}', f'v_max_f32 v{MX+2}, v{MX+2}, v{MX+3}',
          f'v_permlane32_swap_b32 v{MX}, v{MX+2}', f'v_max_f32 v{MX}, v{MX}, v{MX+2}',
          f'v_mul_f32 v{MX+2}, {f2u(-cs):#x}, v{MX}', f'v_mul_f32 v{MX}, {f2u(-cs):#x}, v{MX}',
          f'v_permlane32_swap_b32 v{MX}, v{MX+2}', f'v_mov_b32 v{MX+1}, v{MX}', f'v_mov_b32 v{MX+3}, v{MX+2}',
          f'v_permlane16_swap_b32 v{MX}, v{MX+1}', f'v_permlane16_swap_b32 v{MX+2}, v{MX+3}']
    for t in range(4):
        for e in range(2): o.append(f'v_fma_f32 v{LG+2*t+e}, v{LG+2*t+e}, {sCS}, v{MX+t}')
    for t in range(4):
        for e in range(2): o.append(f'v_exp_f32 v{LG+2*t+e}, v{LG+2*t+e}')
    def pv(u): return [f'v_mfma_f32_16x16x32_bf16 {v(SM+4*u,4)}, {a_(AONE,4)}, {v(PB+4*u,4)}, 0',
                       f'v_mfma_f32_16x16x32_bf16 {v(OA+4*u,4)}, {v(VB+2*u,4)}, {v(PB+4*u,4)}, 0']
    for t in range(4):
        p = [f'v_cvt_pk_bf16_f32 v{LG+2*t+e}, v{LG+2*t+e}, v{LG+2*t+e}' for e in range(2)]
        p += [f'v_and_b32 v{PB+4*t+i}, v{MK+i}, v{LG+2*t+(i&1)}' for i in range(4)]
        if t:
            m = pv(t - 1)
            p = p[:2] + [m[0]] + p[2:4] + [m[1]] + p[4:]
        o += p
    def fin(t): return [f'v_rcp_f32 v{SM+4*t}, v{SM+4*t}'] + [f'v_mul_f32 v{OA+4*t+i}, v{OA+4*t+i}, v{SM+4*t}' for i in range(4)] + cvt(OS + 2*t, OA + 4*t)
    m = pv(3)
    f0 = fin(0)
    o += f0[:2] + [m[0]] + f0[2:4] + [m[1]] + f0[4:] + fin(1)
    tail = [f'v_permlane16_swap_b32 v{OS+i}, v{OS+2+i}' for i in range(2)]
    tail += [f'buffer_store_dwordx4 {v(OS,4)}, v{vOA}, {sWS}, 0 offen@']
    tail += fin(2) + fin(3)
    tail += [f'v_permlane16_swap_b32 v{OS+4+i}, v{OS+6+i}' for i in range(2)]
    tail += [f'buffer_store_dwordx4 {v(OS+4,4)}, v{vOA}, {sWS}, {sX0} offen@']
    return o, tail

vW1 = 252
def w1_issue(i):
    g = ctx([([f's_add_u32 m0, {sM3}, {RB + i*12288}', smov(sD, i*64*2752)] if t == 0 else []) +
            [(f'buffer_load_dwordx4 v{vW1+t}, {sW1}, {sD} offen offset:{1024*t}{NT(2)} lds', f'w1_{i}')] for t in range(3)])
    if i in A2:
        k = A2.index(i)
        def f():
            assert A.tokc[f'w2r{k}'] >= 6
            A.waitlg(f'w2r{k}')
        g[0] = [f] + g[0]
    return g

X1 = 24
CG = 40
CAC = 72
CO = 96
CW = 160
vC = 10
vYA, vSA = 250, 251
MKR, vYM = 244, 124
sPH = 's81'
XC = 88
def c_xload():
    return [f'buffer_load_dwordx4 {v(XC+4*j,4)}, v{vXL}, {sX}, 0 offen offset:{64*j}' for j in range(2)]

def c_base():
    return tr_base(vC, 0, 1024, tmp=16) + [f'v_xor_b32 v{vC+j}, {32*j}, v{vC}' for j in range(1, 4)]
def c_unpack():
    o = []
    for j in range(8):
        r = CG + 4*j
        o += [f'v_lshlrev_b32 v{r}, 16, v{r+2}', f'v_and_b32 v{r+1}, 0xffff0000, v{r+2}', f'v_lshlrev_b32 v{r+2}, 16, v{r+3}', f'v_and_b32 v{r+3}, 0xffff0000, v{r+3}']
    o = [f'v_permlane16_swap_b32 v{XC+4*j+i}, v{XC+4*j+2+i}' for j in range(2) for i in range(2)] + o
    for k in range(8):
        o += [f'v_lshlrev_b32 v{X1+2*k}, 16, v{XC+k}', f'v_and_b32 v{X1+2*k+1}, 0xffff0000, v{XC+k}']
    return o
def c_addr():
    o = []
    o += [f's_lshl_b32 {sT0}, {sRB64}, 16', f's_lshr_b32 {sT1}, {sW}, 1', f's_lshl_b32 {sT1}, {sT1}, 15', f's_add_u32 {sT0}, {sT0}, {sT1}',
          f's_lshl_b32 {sT1}, {sHQ}, 12', f's_add_u32 {sT0}, {sT0}, {sT1}', f's_and_b32 {sT1}, {sW}, 1', f's_lshl_b32 {sT1}, {sT1}, 8',
          f's_add_u32 {sS0}, {sT0}, {sT1}',
          f'v_lshrrev_b32 v16, 4, v{vL}', f'v_and_b32 v{vYA}, 0xf0, v{vL16}', f'v_lshl_add_u32 v{vYA}, v16, 9, v{vYA}',
          f's_lshl_b32 {sT0}, {sRB64}, 12', f's_lshl_b32 {sT1}, {sW}, 10', f's_add_u32 {sT0}, {sT0}, {sT1}', f's_lshl_b32 {sT1}, {sHQ}, 3',
          f's_add_u32 {sT0}, {sT0}, {sT1}', f's_add_u32 {sS1}, {sT0}, {STATS}',
          f'v_and_b32 v{vSA}, 15, v{vL}', f'v_lshlrev_b32 v{vSA}, 6, v{vSA}', f'v_and_b32 v16, 1, v16', f'v_lshl_add_u32 v{vSA}, v16, 2, v{vSA}']
    o += [f'v_mov_b32 v{MKR+i}, -1' for i in range(4)]
    return o

def frag_loads(dst, n, sreg, bump=None, srd=sWS):
    g = []
    for i in range(n):
        o = []
        if i and i % 4 == 0: o.append(f's_add_u32 {sreg}, {sreg}, ' + (bump if (bump and i == 20) else '4096'))
        o.append(f'buffer_load_dwordx4 {v(dst+4*i,4)}, v{vL16}, {srd}, {sreg} offen offset:{(i&3)*1024} sc1')
        g.append(o)
    return g

def cw(ks, j, n):
    ks %= 12
    return a_(80+16*ks+j, n) if ks < 7 else v(CW+16*(ks-7)+j, n)
def c_rd(ks):
    return [f'ds_read_b64_tr_b16 {cw(ks, 4*j+2*hr, 2)}, v{vC+j} offset:{RA+ks*4096+hr*512}' for j in range(4) for hr in range(2)]
def c_main(bg, npre, extra, pre):
    i7 = [i for i, g in enumerate(bg) if isinstance(g, list) and isinstance(g[-1], tuple) and g[-1][1] == 'w1_7'][0]
    bg = list(bg); bg[i7] = ['s_barrier'] + bg[i7]
    ld = frag_loads(CO, 16, sLB) + bg
    LA = opt('cla', 8)
    R(pace(pre, ld[:LA], period=opt('cper', 0)))
    rd = cat(*[c_rd(k) for k in range(npre, 16)])
    n0 = opt('crd0', 32)
    R(rd[:n0]); rd = rd[n0:]
    mm = [f'v_mfma_f32_16x16x32_bf16 {v(CAC+4*j,4)}, {cw(ks, 4*j, 4)}, {v(CO+4*ks,4)}, ' + ('0' if ks == 0 else v(CAC+4*j,4)) for ks in range(16) for j in range(4)]
    pins = {4*k: flat(ld[k+LA]) for k in range(16) if k + LA < len(ld)}
    seq = gaps(mm, [(rd, 0, min(64, max(1, len(rd)*2//3))), (extra, 36, 64)], pins)
    for ks in range(12, 16): assert min(seq.index(o) for o in c_rd(ks)) > seq.index(mm[4*(ks-12)+3])
    for ks in range(npre, 16): assert all(o not in seq or seq.index(o) < seq.index(mm[4*ks]) - 6 for o in c_rd(ks))
    ts('c0')
    R(seq)
    ts('cend')
    return ld[16+LA:]

def c_epi():
    YT, YP = 96, 112
    o = []
    for h in range(2):
        ks = range(4*h, 4*h+4)
        o += [f'v_pk_fma_f32 {v(X1+2*k,2)}, {v(CAC+2*k,2)}, {v(CG+2*k,2)}, {v(X1+2*k,2)}' for k in ks]
        o += [f'v_pk_mul_f32 {v(YT+2*k,2)}, {v(X1+2*k,2)}, {v(CG+16+2*k,2)}' for k in ks]
        o += [f'v_cvt_pk_bf16_f32 v{YP+k}, v{YT+2*k}, v{YT+2*k+1}' for k in ks]
        o += [f'v_min_u32 v{YP+4*h}, -2, v{YP+4*h}']
        o += [f'buffer_store_dwordx4 {v(YP+4*h,4)}, v{vYA}, {sOUT}, {sS0} offen offset:{2048*h}@']
    o += [f'v_pk_add_f32 v[120:121], {v(X1,2)}, {v(X1+2,2)}', f'v_pk_mul_f32 v[122:123], {v(X1,2)}, {v(X1,2)}']
    for k in range(1, 8):
        if k > 1: o.append(f'v_pk_add_f32 v[120:121], v[120:121], {v(X1+2*k,2)}')
        o.append(f'v_pk_fma_f32 v[122:123], {v(X1+2*k,2)}, {v(X1+2*k,2)}, v[122:123]')
    o += ['v_add_f32 v120, v120, v121', 'v_add_f32 v122, v122, v123', 'v_permlane16_swap_b32 v120, v122', 'v_add_f32 v120, v120, v122',
          'v_mov_b32 v122, v120', 'v_permlane32_swap_b32 v120, v122', 'v_add_f32 v120, v120, v122', 'v_min_u32 v120, -2, v120',
          f'buffer_store_dword v120, v{vSA}, {sWS}, {sS1} offen@']
    return o

NA2 = opt('na2', 6)
A2 = [2, 3, 4, 5, 6, 1][:NA2]
def w2_rebase():
    return [[f's_mul_i32 {sT0}, {sW}, {12*K}', f's_sub_u32 {sT0}, {sT0}, {RB + 12*K}', f'v_add_u32 v{vW2R}, {sT0}, v{vW2R}', f'v_add_u32 v{vW2R+1}, {sT0}, v{vW2R+1}']]
def w2a_issue(i):
    g = []
    for p in range(3):
        ld = (f'buffer_load_dwordx4 v{vW2}, {sW2}, {sD} offen offset:{1024*p}{NT(3)} lds', f'w2a{i}')
        CTX[ld] = [f's_add_u32 m0, {sM3}, {RB + A2[i]*12288}', smov(sD, (3*i+p)*8192 - 1024*p)]
        g.append(CTX[ld][(1 if p else 0):] + [ld])
    return g
def w2_frag(b, off, tok=None):
    s, hr = divmod(b, 2)
    return [(f'ds_read_b64_tr_b16 {a_(8*s+4*slot+2*hr,2)}, v{vW2R+slot} offset:{off}', tok) for slot in range(2)]
def w2a_read(i):
    f = lambda: A.waitvm(f'w2a{i}')
    return [f] + cat(*[w2_frag(3*i+p, (A2[i]-1)*12288 + 1024*p, f'w2r{i}') for p in range(3)])
NB2 = 44 - 3*NA2
def w2_issue(b):
    def f():
        assert A.tokc[f'w2s{b-15}'] == 2
        A.waitlg(f'w2s{b-15}')
    return ([f] if b >= 15 else []) + [f's_add_u32 m0, {sM2}, {b%15*1024}', smov(sD, ((3*NA2+b) % (18 if b >= opt('xw2', 99) else 99))*8192), (f'buffer_load_dwordx4 v{vW2}, {sW2}, {sD} offen{NT(3)} lds', f'w2_{b}')]
def w2_read(b): return [[lambda: A.waitvm(f'w2_{b}', 1)] + w2_frag(3*NA2+b, b%15*1024, f'w2s{b}')]

DAC, DW, DST, DY = 40, 88, 112, 128
vD, vU = 14, 23
sH0, sH1, sH2, sYB = 's32', 's33', 's34', 's35'
vUT, vSB = 120, 123
vST = 16
def d_setup():
    o = [f'v_lshrrev_b32 v16, 5, v{vL}', f'v_bfe_u32 v{vD}, v{vL}, 2, 2', f'v_lshl_add_u32 v16, v16, 2, v{vD}', f'v_mul_u32_u24 v{vD}, 192, v16',
         f'v_bfe_u32 v16, v{vL}, 4, 1', f'v_lshl_add_u32 v{vD}, v16, 5, v{vD}', f'v_and_b32 v16, 3, v{vL}', f'v_lshl_add_u32 v{vD}, v16, 3, v{vD}',
         f'v_add_u32 v{vD}, {RB}, v{vD}', f'v_add_u32 v{vD+1}, {4*12288}, v{vD}',
         f's_mul_i32 {sT0}, {sW}, {2*12288}', f'v_add_u32 v{vU}, {sT0}, v{vD}']
    return o
def d_setup2():
    return [
        f'v_and_b32 v{vST}, 31, v{vL}', f'v_lshlrev_b32 v{vST}, 6, v{vST}', f'v_and_b32 v17, 32, v{vL}', f'v_add_u32 v{vST}, v{vST}, v17',
        f's_lshl_b32 {sT0}, {sGRP}, 2', f's_add_u32 {sT0}, {sT0}, {sW}',
        f's_lshl_b32 {sLB2}, {sT0}, 11', f's_add_u32 {sLB2}, {sLB2}, {STATS}',
        f's_lshl_b32 {sYB}, {sT0}, 15',
        f's_mul_i32 {sT0}, {sT0}, {86*1024}', f's_mul_i32 {sT1}, {sR}, {6*1024}', f's_add_u32 {sT0}, {sT0}, {sT1}',
        f's_add_u32 {sH0}, {sT0}, {HB}', f's_add_u32 {sH1}, {sH0}, 2048', f's_add_u32 {sH2}, {sH0}, 4096',
        [f's_cmp_ge_u32 {sR}, 14', f's_cselect_b32 {sH1}, {OOB:#x}, {sH1}', f's_cselect_b32 {sH2}, {OOB:#x}, {sH2}'],
        [f's_cmp_eq_u32 {sR}, 15', f's_cselect_b32 {sH0}, {OOB:#x}, {sH0}'],
        smov(sT1, 0xcccccccc),
        [f's_bitcmp1_b32 {sW}, 0', f's_cselect_b32 {sT0}, {sT1}, 0x33333333'],
        [f's_bitcmp1_b32 {sW}, 1', f's_cselect_b32 s62, 0, {sT0}', f's_cselect_b32 s63, {sT0}, 0'],
        f's_mul_i32 {sT0}, {sW}, 768', f's_add_u32 {sT0}, {sT0}, {UT}', f'v_lshl_add_u32 v17, v{vL}, 2, {sT0}',
        f'v_lshlrev_b32 v7, 2, v{vL}', f'v_add_u32 v7, {UT}, v7',
    ]

def w1_rd(k16, buf, base=vD, ts_=range(3)):
    return [f'ds_read_b64_tr_b16 {v(DW+12*buf+4*t+2*hr,2)}, v{base+(k16>>4)} offset:{((k16>>2)&3)*12288+t*64+((k16>>1)&1)*6144+hr*3072+(k16&1)*1536}' for t in ts_ for hr in range(2)]

UAC = 208
UTT = UAC + 1
def d_ut2():
    o = [f'ds_read_b32 v{UTT+3*w+t}, v7 offset:{768*w+256*t}' for w in range(4) for t in range(3)]
    for t in range(3):
        o += [f'v_add_f32 v{UTT+t}, v{UTT+t}, v{UTT+3+t}', f'v_add_f32 v{UTT+6+t}, v{UTT+6+t}, v{UTT+9+t}', f'v_add_f32 v{vUT+t}, v{UTT+t}, v{UTT+6+t}']
    return o

def stats_load(dst, sreg):
    return [f'buffer_load_dwordx4 {v(dst,4)}, v{vST}, {sWS}, {sreg} offen sc1', f'buffer_load_dwordx4 {v(dst+4,4)}, v{vST}, {sWS}, {sreg} offen offset:16 sc1']

def stats_ops(d):
    o = []
    for e in range(2):
        o.append(f'v_add_f32 v{d+e}, v{d+e}, v{d+2+e}')
        o.append(f'v_add_f32 v{d+4+e}, v{d+4+e}, v{d+6+e}')
    for e in range(2): o.append(f'v_add_f32 v{d+2+e}, v{d+e}, v{d+4+e}')
    for e in range(2): o.append(f'v_add_f32 v{d+e}, v{d+e}, v{d+4+e}')
    o.append(f'v_mov_b32 v{d+4}, {f2u(1e-5):#x}')
    for e in range(2): o.append(f'v_permlane32_swap_b32 v{d+e}, v{d+2+e}')
    for e in range(2): o.append(f'v_add_f32 v{d+e}, v{d+e}, v{d+2+e}')
    o.append(f'v_mul_f32 v{d}, {f2u(1/512):#x}, v{d}')
    o.append(f'v_fmac_f32 v{d+4}, {f2u(1/512):#x}, v{d+1}')
    o.append(f'v_fma_f32 v{d+1}, -v{d}, v{d}, v{d+4}')
    o.append(f'v_max_f32 v{d+1}, {f2u(1e-5):#x}, v{d+1}')
    return o

def lead_order(n, m):
    o = sorted([((k + 0.1) / n, 0, k) for k in range(n)] + [((k + 0.1 + 0.3*t) / (n - m), t, k) for t in (1, 2) for k in range(n - m)])
    return [(t, k) for _, t, k in o] + [(t, k) for t in (1, 2) for k in range(n - m, n)]
RING = [('v', DW + 4*i) for i in range(6)] + [('a', 176 + 4*i) for i in range(4)] + [('a', 224 + 4*i) for i in range(4)]
def ring(i, o=0, n=4):
    c, r = RING[i % len(RING)]
    return (v if c == 'v' else a_)(r + o, n)
def corr(t): return f'v_mfma_f32_32x32x8_bf16 {v(DAC+16*t,16)}, {v(DST+2*t,2)}, {v(DST+6,2)}, {v(DAC+16*t,16)}'
def split2():
    o = [f'v_cvt_pk_bf16_f32 v{DST+2*t}, v{vUT+t}, v{vUT+t}' for t in range(4)] + [f'v_and_b32 v{DST+2*t+1}, 0xffff0000, v{DST+2*t}' for t in range(4)]
    o += [f'v_sub_f32 v{DST+2*t+1}, v{vUT+t}, v{DST+2*t+1}' for t in range(4)] + [f'v_cvt_pk_bf16_f32 v{DST+2*t+1}, v{DST+2*t+1}, v{DST+2*t+1}' for t in range(3)]
    return o + [f'v_cvt_pk_bf16_f32 v{DST+6}, v{vSB}, v{DST+7}', f'v_mov_b32 v{DST+7}, v{DST+6}']
def d_main():
    M = opt('dm', 8)
    order = lead_order(32, M)
    pos = {tk: 24 + i for i, tk in enumerate(order)}
    mm = [f'v_mfma_f32_32x32x16_bf16 {v(UAC+16*t,16)}, {a_(AUA+4*k,4)}, {ring(3*k+t)}, ' + ('0' if k == 0 else v(UAC+16*t,16)) for k in range(8) for t in range(3)]
    mm += [f'v_mfma_f32_32x32x16_bf16 {v(DAC+16*t,16)}, {ring(pos[t,k])}, {v(DY+4*k,4)}, ' + ('0' if k == 0 else v(DAC+16*t,16)) for t, k in order]
    def frag(i):
        t, k, b = (i % 3, i // 3, vU) if i < 24 else order[i-24] + (vD,)
        return [re.sub(r'v\[\d+:\d+\]', ring(i, 2*hr, 2), o, 1) for hr, o in enumerate(w1_rd(k, 0, b, [t]))]
    FL = opt('dfl', 8)
    fq = [Op(frag(i), i - FL, rel=max(0, i - len(RING) + 1), dl=max(0, i - FL + 2)) for i in range(FL, 120)]
    YP, YC, N0, N1 = opt('yp', 6), opt('yc', 18), opt('n0', 0), opt('n1', 0)
    assert YP <= YC <= 24 and N0 + N1 <= 15
    ld = frag_loads(DY, 32, sYB, srd=sOUT)
    LA, LB = opt('dla', 4), opt('dlb', 2)
    first = [(o, 'poll') if o.startswith('buffer') else o for o in flat(ld[:LA]) + stats_load(DST, sLB2)]
    def ycheck():
        vals = [DST + i for i in range(8)] + [DY + 4*i for i in range(LA)]
        mx = [f'v_max3_u32 v{vYM}, v{vals[0]}, v{vals[1]}, v{vals[2]}'] + [f'v_max3_u32 v{vYM}, v{vYM}, v{vals[i]}, v{vals[min(i+1, len(vals)-1)]}' for i in range(3, len(vals), 2)]
        check_loop([f's_sub_u32 {sYB}, {sYB}, {(LA-1)//4*4096}'] + first, mx + [f'v_cmp_eq_u32 vcc, -1, v{vYM}', 's_cmp_lg_u64 vcc, 0'], 'y')
        ts('ypoll')
    tail = {}
    tail.setdefault(YP - 1, []).extend(first)
    tail.setdefault(YC - 1, []).extend([ycheck] + flat(ld[LA:LA+LB]))
    R(cat(*[frag(i) for i in range(FL)]) + w2_rebase() + tail.pop(-1, []))
    so = stats_ops(DST) + [f'v_sqrt_f32 v{DST+1}, v{DST+1}', [f'v_cmp_gt_u32 vcc, 32, v{vL}', f'v_sub_f32 v{DST}, 0, v{DST}', 's_nop 0',
                           f'v_cndmask_b32 v{vSB}, v{DST}, v{DST+1}, vcc']]
    UB, KC = 24 + opt('dub', 4), 24 + opt('dkc', 24)
    tail.setdefault(UB, []).extend([lambda: A.waitlg('utw'), 's_barrier'])
    utw = [(f'ds_write_b32 v17, v{UAC+16*t} offset:{256*t}', 'utw') for t in range(3)]
    assert KC >= UB + 20
    xq = sorted(lin(so, YC, UB + 12, dl=KC - 8) + lin(utw, 24, 26, dl=UB - 1) + lin(d_ut2(), UB + 1, UB + 11, dl=UB + 13), key=lambda x: x.pos) + lin(split2(), UB + 13, KC - 2, dl=KC - 1) + lin(e_pre0(), KC, 84, dl=88)
    epi = d_epi()
    CK = pos[0, 31]
    mq = [Op(f'v_max3_u32 v{vYM}, v{vYM}, v{DY+4*k}, v{DY+4*min(k+1, 31)}', pos[0, min(k+1, 31)], rel=pos[0, min(k+1, 31)], dl=CK) for k in range(LA, 32, 2)]
    cmp = [f'v_cmp_eq_u32 vcc, -1, v{vYM}', 's_cmp_lg_u64 vcc, 0' if not opt('fy') else 's_cmp_eq_u32 0, 0']
    tail[CK] = cmp + ['s_cbranch_scc1 L_redo']
    def redo():
        A.label('L_redo')
        A.vm0(); A.lg0(force=True)
        R(['s_nop 15', 's_nop 15', f's_sub_u32 {sT2}, {sYB}, {7*4096}', f'v_mov_b32 v12, v{vD}', smov(sCNT, SPIN), smov(sT3, 16)] + [f'v_mov_b32 v{DAC+i}, 0' for i in range(48)])
        A.label('L_redo1')
        R([f'buffer_load_dwordx4 {v(DY+4*i,4)}, v{vL16}, {sOUT}, {sT2} offen offset:{1024*i} sc1' for i in range(2)])
        R(w1_rd(0, 0, 12) + w1_rd(1, 1, 12))
        R([f'v_max_u32 v{vYM}, v{DY}, v{DY+4}', f's_sub_u32 {sCNT}, {sCNT}, 1', f's_cselect_b32 {sT4}, 0, -1', f'v_cmp_eq_u32 vcc, {sT4}, v{vYM}', f's_max_i32 {sCNT}, {sCNT}, 0'])
        A.lg0()
        R([f's_cmp_lg_u32 {sT4}, 0', 's_cselect_b64 vcc, vcc, 0', 's_cmp_lg_u64 vcc, 0', 's_cbranch_scc1 L_redo1'])
        for i in range(2):
            for t in range(3): I(f'v_mfma_f32_32x32x16_bf16 {v(DAC+16*t,16)}, {v(DW+12*i+4*t,4)}, {v(DY+4*i,4)}, {v(DAC+16*t,16)}')
        R([f'v_add_u32 v12, 6144, v12', f's_add_u32 {sT2}, {sT2}, 2048', f's_sub_u32 {sT3}, {sT3}, 1', f's_cmp_lg_u32 {sT3}, 0'])
        A.settle()
        I('s_cbranch_scc1 L_redo1')
        for t in range(3): I(corr(t))
        R(pubs(cat(*epi)))
        A.vm0()
        A.settle()
        I('s_branch L_dj')
    slow_blocks.append(redo)
    xq += lin(pubs(epi[0]), pos[0, 31] + 3, pos[0, 31] + 3 + max(M, 1)) + lin(pubs(epi[1]), pos[1, 31] + 3, pos[1, 31] + 3 + max(M - 3, 0)) if M >= 4 else []
    YW, Y0, PER, PW, ND2 = opt('dyw', 99), opt('dy0', 0), opt('dper', 75) / 32, opt('dpw', 90) / 32, opt('ndd', 11)
    G0 = min(opt('y0', 0), YP)
    nb = N0 + N1
    vq = [Op(w2_issue(i), G0 + (YP - G0) * i / N0, dl=max(YP - 1, 0), ahead=0) for i in range(N0)] + [Op(w2_issue(N0 + i), YP + (YC - YP) * i / N1, rel=YP, dl=max(YC - 1, YP), ahead=0) for i in range(N1)]
    q = []; b = nb; land = {x: YC for x in range(N0 if YP else 0)}
    for k in range(LA + LB, 32):
        q.append((ld[k], k))
        for x in range(b): land.setdefault(x, pos[0, k])
        i = k - LA - LB
        if i >= Y0 and (i - Y0) % YW == YW - 1 and b < min(NB2, nb + ND2): q.append((b, 0)); b += 1
    while b < min(NB2, nb + ND2): q.append((b, 0)); b += 1
    WLAG = opt('dwl', 30)
    rop = {}; rq = []; p = YC; at = 0
    def rd(x, g):
        nonlocal at
        at = max(at + 0.7, g)
        if at <= CK - 1 and x == len(rop): rop[x] = Op(w2_read(x)[0], at, rel=int(g), dl=CK); rq.append(rop[x])
    for x in sorted(land): rd(x, land[x] + 1)
    for g, k in q:
        if isinstance(g, int):
            if g >= 15 and g - 15 in rop: p = max(p, rop[g-15].pos + 4)
            if g >= 15 and g - 15 not in rop or p > CK - 1:
                assert all(isinstance(x[0], int) for x in q[q.index((g, k)):])
                b = g; break
            vq.append(Op(w2_issue(g), p, rel=int(p), dl=CK, ahead=0, deps=[rop[g-15]] if g >= 15 else [], lag=3))
            if g not in land: rd(g, p + WLAG)
            p += PW
        else:
            if DY + 4*k >= UAC: p = max(p, UB + 14); assert p < pos[0, k] - 4
            vq.append(Op(g, p, rel=min(int(p), pos[0, k] - 4), dl=pos[0, k] - 4, ahead=0))
            p += PER
    for t in range(3):
        g = [i for i in range(KC, 88) if t not in (order[i-24][0], order[i-23][0])][t]
        tail.setdefault(g, []).append(corr(t))
    for k in (0, 1, 8, 16, 24): tail.setdefault(23 + 3*k, []).append(lambda k=k: ts(f'd{k}'))
    R(gsched(mm, [fq, vq, rq, xq, mq], tail, 0, 0, window=12))
    ts('dend')
    return b, len(rop), (epi[2] if M >= 4 else cat(*epi))

def d_epi():
    HP = 128
    r = []
    for t in range(3):
        o = []
        for s in range(2):
            ks = range(4*s, 4*s+4)
            o += [f'v_cvt_pk_bf16_f32 v{HP+8*t+k}, v{DAC+16*t+2*k}, v{DAC+16*t+2*k+1}' for k in ks]
            o += [f'v_pk_max_i16 v{HP+8*t+k}, v{HP+8*t+k}, 0' for k in ks]
            o.append(f'buffer_store_dwordx4 {v(HP+8*t+4*s,4)}, v{vL16}, {sWS}, {[sH0,sH1,sH2][t]} offen offset:{1024*s}@')
        r.append(o)
    return r

EH, EAC, XE, EST, EG = 80, 176, 40, 56, 64
sE0, sE1, sE2, sE3 = 's28', 's29', 's30', 's31'
def e_pre0():
    o = [f's_lshl_b32 {sT0}, {sRB64}, 1', f's_lshr_b32 {sT1}, {sW}, 1', f's_add_u32 {sT0}, {sT0}, {sT1}',
         f's_lshl_b32 {sE3}, {sT0}, 11', f's_add_u32 {sE3}, {sE3}, {STATS}',
         f's_xor_b32 {sT1}, {sT0}, 1', f's_mul_i32 {sE0}, {sT1}, {86*1024}', f's_mul_i32 {sE1}, {sT0}, {86*1024}',
         f's_mul_i32 {sT1}, {sW}, {22*1024}', f's_add_u32 {sT1}, {sT1}, {HB}', f's_add_u32 {sE0}, {sE0}, {sT1}', f's_add_u32 {sE1}, {sE1}, {sT1}',
         smov(sE2, 4096), [f's_cmp_eq_u32 {sW}, 3', f's_cselect_b32 {sE2}, {OOB:#x}, {sE2}']]
    o += [f's_mul_i32 {sT0}, {sW}, 11', f'v_lshrrev_b32 v12, 2, v{vL}', f'v_mul_u32_u24 v12, 3, v12', f'v_add_u32 v13, 2, v12',
          f'v_cmp_le_u32 {mC0}, {sT0}, v13', f's_add_u32 {sT0}, {sT0}, 10', f's_min_u32 {sT0}, {sT0}, 42', f'v_cmp_ge_u32 {mC1}, {sT0}, v12',
          f'v_bfe_u32 v12, v{vL}, 1, 1', f's_and_b32 {sT0}, {sRB64}, 1', f'v_cmp_eq_u32 {mP}, {sT0}, v12',
          f's_and_b64 {mC0}, {mC0}, {mC1}', f's_and_b64 {mC0}, {mC0}, {mP}']
    return o
def e_pre1():
    o = [f's_lshl_b32 {sT0}, {sW}, 4', f'v_and_b32 v10, 15, v{vL}', f'v_add_u32 v10, {sT0}, v10', f'v_mul_u32_u24 v10, 272, v10',
         f'v_and_b32 v11, 0x30, v{vL}', f'v_add_u32 v10, v10, v11', f'v_add_u32 v10, {XT}, v10']
    o += [f'ds_write_b128 v10, {v(X1+4*j,4)} offset:{64*j}' for j in range(4)]
    o += [f's_lshr_b32 {sT0}, {sW}, 1', f's_mul_i32 {sT0}, {sT0}, {32*272}', f's_and_b32 {sT1}, {sW}, 1', f's_lshl_b32 {sT1}, {sT1}, 7',
          f's_add_u32 {sT0}, {sT0}, {sT1}', f's_add_u32 {sT0}, {sT0}, {XT}',
          f'v_and_b32 v10, 31, v{vL}', f'v_mul_u32_u24 v10, 272, v10', f'v_lshrrev_b32 v11, 5, v{vL}', f'v_lshlrev_b32 v11, 4, v11',
          f'v_add3_u32 v10, v10, v11, {sT0}']
    return o
def e_pre2():
    o = [f'ds_read_b128 {v(XE+4*q,4)}, v10 offset:{32*q}' for q in range(4)]
    for rel in (1, 2, 3):
        o += [f's_xor_b32 {sT0}, {sW}, {rel}', f's_mul_i32 {sT0}, {sT0}, 12288', f's_add_u32 {sT0}, {sT0}, {EX + (rel-1)*4096}', f'v_add_u32 v{10+rel}, {sT0}, v{vL16}']
    for k in range(8):
        o += [f'v_accvgpr_read_b32 v{EG+2*k+1}, a{AGB+k}', f'v_lshlrev_b32 v{EG+2*k}, 16, v{EG+2*k+1}', f'v_and_b32 v{EG+2*k+1}, 0xffff0000, v{EG+2*k+1}']
    o += stats_ops(EST) + [f'v_rsq_f32 v{EST}, v{EST+1}']
    o += [f's_mul_i32 {sT0}, {sW}, 12288', f's_add_u32 {sT0}, {sT0}, {EX}', f'v_add_u32 v14, {sT0}, v{vL16}']
    o += [f'v_mul_f32 v{EG+k}, v{EST}, v{EG+k}' for k in range(16)]
    o += [f's_lshl_b32 {sT0}, {sRB64}, 16', f's_lshr_b32 {sT1}, {sW}, 1', f's_lshl_b32 {sT1}, {sT1}, 15', f's_add_u32 {sT0}, {sT0}, {sT1}',
          f's_lshl_b32 {sT1}, {sHQ}, 7', f's_add_u32 {sT0}, {sT0}, {sT1}', f's_and_b32 {sT1}, {sW}, 1', f's_lshl_b32 {sT1}, {sT1}, 6',
          f's_add_u32 {sS0}, {sT0}, {sT1}',
          f'v_and_b32 v15, 31, v{vL}', f'v_lshlrev_b32 v15, 10, v15', f'v_lshrrev_b32 v16, 5, v{vL}', f'v_lshl_add_u32 v15, v16, 4, v15']
    return o

def e_main(pre):
    ld = frag_loads(EH, 22, sE0, sE2) + frag_loads(EH + 88, 22, sE1, sE2)
    LA = opt('ela', 8)
    R(ld[:LA] + stats_load(EST, sE3))
    R(pre)
    def mm(tile, slot, rel, i):
        d = a_(EAC + 16*tile, 16) if tile else v(X1, 16)
        return f'v_mfma_f32_32x32x16_bf16 {d}, {a_(8*i+4*slot,4)}, {v(EH+88*rel+4*i,4)}, ' + ('0' if i == 0 else d)
    def wr(tile): return [f'ds_write_b128 v{10+tile}, {a_(EAC+16*tile+4*q,4)} offset:{1024*q}' for q in range(4)]
    def rd(rel): return [f'ds_read_b128 {v(EH+16*rel+4*q,4)}, v14 offset:{4096*(rel-1)+1024*q}' for q in range(4)]
    def acc(rel): return [f'v_fma_f32 v{XE+k}, v{EH+16*rel+k}, v{EG+k}, v{XE+k}' for k in range(16)]
    M = opt('em', 10)
    o2 = sorted([((i + 0.1) / 22, 1, i) for i in range(22)] + [((i + 0.6) / (22 - M), 0, i) for i in range(22 - M)])
    o2 = [(t, i) for _, t, i in o2] + [(0, i) for i in range(22 - M, 22)]
    ms = cat(*[[mm(2, 0, 0, i), mm(3, 1, 0, i)] for i in range(22)]) + [mm(t, t, 1, i) for t, i in o2]
    use = [2*i for i in range(22)] + [44 + o2.index((1, i)) for i in range(22)]
    vq = [Op(ld[j], use[j - LA], rel=use[j - LA], dl=use[j - LA], ahead=0) for j in range(LA, 44)]
    B1 = opt('eb1', 2); B2 = B1 + 12; B3 = opt('eb3', 62)
    L1 = use[43]
    bar = lambda: A.barrier()
    tail = {B1: ['s_barrier'], B2: [bar], B3: [bar]}
    xq = lin(e_pre1(), B1 + 1, B2 - 2, dl=B2 - 1) + lin(e_pre2()[:16] + e_pre2()[-16:] if opt('xe') else e_pre2(), B2 + 1, 44, dl=46) + lin(wr(2) + wr(3), 47, B3 - 3, dl=B3 - 1)
    xq += lin(rd(2) + rd(3), B3 + 1, B3 + 5) + lin(acc(2) + acc(3), B3 + 5, B3 + 13, dl=87)
    assert L1 > B3 + 12
    last = wr(1) + [bar, lambda: ts('ebar')] + rd(1) + acc(1)
    if M >= 6:
        tail[L1 + 2] = wr(1); tail[L1 + 4] = last[4:10]; last = last[10:]
        if M >= 10: xq += lin(last, L1 + 8, 88, dl=87); last = []
    for j in (1, 11, 22, 33): tail.setdefault(2*j - 1, []).append(lambda j=j: ts(f'e{j}'))
    R(gsched(ms, [vq, xq], tail, 0, 0, window=12))
    ts('eend')
    R(last)
    for pr in range(2):
        ks = range(4*pr, 4*pr+4)
        for k in ks: I(f'v_pk_fma_f32 {v(X1+2*k,2)}, {v(X1+2*k,2)}, {v(EG+2*k,2)}, {v(XE+2*k,2)}')
        for k in ks: I(f'v_cvt_pk_bf16_f32 v{EH+k}, v{X1+2*k}, v{X1+2*k+1}')
        for i in range(2): I(f'v_permlane32_swap_b32 v{EH+4*pr+i}, v{EH+4*pr+2+i}')
        I(f'buffer_store_dwordx4 {v(EH+4*pr,4)}, v15, {sOUT}, {sS0} offen offset:{32*pr}')

def gen_update():
    I(f's_lshl_b32 {sT0}, s2, 2')
    I(f's_add_u32 {sT0}, {sT0}, {sW}')
    I(f's_cmp_lg_u32 {sT0}, {120*4}')
    A.settle()
    I('s_cbranch_scc1 L_nogen')
    A.cond = 'gen'
    I(smov(sCNT, SPIN)); I(smov(sT0, HELLO2))
    A.label('L_gen')
    for i in range(4): I(f'buffer_load_dwordx4 {v(160+4*i,4)}, v{vL16}, {sWS}, {sT0} offen offset:{1024*i} sc1')
    A.vm0()
    R([f'v_cmp_ne_u64 vcc, {TAG}, v[162:163]', f'v_cmp_ne_u64 s[4:5], {TAG}, v[166:167]', f's_or_b64 vcc, vcc, s[4:5]',
       f'v_cmp_ne_u64 s[4:5], {TAG}, v[170:171]', f's_or_b64 vcc, vcc, s[4:5]', f'v_cmp_ne_u64 s[4:5], {TAG}, v[174:175]', f's_or_b64 vcc, vcc, s[4:5]',
       's_cbranch_scc0 L_gend', f's_sub_u32 {sCNT}, {sCNT}, 1', 's_cbranch_scc0 L_gen'])
    A.label('L_gend')
    I(f'v_lshlrev_b32 v160, 24, v{vL}')
    I(smov(sT0, GEN))
    I(f'buffer_store_dwordx2 {v(vTAG,2)}, v160, {sWS}, {sT0} offen sc1')
    A.settle()
    A.cond = None
    A.label('L_nogen')

def finish():
    if DEBUG:
        A.vm0()
        ts('end')
        A._emit(Ins('s_memrealtime s[6:7]'))
        A.lg0(force=True)
        for i in range(2*NTS): I(f'v_writelane_b32 v4, s{TS0+i}, {i}')
        I('s_getpc_b64 s[4:5]'); A.label('L_pc'); I(f's_sub_u32 s4, s4, L_pc-{NAME}_kernel'); I('s_subb_u32 s5, s5, 0'); I('v_writelane_b32 v4, s4, 36'); I('v_writelane_b32 v4, s5, 37')
        I('v_writelane_b32 v4, s100, 30'); I('v_writelane_b32 v4, s101, 31')
        I('v_writelane_b32 v4, s6, 32'); I('v_writelane_b32 v4, s7, 33'); I(f'v_writelane_b32 v4, {sFAST}, 34'); I(f'v_writelane_b32 v4, {sXCC}, 35')
        R([f's_lshl_b32 {sT0}, s2, 2', f's_add_u32 {sT0}, {sT0}, {sW}', f's_lshl_b32 {sT0}, {sT0}, 8', f's_add_u32 {sT0}, {sT0}, {TSB}',
           f'v_lshlrev_b32 v5, 2, v{vL}', f'buffer_store_dword v4, v5, {sWS}, {sT0} offen'])
    A.label('L_end')
    I('s_endpgm')
    for s in slow_blocks: s()

def gate(n):
    def f():
        A._wait(vm=n)
    return f

def main():
    W = lambda a, b: [g for ks in range(a, b) for g in wq_issue(ks)]
    RD = lambda a, b: [o for ks in range(a, b) for o in wq_read(ks)]
    segs = 'G S1 S2 H 0a 0b 1a 1b 2a 2b 3a 3b A PO C PY'.split()
    cold = {n: [] for n in segs}
    for name, f, d in (('pwo', lambda: pfm(sWO), 2), ('pw1', lambda: pfm(sW1), 4), ('po', pf_o, 6), ('py', pf_y, 9), ('pw2', lambda: pfm(sW2), 11), ('ph', pf_h, 11), ('h2', hello2, 8)):
        cold[segs[opt(name, d)]] += f()
    M2P = opt('m2p', 1)
    M2G = opt('m2g', -1)
    if M2P != 1: cold[segs[M2P]] += m2_load()
    assert M2P in (1, 2) or M2G >= 0
    prologue()
    w = W(0, NSL)
    GW = opt('gw', 8)
    def take(n, gated=True):
        nonlocal w
        r = [([gate(GW - 1)] if gated else []) + [lambda k=3*NSL-len(w)+i: ts(f'w{k}')] + g for i, g in enumerate(w[:n])]; w = w[n:]
        return r
    wa0 = take(opt('wa0', 0), False)
    wa = take(opt('wa', 3), False)
    sa = srd(16) + srd(20) + srd(24) + srd(36) + rd_setup()
    wb = take(opt('wb', 3), False)
    tokc = dict(A.tokc)
    kl = [kload(s) for s in (16, 20, 24, 36)]
    hel = hello()
    mc = mod_compute()
    k0 = mc.index('v_mov_b32 v30, s44')
    k1 = [i for i, o in enumerate(mc) if isinstance(o, str) and o.startswith('ds_read_b128')][-1] + 1
    R(ids() + srd(40) + mc[:k0-1] + tag_fix() + mc[k0-1:k1] + srd(8) + x_setup() + x_load() + mc[k1:])
    ts('modpub')
    global TSSEL
    sv = TSSEL; TSSEL = {'none'}
    CLP = opt('clp', 0)
    R(hello_setup() + hel + h_bases() + ln_setup() + h_clear() + (m2_load() if M2P == 1 else []) + kl + srd(12) + dma_setup())
    R(pace(sa + pfm_setup() + flag_setup() + ln1(), wa0 + wa + wb, period=50))
    R(h_cleared())
    TSSEL = sv
    A.settle(); I('s_branch L_u2')
    A.cond = None
    A.label('L_u1')
    A.tokc = tokc
    A.sm = {('s', 44), ('s', 45)}
    A.vm = [e for e in A.vm if e[2] != 'urg']
    A.lg = []
    early = {'2': m2_load() if M2P == 1 else [], 'u': help_u(), 'p': pfm(sWQ), 'r': pr0(), 'c': ln_setup() + (h_clear() if CLP == 0 else [])}
    od = ['urpc2||', 'uprc2||', 'urcp2||', 'purc2||', 'uprc|2|', 'uprc||2', 'rupc2||'][opt('od', 0)]
    e0, em, e1 = [cat(*[early[c] for c in x]) for x in od.split('|')]
    R(ids() + srd(8) + x_setup())
    ts('karg')
    R(x_load() + srd(40) + h_bases() + srd(12) + pfm_setup() + e0 + dma_setup() + wa0 + sa)
    ts('xiss')
    R(tag_fix() + kl + hello_setup() + hel + flag_setup() + em + wa)
    ts('hel')
    R(pace(ln1(), e1 + cold['S1'] + wb, period=opt('wbp', 70), first=opt('wb0', 150)))
    if CLP: R([lambda: A.waitvm('pr0')] + h_clear())
    R(h_cleared())
    A.vm = [e for e in A.vm if e[1] and e[1] != 'm2'] + [(e[0], 'm2', 'x', set()) for e in A.vm if e[1] == 'm2']
    A.settle()
    A.label('L_u2')
    ts('lb0')
    A.barrier()
    ts('lb1')
    R(pace(ln2(), take(opt('wc', 2), False), period=opt('wbp', 70)))
    ts('ln')
    late = hr_setup() + pr_setup() + c_addr() + w2_setup() + late_setup() + m2_setup()
    L1 = opt('l1', 36)
    R(pace(late[:L1], cold['S2'] + take(opt('wd', 0)), period=opt('wbp', 70))); late = late[L1:]
    ts('g1i')
    R(g1_load() + [poll_load(3)])
    L2 = opt('l2', 60)
    R(pace(late[:L2], take(opt('we', 4), False), period=opt('wep', 50), first=20)); late = late[L2:]
    g1_check()
    ts('gath')
    def nlanded(): return min(k for k in range(NSL + 1) if k == NSL or any(e[1] == f'ks{k}' for e in A.vm) or A.tokc.get(f'ks{k}', 0) < 3)
    R(h_head())
    S, J = A.uniq('slow'), A.uniq('join')
    I(f's_cmp_eq_u32 {sFAST}, 0')
    A.settle()
    I(f's_cbranch_scc1 {S}')
    R([o.replace('@', '') for o in h_body()])
    poll_check(3, mRB)
    A.cond = None
    A.label(J)
    def slow():
        A.label(S)
        R([o.replace('@', ' sc1') for o in h_body()])
        A.vm0()
        I(f'buffer_store_dwordx2 {v(vTAG,2)}, v{vFS}, {sWS}, 0 offen offset:{4*512} sc1')
        R([poll_load(4)])
        poll_check(4, mRB)
        A.vm0()
        A.settle()
        I(f's_branch {J}')
    slow_blocks.append(slow)
    ts('hp')
    if opt('nb1', 0): A.waitvm(f'ks{opt("nb1", 0) - 1}')
    ND = nlanded()
    I('s_barrier')
    sh = late + RD(0, ND) + (m2_a() if M2G < 0 else [])
    HD_ = min(opt('hd', 20), len(sh))
    assert L1 + L2 + HD_ >= len(hr_setup() + pr_setup() + c_addr())
    R(pace(sh[:HD_], take(opt('wf', 3), False), period=opt('wgp', 30), first=0))
    ts('hf')
    R(h_issue(0))
    R(pace(sh[HD_:], cold['G'] + take(opt('wg', 3), False), period=opt('wgp', 30), first=0))
    R((m2_st() if M2G < 0 else []) + take(opt('np', 3), False) + cold['H'])
    A.waitvm('hc0', 5)
    ts('h0')
    R(hk_read(0) + hk_max())
    hk_check(0)
    landed = nlanded()
    A.barrier()
    ts('mf0')
    assert ND >= 1 and landed >= 3
    R(h_read(0))
    w1b = [w1_issue(i) for i in range(8)]
    wo = [wo_issue(i) for i in range(16)]
    mm = cat(*[qkv_mfma(ks) for ks in range(16)])
    E = lambda c: 42 + 56*c
    G = [14 + 28*i for i in range(8)]
    cuts = [28*i for i in range(9)]
    items = [(14*int(g[-1][1][2:]) - 14 - 14*(int(g[-1][1][2:]) & 1), g) for g in w + W(NSL, 16)] + [(E(c-1) - opt('hlead', 1), g) for c in (1, 2, 3) for g in h_issue(c)]
    items.sort(key=lambda x: x[0])
    items = [g for _, g in items] + wo + cat(*[w2a_issue(i) for i in range(NA2)])
    rdat = {k: -1 for k in range(ND)}
    free = {k: 0 for k in range(ND)}
    issued = {k: -40 for k in range(NSL) if A.tokc.get(f'ks{k}', 0) == 3}
    used = {1: [('hc1', None)], 3: [('hc2', None)], 5: [('hc3', None)], 7: [('wo', 16)] if opt('wo3', 0) else []}
    rq = []
    RPG = opt('rpg', 5)
    state = {'next': ND, 'end': {}}
    def reads(ks, at):
        for k in ks:
            at0 = max(at, state.get('rp', 0))
            rq.extend(lin(RD(k, k+1), at0, at0 + RPG, rel=at, dl=min(14*k - 4, at0 + RPG + 4), ahead=4))
            state['rp'] = at0 + RPG; state['end'][k] = min(14*k - 4, at0 + RPG + 4); state['next'] = k + 1
    reads(range(ND, landed), 0)
    dsp = [opt('dsp0', 42) / 10, opt('dsp', 50) / 10, opt('dsp', 50) / 10, opt('dsp3', 50) / 10]
    LAG = opt('lag', 45)
    HKL = opt('hkl', 12)
    vq = []; p = 1.0; bi = 0; nwo = 0; nw1 = 0
    def release(g):
        tok = g[-1][1]
        if tok[:2] == 'ks': need = [int(tok[2:]) - 5] if int(tok[2:]) >= NSL else []
        elif tok[:2] == 'hc': need = {1: [0, 1], 2: [1, 2, 3], 3: [3, 4]}[int(tok[2])]
        elif tok == 'wo': return 0 if nwo < 1 else E(0) if nwo < 6 else E(1) if nwo < 11 else E(2)
        else: need = [[5, 11], [11, 12], [12, 13], [13, 14], [14, 15], [99]][int(tok[3])]
        return max([free.get(k, E(3) if k == 99 else None) or 0 if (k in free or k == 99) else 10**6 for k in need] + [0])
    def do_bar(i):
        must = min(15, 2*i + 3)
        k = state['next']
        while k < 16 and k in issued and (k <= must or issued[k] <= G[i] - LAG): k += 1
        assert k > must, (i, k)
        fr = [j for j, e in state['end'].items() if j not in free and e < G[i] - 1]
        need = i in used or opt('fb', 0) >> i & 1 or state['next'] <= must or (items and release(items[0]) > 10**5 and fr)
        if not need: return
        used.setdefault(i, [])
        for j in fr: free[j] = G[i]
        if k > state['next']:
            used[i].append((f'ks{k-1}', 3)); reads(range(state['next'], k), G[i])
    while True:
        if opt('wof', 0) and items and release(items[0]) > p + 3 and bi < 8 and p < G[bi] - 3:
            j = [k for k, g in enumerate(items) if g[-1][1] == 'wo']
            if j and release(items[j[0]]) < p: items.insert(0, items.pop(j[0]))
        r = release(items[0]) if items else 10**6
        if bi < 8 and items and r < G[bi] - 1:
            tk = [g[-1][1] for g in items]
            if any(x in tk for x in [f'ks{min(15, 2*bi+3)}'] + [u[0] for u in used.get(bi, [])]): p = min(p, G[bi] - 2)
            if f'hc{(bi+1)//2}' in tk: p = min(p, max(r + 1, G[bi] - HKL - 3))
        if bi < 8 and max(p, r + 1) >= G[bi]:
            do_bar(bi); bi += 1; continue
        p = max(p, r + 1)
        if p > 222: break
        g = items.pop(0); tok = g[-1][1]
        if tok[:2] == 'ks' and 'offset:2048' in g[-1][0]: issued[int(tok[2:])] = p
        nwo += tok == 'wo'
        dl = G[bi] - 2 if bi < 8 else 223
        if tok[:2] == 'hc': dl = min(dl, E(int(tok[2]) - 1) - HKL - 2)
        vq += [Op(o, p - 2, ahead=3) for o in g[:-1]] + [Op(g[-1], p, rel=min(int(p), dl), dl=dl, ahead=0)]
        p += dsp[min(3, int(p) // 56)]
    tail = {}
    def bar(name, toks):
        def f():
            for tok in toks:
                if tok[0][:2] == 'hc': hk_check(int(tok[0][2]))
                else: A.waitvm(*tok)
            A.barrier()
            ts(name)
        f.slots = 2.5
        return f
    for i, toks in used.items(): tail[G[i]-1] = [bar(f'b{i}', toks)]
    hq = []
    for ks in range(1, 16):
        h = h_read(ks)
        for T in range(1 if opt('xh') else 5):
            rel = 14*ks - 14 - [12, 9, 6, 3, 0][T]
            if ks & 3 == 0: rel = max(rel, E(ks//4 - 1))
            hq.append(Op((h[T], f'h{ks}'), max(rel, 14*ks - 14 + 1.6*T), rel=rel, dl=14*ks - 8 + T, ahead=3))
        if 4 <= ks < 8: hq.append(Op(f'v_add_u32 v{vHR+(ks&3)}, 40960, v{vHR+(ks&3)}', 14*ks - 4, dl=14*ks + 6))
        tail.setdefault(14*ks - 1, []).insert(0, lambda ks=ks: A.waitlg(f'h{ks}'))
    M2L, M2C = opt('m2l', 100), opt('m2c', 160)
    tail.setdefault(M2C - 1, []).append(m2_check)
    oq = (lin(m2_a() + m2_st(), M2G, M2G + 36, dl=M2L - 2) if M2G >= 0 else []) + lin(m2_ld2(), M2L, M2L + 8, dl=M2C - 10) + lin(m2_b(), M2C, M2C + 36, dl=222)
    kq = []
    for c in (1, 2, 3):
        e = E(c - 1)
        tail.setdefault(e - HKL - 1, []).append(lambda c=c: A.waitvm(f'hc{c}', 5))
        kq += lin(hk_read(c), e - HKL, e - HKL + 4, dl=e - 6) + lin(hk_max(), e - 5, e - 2, rel=e - HKL + 4, dl=e - 2)
        if c == 1: kq.append(Op(f'v_add_u32 v{vHC}, 40960, v{vHC}', e + 2, rel=e + 1))
    lq = []
    for si in range(8):
        name = f'{si>>1}' + 'ab'[si & 1]
        l = {'3a': c_xload()}.get(name, []) + cold[name]
        lq += lin(l, cuts[si] + 3, cuts[si+1] - 3 if not opt('cburst') else cuts[si] + 6, dl=min(222, cuts[si+1] + 10))
    if opt('xm'): mm = [re.sub(r'v_mfma_f32_16x16x32_bf16 (\S+), .*', r'v_mfma_f32_4x4x4_16b_f16 \1, v[2:3], v[2:3], 0', m) if i % 14 else m for i, m in enumerate(mm)]
    R(gsched(mm, [hq, vq, lq, rq, oq, kq], tail, opt('quiet', 2), opt('vmgap', 2)))
    w1 = list(items)
    od1 = [i for i in (0, 1, 6, 5, 4) if i not in A2] + A2 + [7]
    for i in od1:
        if i in A2:
            k = len(w1) - opt('w2lead', 2)
            w1[k] = w1[k] + w2a_read(A2.index(i))
        w1 += w1b[i]
    print('ND', ND, 'landed', landed, 'left', len(w1), sorted(used.items()), {k: int(x) for k, x in issued.items() if x > 0}, file=sys.stderr)
    ts('qkv')
    att, tail = attention()
    NW1, NW1b, NW1c = opt('nw1', 10), opt('nw1b', 2), opt('nw1c', 2)
    assert len(w1) - NW1 - NW1b - NW1c >= 3
    bg = cold['A'] + w1[:NW1]; w1 = w1[NW1:]
    bg.insert(opt('g2p', 6), g2_loads())
    R(pace(att, bg, period=opt('aper', 100)))
    assert A.tokc['wo'] == 16
    ts('att')
    CPRE = opt('cpre', 4)
    publish(tail, 0, cold['PO'] + w1[:NW1b], c_base() + [g2_check] + g2_post()); w1 = w1[NW1b:]
    ts('opub')
    sh = [A.barrier] + pace(modvec_read() + cat(*[c_rd(k) for k in range(CPRE)]) + c_unpack(), w1[:NW1c], period=opt('osper', 100)); w1 = w1[NW1c:]
    OPD = min(opt('opd', 0), len(sh)); OSP = min(max(OPD, opt('osp', 999)), len(sh))
    R(sh[:OPD] + [poll_load(0)] + sh[OPD:OSP])
    poll_check(0, mRB)
    ts('opoll')
    assert A.tokc['clr2'] == 3
    A.waitvm('clr2')
    I(f'buffer_store_dwordx2 {v(vTAG,2)}, v{vFS}, {sWS}, 0 offen offset:{512}')
    rest = c_main(w1 + cold['C'], CPRE, d_setup() + d_setup2(), sh[OSP:])
    R([poll_load(1)])
    publish(c_epi(), 5, rest + cold['PY'], flag=False)
    ts('ypub')
    poll_check(1, mC0)
    for i in range(8): A.waitvm(f'w1_{i}', 3)
    A.barrier()
    ts('ut0')
    nb, nrd, epi = d_main()
    NR = opt('nr', 6)
    rest = []
    for b in range(nb, NB2):
        while b - 15 >= nrd: rest.append(w2_read(nrd)[0]); nrd += 1
        rest.append(w2_issue(b))
    publish(epi, 2, rest[:NR], stores=cat(*d_epi()), label='L_dj'); rest = rest[NR:]
    ts('hpub')
    gen_update()
    rds = cat(*[w2_read(b) for b in range(nrd, NB2)])
    n1 = len([b for b in range(nrd, NB2) if b < nb])
    HPD = min(opt('hpd', 4), n1)
    R(rest + rds[:HPD] + [poll_load(2)] + rds[HPD:n1])
    poll_check(2, mC0)
    ts('hpoll')
    e_main(rds[n1:])
    finish()

main()
hdr = open(f'cdna_kernels/{NAME}.s.ref').read().split('\n')
head = [l for l in hdr if l.startswith(';') and '@launch' not in l]
out = '\n'.join(head) + '\n; @launch grid=(256,1,1) block=(256,1,1) lds=163840\n'
out += f'''.amdgcn_target "amdgcn-amd-amdhsa--gfx950"
.text
.globl {NAME}_kernel
.p2align 8
.type {NAME}_kernel,@function
{NAME}_kernel:
'''
out += A.text()
out += f'''.fill @PAD@, 4, 0xbf810000
.section .rodata,"a"
.p2align 6
.amdhsa_kernel {NAME}_kernel
  .amdhsa_next_free_vgpr 512
  .amdhsa_next_free_sgpr 102
  .amdhsa_accum_offset 256
  .amdhsa_group_segment_fixed_size 0
  .amdhsa_kernarg_size 88
  .amdhsa_user_sgpr_count 2
  .amdhsa_user_sgpr_kernarg_segment_ptr 1
  .amdhsa_system_sgpr_workgroup_id_x 1
.end_amdhsa_kernel
'''
dst = sys.argv[1]
import subprocess, re
import os
SZ = f'_sz{os.getpid()}'
def textsize(t):
    open(SZ + '.s', 'w').write(t)
    subprocess.run(['clang', '-x', 'assembler', '-target', 'amdgcn-amd-amdhsa', '-mcpu=gfx950', '-c', SZ + '.s', '-o', SZ + '.o'], check=True)
    h = subprocess.run(['llvm-objdump', '-h', SZ + '.o'], capture_output=True, text=True).stdout
    return int(re.search(r'\.text\s+([0-9a-f]+)', h).group(1), 16)
sz = textsize(out.replace('@PAD@', '1'))
out = out.replace('@PAD@', str(max(1, (33024 - sz) // 4 + 2)))
assert textsize(out) >= 33024
print('code bytes', sz, file=sys.stderr)
open(dst, 'w').write(out)
if DEBUG: open(dst + '.ts', 'w').write(','.join(tsnames))
print(A.stats, 'nops', A.nnop, 'waits', A.nwait, file=sys.stderr)

os.remove(SZ + '.s'); os.remove(SZ + '.o')
```
